```python
import torch

def _softmax(x, axis=-1):
    return torch.softmax(x, dim=axis)

def _gelu(x):
    return torch.nn.functional.gelu(x, approximate='tanh')

def _silu(x):
    return torch.nn.functional.silu(x)

def _sigmoid(x):
    return torch.sigmoid(x)

def _layernorm(x, axis=-1, eps=1e-05):
    m = x.mean(dim=axis, keepdim=True)
    v = x.var(dim=axis, keepdim=True, unbiased=False)
    return (x - m) / torch.sqrt(v + eps)

def _scatter_add(tgt, idx, src, axis=0):
    return tgt.clone().index_add_(axis, idx, src)

def _segment_sum(src, seg, n):
    out = torch.zeros((n,) + src.shape[1:], dtype=src.dtype)
    return out.index_add_(0, seg, src)

def _pad(x, pw):
    flat = tuple((v for pair in reversed(pw) for v in pair))
    return torch.nn.functional.pad(x, flat)
kernel_name = 'interleave_layers__memory_aug_recurrent_mem_tr__spectral_gfnet__prompt'

def setup_inputs():

    _w = lambda a: (lambda t: t.to(torch.bfloat16) if t.is_floating_point() else t)(torch.as_tensor(a))

    def _A_setup():
        B, S, Dm = (1, 2048, 576)
        H, Dh = (32, 128)
        M, seg = (8, 32)
        seg = min(seg, S)
        S = S // seg * seg
        return {'x': _w((lambda *s: torch.randn(*s, dtype=torch.bfloat16) * 0.05)(B, S, Dm)), 'mem0': _w((lambda *s: torch.randn(*s, dtype=torch.bfloat16) * 0.2)(B, M, Dm)), 'Wq': _w((lambda *s: torch.randn(*s, dtype=torch.bfloat16) * 1.6)(Dm, H, Dh) * Dm ** (-0.5)), 'Wk': _w((lambda *s: torch.randn(*s, dtype=torch.bfloat16) * 1.6)(Dm, H, Dh) * Dm ** (-0.5)), 'Wv': _w((lambda *s: torch.randn(*s, dtype=torch.bfloat16) * 0.2)(Dm, H, Dh) * Dm ** (-0.5)), 'Wo': _w((lambda *s: torch.randn(*s, dtype=torch.bfloat16) * 0.2)(H, Dh, Dm) * (H * Dh) ** (-0.5)), 'seg_len': seg}
    _A_in = _A_setup()

    def _B_setup():
        B, S, D = (1, 2048, 576)
        Df = D // 2 + 1
        return {'x': _w((lambda *s: torch.randn(*s, dtype=torch.bfloat16) * 0.05)(B, S, D)), 'w_r': _w((lambda *s: torch.randn(*s, dtype=torch.bfloat16) * 0.4)(S, Df) * 0.02), 'w_i': _w((lambda *s: torch.randn(*s, dtype=torch.bfloat16) * 0.4)(S, Df) * 0.02)}
    _B_in = _B_setup()
    return {'A_x': _A_in['x'], 'A_mem0': _A_in['mem0'], 'A_Wq': _A_in['Wq'], 'A_Wk': _A_in['Wk'], 'A_Wv': _A_in['Wv'], 'A_Wo': _A_in['Wo'], 'A_seg_len': _A_in['seg_len'], 'B_x': _B_in['x'], 'B_w_r': _B_in['w_r'], 'B_w_i': _B_in['w_i']}

def reference(A_x, A_mem0, A_Wq, A_Wk, A_Wv, A_Wo, A_seg_len, B_x, B_w_r, B_w_i):

    def _A_ref(x, mem0, Wq, Wk, Wv, Wo, seg_len):
        B, S, Dm = x.shape
        H, Dh = (Wq.shape[1], Wq.shape[2])
        M = mem0.shape[1]
        scale = Dh ** (-0.5)
        n_seg = S // seg_len
        L = M + seg_len
        idx = torch.arange(L)
        mask = (idx[:, None] < M) | (idx[:, None] >= idx[None, :])
        mem = mem0
        outs = []
        for s in range(n_seg):
            xs = x[:, s * seg_len:(s + 1) * seg_len, :].clone()
            h = torch.concatenate([mem, xs], axis=1)
            q = torch.einsum('btd,dhe->bhte', h, Wq)
            k = torch.einsum('btd,dhe->bhte', h, Wk)
            v = torch.einsum('btd,dhe->bhte', h, Wv)
            scores = torch.einsum('bhqe,bhke->bhqk', q, k) * scale
            scores = torch.where(mask[None, None], scores, -1000000000.0)
            p = _softmax(scores, axis=-1)
            o = torch.einsum('bhqk,bhke->bhqe', p, v)
            o = torch.einsum('bhte,hed->btd', o, Wo)
            mem = o[:, :M, :].clone()
            outs.append(o[:, M:, :])
        return torch.concatenate(outs, axis=1)

    def _B_ref(x, w_r, w_i):
        B, S, D = x.shape
        X = (lambda x, axes=(-2, -1): torch.fft.rfft2(x.float(), dim=axes))(x, axes=(-2, -1))
        W = w_r + 1j * w_i
        X = X * W
        y = (lambda x, s, axes=(-2, -1): torch.fft.irfft2(x, s=s, dim=axes).to(torch.bfloat16))(X, (S, D), axes=(-2, -1))
        return y
    x = A_x
    x = x + _A_ref(_layernorm(x, axis=-1), A_mem0, A_Wq, A_Wk, A_Wv, A_Wo, A_seg_len)
    x = x + _B_ref(_layernorm(x, axis=-1), B_w_r, B_w_i)
    x = x + _A_ref(_layernorm(x, axis=-1), A_mem0, A_Wq, A_Wk, A_Wv, A_Wo, A_seg_len)
    x = x + _B_ref(_layernorm(x, axis=-1), B_w_r, B_w_i)
    return x
```

```python
import re

REG = re.compile(r'^(-|\|)?(abs\()?([vas])(?:(\d+)|\[(\d+):(\d+)\])\)?\|?$')
TRANS = ('v_exp_f32','v_log_f32','v_rcp_f32','v_rsq_f32','v_sqrt_f32','v_sin_f32','v_cos_f32','v_rcp_iflag_f32')

def regs_of(tok):
    tok = tok.strip()
    if tok in ('vcc',): return {('s','vcc_lo'),('s','vcc_hi')}
    if tok in ('vcc_lo','vcc_hi'): return {('s',tok)}
    if tok == 'exec': return {('s','exec_lo'),('s','exec_hi')}
    if tok in ('exec_lo','exec_hi'): return {('s',tok)}
    if tok == 'm0': return {('s','m0')}
    m = REG.match(tok)
    if not m: return set()
    f = m.group(3)
    if m.group(4) is not None: return {(f,int(m.group(4)))}
    return {(f,i) for i in range(int(m.group(5)), int(m.group(6))+1)}

def split_ops(s):
    out=[]; depth=0; cur=''
    for ch in s:
        if ch in '[(': depth+=1
        if ch in '])': depth-=1
        if ch==',' and depth==0:
            out.append(cur.strip()); cur=''
        else: cur+=ch
    if cur.strip(): out.append(cur.strip())
    return out

class Ins:
    def __init__(self, text):
        self.text = text
        t = text.split(';')[0].strip()
        parts = t.split(None,1)
        self.mn = mn = parts[0]
        rest = parts[1] if len(parts)>1 else ''
        ops = split_ops(rest)
        self.mods = ''
        if ops:
            l = ops[-1].split(None,1)
            ops[-1] = l[0]
            if len(l)>1: self.mods = l[1]
        self.ops = ops
        self.is_mfma = mn.startswith('v_mfma') or mn.startswith('v_smfmac')
        self.is_valu = mn.startswith('v_') and not self.is_mfma
        self.is_vmem = mn.startswith('buffer_') or mn.startswith('global_')
        self.is_ds = mn.startswith('ds_')
        self.is_salu = mn.startswith('s_')
        self.is_smem = mn.startswith('s_load') or mn.startswith('s_memtime') or mn.startswith('s_memrealtime') or mn.startswith('s_atomic')
        self.is_trans = any(mn.startswith(x) for x in TRANS)
        self.is_dpp = ('_dpp' in mn) or ('row_' in rest) or ('quad_perm' in rest)
        self.is_dot = mn.startswith('v_dot')
        self.is_perml = mn.startswith('v_permlane')
        self.is_rl = mn.startswith('v_readlane') or mn.startswith('v_readfirstlane')
        self.passes = 0
        self.rd=set(); self.wr=set(); self.srcC=set(); self.srcAB=set(); self.stdata=set(); self.lddst=set()
        R = [regs_of(o) for o in ops]
        if self.is_mfma:
            self.passes = 8 if '32x32' in mn else 4
            self.wr = set(R[0])
            if mn.startswith('v_smfmac'):
                self.srcAB = R[1]|R[2]|R[3]; self.srcC = set(R[0])
            else:
                self.srcAB = R[1]|R[2]; self.srcC = set(R[3])
            self.rd = self.srcAB|self.srcC
        elif self.is_vmem:
            lds = ' lds' in (' '+self.mods) or '_lds_' in mn
            if mn in ('buffer_wbl2','buffer_inv'):
                pass
            elif lds:
                for r in R: self.rd|=r
                self.rd|={('s','m0')}
            elif '_load_' in mn:
                self.wr=set(R[0]); self.lddst=set(R[0])
                for r in R[1:]: self.rd|=r
            elif '_store_' in mn:
                for r in R: self.rd|=r
                d = R[0] if mn.startswith('buffer_') else R[1]
                if 'x3' in mn or 'x4' in mn: self.stdata=set(d)
            elif '_atomic_' in mn:
                ret = 'sc0' in self.mods
                if mn.startswith('buffer_'):
                    for r in R: self.rd|=r
                    if ret: self.wr=set(R[0]); self.lddst=set(R[0])
                else:
                    if ret:
                        self.wr=set(R[0]); self.lddst=set(R[0])
                        for r in R[1:]: self.rd|=r
                    else:
                        for r in R: self.rd|=r
            else: raise ValueError(text)
        elif self.is_ds:
            if mn.startswith('ds_read') or mn.startswith('ds_bpermute') or mn.startswith('ds_permute') or mn.startswith('ds_swizzle'):
                self.wr=set(R[0]); self.lddst=set(R[0])
                for r in R[1:]: self.rd|=r
            else:
                for r in R: self.rd|=r
        elif self.is_valu:
            if mn.startswith('v_cmp'):
                self.wr=set(R[0])
                if mn.startswith('v_cmpx'): self.wr|=regs_of('exec')
                for r in R[1:]: self.rd|=r
            elif self.is_perml and 'swap' in mn:
                self.wr=R[0]|R[1]; self.rd=R[0]|R[1]
            elif mn.startswith('v_add_co') or mn.startswith('v_sub_co') or mn.startswith('v_addc_co') or mn.startswith('v_subb_co') or mn.startswith('v_mad_u64'):
                self.wr=R[0]|R[1]
                for r in R[2:]: self.rd|=r
            elif mn == 'v_nop':
                pass
            else:
                self.wr=set(R[0])
                for r in R[1:]: self.rd|=r
                if mn.startswith('v_fmac') or mn.startswith('v_pk_fmac') or mn.startswith('v_dot2c') or mn.startswith('v_writelane') or self.is_dpp:
                    self.rd|=R[0]
        elif self.is_salu:
            if mn.startswith('s_cmp') or mn.startswith('s_bitcmp'):
                for r in R: self.rd|=r
            elif mn.startswith('s_cbranch') or mn in ('s_branch','s_barrier','s_endpgm','s_nop','s_waitcnt','s_sleep','s_setprio'):
                pass
            elif 'saveexec' in mn:
                self.wr=R[0]|regs_of('exec'); self.rd=R[1]|regs_of('exec')
            else:
                if R: self.wr=set(R[0])
                for r in R[1:]: self.rd|=r
                if mn.startswith('s_addk') or mn.startswith('s_mulk') or mn.startswith('s_atomic'): self.rd|=R[0]
                if self.is_smem: self.lddst=set(R[0])
    def states(self):
        if self.mn=='s_nop': return int(self.ops[0],0)+1
        return 1

def legacy(i): return ('16x16x16' in i.mn) or ('32x32x8' in i.mn)
def vg(s): return {r for r in s if r[0] in 'va'}
def sg(s): return {r for r in s if r[0]=='s'}

def need(p, c):
    n=0
    if p.is_mfma:
        big = p.passes==8
        D = p.wr
        if c.is_mfma:
            if D & c.srcAB: n=max(n, 12 if big else 8)
            if D & c.srcC:
                if not (c.srcC==D and c.passes==p.passes and legacy(c)==legacy(p)): n=max(n, 10 if big else 6)
            elif D & c.wr:
                if c.passes!=p.passes or c.wr!=D: n=max(n, 10 if big else 6)
        elif c.is_valu:
            if D & (c.rd|c.wr): n=max(n, 12 if big else 8)
            if p.srcC & c.wr: n=max(n, 7 if big else 3)
        elif c.is_vmem or c.is_ds:
            if D & (c.rd|c.wr): n=max(n, 12 if big else 8)
    if p.is_valu:
        W = vg(p.wr); SW = sg(p.wr)
        if c.is_mfma and (W & c.rd): n=max(n,2)
        if c.is_valu:
            if p.is_trans and not c.is_trans and (W & c.rd): n=max(n,1)
            if c.is_dpp and (W & c.rd): n=max(n,2)
            if c.is_perml and (W & c.rd): n=max(n,2)
            if c.is_rl and (W & c.rd): n=max(n,1)
            if SW & c.rd: n=max(n, 4 if (c.is_rl or c.mn.startswith('v_writelane')) else 2)
            if p.is_dot and (W & (c.rd|c.wr)):
                if not (c.mn==p.mn and not (W & (regs_of(c.ops[1])|regs_of(c.ops[2])))): n=max(n,3)
            if ('op_sel' in p.mods and not p.mn.startswith('v_pk')) or 'sdwa' in p.mn or 'dst_sel' in p.mods:
                if W & (c.rd|c.wr): n=max(n,1)
        if p.is_dot and (c.is_vmem or c.is_ds or c.is_mfma) and (W & c.rd): n=max(n,3)
        if c.is_vmem and (SW & c.rd): n=max(n,5)
        if ('s','exec_lo') in SW:
            if c.is_dpp: n=max(n,5)
            if c.is_mfma or c.is_rl or c.is_perml: n=max(n,4)
    if p.stdata:
        if c.wr & p.stdata: n=max(n, 2 if c.is_valu else 1)
    if p.is_salu and ('s','m0') in p.wr and (c.is_vmem or c.is_ds) and ('s','m0') in c.rd: n=max(n,1)
    return n

class Asm:
    def __init__(self):
        self.items=[]
        self.uid=0
    def I(self, fmt, *a):
        for line in fmt.split('\n'):
            line=line.strip()
            if not line or line.startswith(';'): continue
            if line.endswith(':'): self.items.append(('l',line[:-1])); continue
            self.items.append(('i',Ins(line)))
    def L(self, name): self.items.append(('l',name))
    def raw(self, s): self.items.append(('r',s))
    def lab(self, p='L'):
        self.uid+=1; return f"{p}_{self.uid}"
    def pad(self):
        out=[]; win=[]
        for it in self.items:
            if it[0]=='r':
                out.append(it); win=[]; continue
            if it[0]=='l':
                out.append(it); continue
            c=it[1]
            req=0; d=0
            for p in reversed(win):
                r=need(p,c)-d
                if r>req: req=r
                d+=p.states()
                if d>=20: break
            while req>0:
                k=min(req,16)
                nop=Ins(f"s_nop {k-1}"); out.append(('i',nop)); win.append(nop); req-=k
            out.append(it); win.append(c)
            if c.mn in ('s_branch','s_endpgm'): win=[]
            win=win[-24:]
        self.items=out
    def check_branches(self):
        pos={n:i for i,(k,n) in enumerate(self.items) if k=='l'}
        errs=[]
        for i,(k,c) in enumerate(self.items):
            if k!='i' or not (c.mn.startswith('s_cbranch') or c.mn=='s_branch'): continue
            tgt=c.ops[0]
            if tgt not in pos: errs.append(f"unknown label {tgt}"); continue
            win=[]; j=i
            while j>=0 and len(win)<24:
                kk,x=self.items[j]
                if kk=='r': break
                if kk=='i':
                    if j!=i and x.mn in ('s_branch','s_endpgm'): break
                    win.insert(0,x)
                j-=1
            j=pos[tgt]; dd=0
            while j<len(self.items) and dd<20:
                kk,x=self.items[j]
                if kk=='r': break
                if kk=='i':
                    d=dd
                    for p in reversed(win):
                        if need(p,x)>d: errs.append(f"hazard across branch {c.text} : {p.text} -> {x.text} need {need(p,x)} have {d}")
                        d+=p.states()
                        if d>=20: break
                    dd+=x.states()
                    if x.mn in ('s_branch','s_endpgm'): break
                j+=1
        return errs
    def check_waits(self, start=0, end=None):
        vm=[]; lg=[]; errs=[]
        for k,c in self.items[start:end]:
            if k=='r': vm=[]; lg=[]; continue
            if k!='i': continue
            if c.mn=='s_waitcnt':
                t=c.text
                m=re.search(r'vmcnt\((\d+)\)',t)
                if m:
                    n=int(m.group(1)); vm=vm[len(vm)-n:] if n>0 and len(vm)>n else (vm if n>0 else [])
                m=re.search(r'lgkmcnt\((\d+)\)',t)
                if m:
                    n=int(m.group(1))
                    if n>0 and any(x.is_smem for x in lg): errs.append("counted lgkmcnt with SMEM outstanding: "+t)
                    lg=lg[len(lg)-n:] if n>0 and len(lg)>n else (lg if n>0 else [])
                continue
            touch=c.rd|c.wr
            for q in (vm,lg):
                for x in q:
                    if x.lddst & touch and not (c.lddst and 'nowarn' in c.text):
                        errs.append(f"pending load {x.text}  touched by {c.text}")
            if c.is_vmem and c.mn not in (): vm.append(c)
            if c.is_ds or c.is_smem: lg.append(c)
            if c.mn in ('s_branch','s_endpgm'): vm=[]; lg=[]
        return errs
    def text(self):
        o=[]
        for k,x in self.items:
            if k=='i': o.append('    '+x.text)
            elif k=='l': o.append(x+':')
            else: o.append(x)
        return '\n'.join(o)+'\n'

def vr(a,n=1): return f"v{a}" if n==1 else f"v[{a}:{a+n-1}]"
def ar(a,n=1): return f"a{a}" if n==1 else f"a[{a}:{a+n-1}]"
def sr(a,n=1): return f"s{a}" if n==1 else f"s[{a}:{a+n-1}]"
```

```python
from common import *
XF_TH=18432+64
XF_SIZE=2*XF_TH

def xlane_sum(a, x, t, op="v_add_f32"):
    a.I(f"""{op}_dpp v{x}, v{x}, v{x} row_ror:8 row_mask:0xf bank_mask:0xf
    v_mov_b32 v{t}, v{x}
    v_permlane16_swap_b32 v{x}, v{t}
    {op} v{x}, v{x}, v{t}
    v_mov_b32 v{t}, v{x}
    v_permlane32_swap_b32 v{x}, v{t}
    {op} v{x}, v{x}, v{t}""")

def rbf(a, x):
    a.I(f"""v_cvt_pk_bf16_f32 v{x}, v{x}, v{x}
    v_and_b32 v{x}, 0xffff0000, v{x}""")

def ln_addr(a, vw, vlane, vgoff, vloff, t, ldsbase=0):
    a.I(f"""v_and_b32 v{t}, 7, v{vlane}            ; rho
    v_lshl_add_u32 v{vgoff}, {vw}, 3, v{t}
    v_mul_u32_u24 v{vgoff}, 1152, v{vgoff}
    v_lshrrev_b32 v{t+1}, 3, v{vlane}              ; c
    v_lshl_add_u32 v{vgoff}, v{t+1}, 4, v{vgoff}
    v_lshrrev_b32 v{vloff}, 2, v{t}                ; theta
    v_mul_u32_u24 v{vloff}, {XF_TH}, v{vloff}
    v_lshl_add_u32 v{vloff}, v{t+1}, 8, v{vloff}   ; c*256 = (c>>2)*1024+(c&3)*256
    v_and_b32 v{t}, 3, v{t}
    v_lshl_add_u32 v{t}, {vw}, 2, v{t}             ; n
    v_lshl_add_u32 v{vloff}, v{t}, 4, v{vloff}""")
    if ldsbase: a.I(f"v_add_u32 v{vloff}, {ldsbase}, v{vloff}")

def ln_load(a, X, vgoff, srdx, soff, flags=""):
    for j in range(9):
        a.I(f"buffer_load_dwordx4 v[{X+4*j}:{X+4*j+3}], v{vgoff}, s[{srdx}:{srdx+3}], {soff} offen offset:{128*j} {flags}")

def ln_compute(a, X, T, vloff, sA, sB):
    assert T%2==0
    a.I(f"""s_mov_b32 s{sA}, 0x3f803f80
    s_mov_b32 s{sB}, 0x3ae38e39
    v_mov_b32 v{T}, 0
    v_mov_b32 v{T+1}, 0""")
    for i in range(36):
        a.I(f"v_dot2_f32_bf16 v{T+(i&1)}, v{X+i}, s{sA}, v{T+(i&1)}")
    a.I(f"v_add_f32 v{T}, v{T}, v{T+1}")
    xlane_sum(a,T,T+1)
    a.I(f"""v_mul_f32 v{T}, s{sB}, v{T}
    v_mov_b32 v{T+2}, v{T}""")
    rbf(a,T+2)
    a.I(f"""v_mov_b32 v{T+3}, v{T+2}
    v_sub_f32 v{T}, v{T}, v{T+2}
    v_mov_b32 v{T+4}, 0
    v_mov_b32 v{T+5}, 0""")
    for i in range(36):
        u=T+6+2*(i&1)
        a.I(f"""v_lshlrev_b32 v{u}, 16, v{X+i}
        v_and_b32 v{u+1}, 0xffff0000, v{X+i}
        v_pk_add_f32 v[{u}:{u+1}], v[{u}:{u+1}], v[{T+2}:{T+3}] neg_lo:[0,1] neg_hi:[0,1]
        v_pk_fma_f32 v[{T+4}:{T+5}], v[{u}:{u+1}], v[{u}:{u+1}], v[{T+4}:{T+5}]
        v_cvt_pk_bf16_f32 v{X+i}, v{u}, v{u+1}""")
    a.I(f"v_add_f32 v{T+4}, v{T+4}, v{T+5}")
    xlane_sum(a,T+4,T+5)
    a.I(f"""v_mul_f32 v{T+4}, s{sB}, v{T+4}
    v_fma_f32 v{T+4}, -v{T}, v{T}, v{T+4}
    v_max_f32 v{T+4}, 0, v{T+4}""")
    rbf(a,T+4)
    a.I(f"v_add_f32 v{T+4}, 0x3727c5ac, v{T+4}")
    rbf(a,T+4)
    a.I(f"v_sqrt_f32 v{T+4}, v{T+4}")
    rbf(a,T+4)
    a.I(f"""v_rcp_f32 v{T+4}, v{T+4}
    s_nop 0
    v_mov_b32 v{T+5}, v{T+4}""")
    for j in range(9):
        for k in range(4):
            i=4*j+k
            u=T+6+2*(i&1)
            a.I(f"""v_lshlrev_b32 v{u}, 16, v{X+i}
            v_and_b32 v{u+1}, 0xffff0000, v{X+i}
            v_pk_mul_f32 v[{u}:{u+1}], v[{u}:{u+1}], v[{T+4}:{T+5}]
            v_cvt_pk_bf16_f32 v{X+i}, v{u}, v{u+1}""")
        a.I(f"ds_write_b128 v{vloff}, v[{X+4*j}:{X+4*j+3}] offset:{2048*j}")

def load_54(a, vl16, srdw, sb):
    a.I(f"""s_add_u32 s{sb+1}, s{sb}, 18432
    s_add_u32 s{sb+2}, s{sb}, 36864""")
    for ks in range(18):
        for tau in range(3):
            r=(ks*3+tau)*4
            a.I(f"buffer_load_dwordx4 a[{r}:{r+3}], v{vl16}, s[{srdw}:{srdw+3}], s{sb+tau} offen offset:{(ks&3)*1024}")
        if ks&3==3:
            for tau in range(3): a.I(f"s_add_u32 s{sb+tau}, s{sb+tau}, 4096")

def seg_cg(a):
    sdiv(a,3,2,3)
    a.I("""s_mul_i32 s4, s3, 3
    s_sub_u32 s4, s2, s4""")

def gen_l4(a, name, xsrc):
    kernel_begin(a,name)
    E=name+"_end"
    a.I(f"""s_cmp_ge_u32 s2, 192
    s_cbranch_scc1 {E}
    s_load_dwordx2 s[16:17], s[0:1], {KA['ws']}
    v_lshrrev_b32 v1, 6, v0
    v_and_b32 v0, 63, v0
    v_readfirstlane_b32 s5, v1""")
    seg_cg(a)
    ln_addr(a,"v1",0,2,3,4)
    a.I("v_lshlrev_b32 v6, 4, v0\ns_waitcnt lgkmcnt(0)")
    srd(a,20,16,WS_SIZE)
    a.I(f"""s_mul_i32 s6, s3, {32*1152}
    s_add_u32 s6, s6, {xsrc}""")
    X=16
    ln_load(a,X,2,20,"s6")
    a.I(f"""s_lshl_b32 s7, s4, 2
    s_add_u32 s7, s7, s5
    s_mul_i32 s8, s7, {54*1024}
    s_add_u32 s8, s8, {FIMG}""")
    load_54(a,6,20,8)
    a.I("s_waitcnt vmcnt(54)")
    ln_compute(a,X,52,3,12,13)
    a.I("s_waitcnt lgkmcnt(0)\ns_barrier")
    ACC=64; FR=16
    def rd(ks):
        for th in range(2):
            r=FR+((ks%4)*2+th)*4
            a.I(f"ds_read_b128 v[{r}:{r+3}], v6 offset:{th*XF_TH+ks*1024}")
    for ks in range(3): rd(ks)
    for ks in range(18):
        if ks+3<18: rd(ks+3)
        out=min(3,17-ks)*2
        a.I(f"s_waitcnt vmcnt({(17-ks)*3}) lgkmcnt({out})")
        for th in range(2):
            for tau in range(3):
                d=ACC+(th*3+tau)*4; r=FR+((ks%4)*2+th)*4; w=(ks*3+tau)*4
                c="0" if ks==0 else f"v[{d}:{d+3}]"
                a.I(f"v_mfma_f32_16x16x32_bf16 v[{d}:{d+3}], v[{r}:{r+3}], a[{w}:{w+3}], {c}")
    a.I(f"""v_and_b32 v2, 15, v0
    v_lshrrev_b32 v3, 4, v0
    v_lshlrev_b32 v2, 12, v2
    v_lshl_add_u32 v2, v3, 4, v2
    s_mul_i32 s8, s7, {48*4096}
    s_lshl_b32 s9, s3, 6
    s_add_u32 s8, s8, s9
    s_add_u32 s8, s8, {ZF}""")
    for tau in range(3):
        o=16+4*tau
        for th in range(2):
            d=ACC+(th*3+tau)*4
            a.I(f"""v_cvt_pk_bf16_f32 v{o+2*th}, v{d}, v{d+1}
            v_cvt_pk_bf16_f32 v{o+2*th+1}, v{d+2}, v{d+3}""")
        a.I(f"buffer_store_dwordx4 v[{o}:{o+3}], v2, s[20:23], s8 offen")
        if tau<2: a.I(f"s_add_u32 s8, s8, {16*4096}")
    a.L(E)
    a.I("s_endpgm")
    return (name, f"; @launch kernel={name} grid=(192,1,1) block=(256,1,1) lds={XF_SIZE}", kernel_desc(name, 88+216, 32, accum=88))

def gen_l6(a, name, xres, dst):
    kernel_begin(a,name)
    E=name+"_end"
    a.I(f"""s_cmp_ge_u32 s2, 192
    s_cbranch_scc1 {E}
    s_load_dwordx2 s[16:17], s[0:1], {KA['ws']}
    s_load_dwordx2 s[18:19], s[0:1], {KA['out']}
    v_lshrrev_b32 v1, 6, v0
    v_and_b32 v0, 63, v0
    v_readfirstlane_b32 s5, v1""")
    seg_cg(a)
    a.I(f"""v_lshlrev_b32 v6, 4, v0
    v_lshrrev_b32 v2, 2, v0
    v_lshlrev_b32 v2, 12, v2
    v_and_b32 v3, 3, v0
    v_lshl_add_u32 v2, v3, 4, v2
    s_waitcnt lgkmcnt(0)""")
    srd(a,20,16,WS_SIZE)
    srd(a,24,18,XBYTES)
    a.I(f"""s_mul_i32 s6, s5, {9*16*4096}
    s_lshl_b32 s9, s3, 6
    s_add_u32 s6, s6, s9
    s_add_u32 s6, s6, {ZO}
    s_mul_i32 s9, s5, 9216""")
    for j in range(9):
        a.I(f"""s_mov_b32 m0, s9
        buffer_load_dwordx4 v2, s[20:23], s6 offen lds""")
        if j<8: a.I(f"s_add_u32 s6, s6, {16*4096}\ns_add_u32 s9, s9, 1024")
    a.I(f"""s_lshl_b32 s7, s4, 2
    s_add_u32 s7, s7, s5
    s_mul_i32 s8, s7, {54*1024}
    s_add_u32 s8, s8, {FINV}""")
    load_54(a,6,20,8)
    a.I(f"""v_lshrrev_b32 v4, 4, v0
    v_bfe_u32 v5, v0, 2, 2
    v_lshl_add_u32 v5, v4, 3, v5
    v_lshlrev_b32 v5, 6, v5
    v_lshl_add_u32 v5, v3, 3, v5
    v_and_b32 v7, 15, v0
    v_mul_u32_u24 v7, 1152, v7
    v_mul_u32_u24 v8, 24, v4
    v_add_u32 v7, v7, v8
    s_mul_i32 s10, s3, {32*1152}
    s_mul_i32 s11, s7, 96
    s_add_u32 s10, s10, s11
    s_add_u32 s11, s10, {16*1152}
    s_add_u32 s12, s10, {xres}
    s_add_u32 s13, s11, {xres}
    s_waitcnt vmcnt(54)
    s_barrier""")
    ACC=64; FR=16
    def rd(ks):
        for th in range(2):
            r=FR+((ks%4)*2+th)*4
            for rho in range(2):
                a.I(f"ds_read_b64_tr_b16 v[{r+2*rho}:{r+2*rho+1}], v5 offset:{ks*2048+rho*256+th*32}")
    for ks in range(3): rd(ks)
    for ks in range(18):
        if ks+3<18: rd(ks+3)
        out=min(3,17-ks)*4
        extra=0
        if ks==9:
            for th in range(2):
                a.I(f"""buffer_load_dwordx4 v[{48+6*th}:{51+6*th}], v7, s[20:23], s{12+th} offen
                buffer_load_dwordx2 v[{52+6*th}:{53+6*th}], v7, s[20:23], s{12+th} offen offset:16""")
        if ks>=9: extra=4
        a.I(f"s_waitcnt vmcnt({(17-ks)*3+extra}) lgkmcnt({out})")
        for th in range(2):
            for tau in range(3):
                d=ACC+(th*3+tau)*4; r=FR+((ks%4)*2+th)*4; w=(ks*3+tau)*4
                c="0" if ks==0 else f"v[{d}:{d+3}]"
                a.I(f"v_mfma_f32_16x16x32_bf16 v[{d}:{d+3}], a[{w}:{w+3}], v[{r}:{r+3}], {c}")
    a.I("s_waitcnt vmcnt(0)")
    if dst is not None:
        a.I(f"s_add_u32 s10, s10, {dst}\ns_add_u32 s11, s11, {dst}")
    so = 20 if dst is not None else 24
    for th in range(2):
        for p in range(6):
            x=48+6*th+p; d=ACC+th*12+2*p
            a.I(f"""v_lshlrev_b32 v10, 16, v{x}
            v_and_b32 v11, 0xffff0000, v{x}
            v_pk_add_f32 v[10:11], v[10:11], v[{d}:{d+1}]
            v_cvt_pk_bf16_f32 v{x}, v10, v11""")
        a.I(f"""buffer_store_dwordx4 v[{48+6*th}:{51+6*th}], v7, s[{so}:{so+3}], s{10+th} offen
        buffer_store_dwordx2 v[{52+6*th}:{53+6*th}], v7, s[{so}:{so+3}], s{10+th} offen offset:16""")
    a.L(E)
    a.I("s_endpgm")
    return (name, f"; @launch kernel={name} grid=(192,1,1) block=(256,1,1) lds=36864", kernel_desc(name, 88+216, 32, accum=88))

def gen_l5(a, name):
    kernel_begin(a,name)
    E=name+"_end"
    ACC=64; PRE=128; PIM=144; PNG=160; TW=176; W=0; T=40
    C32=0; S32=8; NS32=16; C64=24; S64=56
    a.I(f"""s_cmp_ge_u32 s2, 289
    s_cbranch_scc1 {E}
    s_load_dwordx2 s[16:17], s[0:1], {KA['ws']}
    v_lshlrev_b32 v32, 4, v0
    v_lshrrev_b32 v33, 5, v0
    v_bfe_u32 v34, v0, 2, 2
    v_lshl_add_u32 v33, v33, 2, v34
    v_lshlrev_b32 v33, 7, v33
    v_and_b32 v34, 1, v0
    v_lshl_add_u32 v33, v34, 6, v33
    v_bfe_u32 v34, v0, 4, 1
    v_lshl_add_u32 v33, v34, 4, v33
    v_bfe_u32 v34, v0, 1, 1
    v_lshl_add_u32 v33, v34, 3, v33
    v_and_b32 v35, 31, v0
    v_lshlrev_b32 v35, 7, v35
    v_lshrrev_b32 v34, 5, v0
    v_lshl_add_u32 v35, v34, 6, v35
    s_lshl_b32 s4, s2, 12
    s_add_u32 s5, s4, {288*4096}
    s_cmp_eq_u32 s2, 0
    s_cselect_b32 s6, 1, 0
    s_cmp_eq_u32 s2, 288
    s_cselect_b32 s6, 1, s6
    s_waitcnt lgkmcnt(0)""")
    srd(a,20,16,WS_SIZE)
    a.I(f"""s_add_u32 s7, s4, {ZF}
    s_mov_b32 m0, 0""")
    for j in range(4): a.I(f"buffer_load_dwordx4 v32, s[20:23], s7 offen offset:{1024*j} lds")
    a.I(f"""s_cmp_eq_u32 s6, 1
    s_cbranch_scc1 {name}_zim
    s_add_u32 s7, s5, {ZF}
    s_mov_b32 m0, 4096""")
    for j in range(4): a.I(f"buffer_load_dwordx4 v32, s[20:23], s7 offen offset:{1024*j} lds")
    a.I(f"s_branch {name}_c")
    a.L(name+"_zim")
    for i in range(4): a.I(f"v_mov_b32 v{T+i}, 0")
    for j in range(4): a.I(f"ds_write_b128 v32, v[{T}:{T+3}] offset:{4096+1024*j}")
    a.L(name+"_c")
    a.I(f"s_mov_b32 s8, {CST}")
    for f in range(22):
        a.I(f"buffer_load_dwordx4 a[{4*f}:{4*f+3}], v32, s[20:23], s8 offen offset:{(f&3)*1024}")
        if f&3==3: a.I("s_add_u32 s8, s8, 4096")
        if f==5:
            a.I(f"s_mov_b32 s9, {TW1}")
            for u in range(16):
                a.I(f"buffer_load_dwordx4 v[{TW+4*u}:{TW+4*u+3}], v32, s[20:23], s9 offen offset:{(u&3)*1024}")
                if u&3==3: a.I("s_add_u32 s9, s9, 4096")
    a.I(f"""s_lshl_b32 s9, s2, 13
    s_add_u32 s9, s9, {WFI}""")
    for q in range(8):
        a.I(f"buffer_load_dwordx4 v[{W+4*q}:{W+4*q+3}], v32, s[20:23], s9 offen offset:{(q&3)*1024}")
        if q==3: a.I("s_add_u32 s9, s9, 4096")
    a.I("s_waitcnt vmcnt(46) lgkmcnt(0)")
    XA=128
    for pl in range(2):
        for th in range(2):
            for kp in range(2):
                r=XA+((pl*2+th)*2+kp)*4
                for rho in range(2):
                    a.I(f"ds_read_b64_tr_b16 v[{r+2*rho}:{r+2*rho+1}], v33 offset:{pl*4096+kp*2048+rho*1024+th*32}")
    a.I("s_waitcnt vmcnt(40) lgkmcnt(0)")
    def mm(d, A, B, first):
        c="0" if first else f"v[{d}:{d+15}]"
        a.I(f"v_mfma_f32_32x32x16_bf16 v[{d}:{d+15}], {A}, {B}, {c}")
    RE=lambda t: ACC+16*t
    IM=lambda t: ACC+32+16*t
    xa=lambda pl,th,kp: vr(XA+((pl*2+th)*2+kp)*4,4)
    for th in range(2):
        for kp in range(2):
            mm(RE(th), xa(0,th,kp), ar(C32+4*kp,4), kp==0)
            mm(IM(th), xa(1,th,kp), ar(C32+4*kp,4), kp==0)
        for kp in range(2):
            mm(RE(th), xa(1,th,kp), ar(S32+4*kp,4), False)
            mm(IM(th), xa(0,th,kp), ar(NS32+4*kp,4), False)
    a.I("s_waitcnt vmcnt(24)")
    def cmul(re, im, c, s, sign, i, outs):
        t=T+4*(i&1)
        n1="" if sign>0 else " neg_lo:[1,0,0] neg_hi:[1,0,0]"
        n2=" neg_lo:[1,0,0] neg_hi:[1,0,0]" if sign>0 else ""
        a.I(f"""v_pk_mul_f32 v[{t}:{t+1}], v[{re}:{re+1}], v[{c}:{c+1}]
        v_pk_mul_f32 v[{t+2}:{t+3}], v[{im}:{im+1}], v[{c}:{c+1}]
        v_pk_fma_f32 v[{t}:{t+1}], v[{im}:{im+1}], v[{s}:{s+1}], v[{t}:{t+1}]{n1}
        v_pk_fma_f32 v[{t+2}:{t+3}], v[{re}:{re+1}], v[{s}:{s+1}], v[{t+2}:{t+3}]{n2}""")
        for dst,which,neg in outs:
            b=t+2*which; m="-" if neg else ""
            a.I(f"v_cvt_pk_bf16_f32 v{dst}, {m}v{b}, {m}v{b+1}")
    for th in range(2):
        for p in range(8):
            u=8*th+p
            cmul(RE(th)+2*p, IM(th)+2*p, TW+4*u, TW+4*u+2, +1, u, [(PRE+u,0,False),(PIM+u,1,False),(PNG+u,0,True)])
    a.I(f"s_mov_b32 s9, {TW2}")
    for u in range(16):
        a.I(f"buffer_load_dwordx4 v[{TW+4*u}:{TW+4*u+3}], v32, s[20:23], s9 offen offset:{(u&3)*1024}")
        if u&3==3: a.I("s_add_u32 s9, s9, 4096")
    a.I("s_waitcnt vmcnt(24)")
    for ph in range(2):
        for ks in range(4):
            mm(RE(ph), ar(C64+(ph*4+ks)*4,4), vr(PRE+4*ks,4), ks==0)
            mm(IM(ph), ar(C64+(ph*4+ks)*4,4), vr(PIM+4*ks,4), ks==0)
        for ks in range(4):
            mm(RE(ph), ar(S64+(ph*4+ks)*4,4), vr(PIM+4*ks,4), False)
            mm(IM(ph), ar(S64+(ph*4+ks)*4,4), vr(PNG+4*ks,4), False)
    a.I("s_waitcnt vmcnt(16)")
    for ph in range(2):
        for p in range(8):
            u=8*ph+p; w=W+2*u; q=48+4*(u&1)
            a.I(f"""v_lshlrev_b32 v{q}, 16, v{w}
            v_lshlrev_b32 v{q+1}, 16, v{w+1}
            v_and_b32 v{q+2}, 0xffff0000, v{w}
            v_and_b32 v{q+3}, 0xffff0000, v{w+1}""")
            cmul(RE(ph)+2*p, IM(ph)+2*p, q, q+2, -1, u, [(PRE+u,0,False),(PIM+u,1,False),(PNG+u,1,True)])
    for th in range(2):
        for ks in range(4):
            mm(RE(th), vr(PRE+4*ks,4), ar(C64+(th*4+ks)*4,4), ks==0)
            mm(IM(th), vr(PIM+4*ks,4), ar(C64+(th*4+ks)*4,4), ks==0)
        for ks in range(4):
            mm(RE(th), vr(PNG+4*ks,4), ar(S64+(th*4+ks)*4,4), False)
            mm(IM(th), vr(PRE+4*ks,4), ar(S64+(th*4+ks)*4,4), False)
    a.I("s_waitcnt vmcnt(0)")
    for th in range(2):
        for p in range(8):
            u=8*th+p
            cmul(RE(th)+2*p, IM(th)+2*p, TW+4*u, TW+4*u+2, -1, u, [(PRE+u,0,False),(PIM+u,1,False)])
    for th in range(2):
        for rho in range(2):
            mm(RE(th), vr(PRE+8*th+4*rho,4), ar(C32+4*rho,4), rho==0)
            mm(IM(th), vr(PIM+8*th+4*rho,4), ar(C32+4*rho,4), rho==0)
        for rho in range(2):
            mm(RE(th), vr(PIM+8*th+4*rho,4), ar(NS32+4*rho,4), False)
            mm(IM(th), vr(PRE+8*th+4*rho,4), ar(S32+4*rho,4), False)
    a.I(f"""s_add_u32 s4, s4, {ZO}
    s_add_u32 s5, s5, {ZO}""")
    for i in range(16): a.I(f"v_cvt_pk_bf16_f32 v{i}, v{ACC+2*i}, v{ACC+2*i+1}")
    for i in range(4): a.I(f"buffer_store_dwordx4 v[{4*i}:{4*i+3}], v35, s[20:23], s4 offen offset:{16*i}")
    a.I(f"""s_cmp_eq_u32 s6, 1
    s_cbranch_scc1 {E}""")
    for i in range(16): a.I(f"v_cvt_pk_bf16_f32 v{16+i}, v{ACC+32+2*i}, v{ACC+32+2*i+1}")
    for i in range(4): a.I(f"buffer_store_dwordx4 v[{16+4*i}:{19+4*i}], v35, s[20:23], s5 offen offset:{16*i}")
    a.L(E)
    a.I("s_endpgm")
    return (name, f"; @launch kernel={name} grid=(289,1,1) block=(64,1,1) lds=8192", kernel_desc(name, 240+88, 32, accum=240))
```

```python
import sys
from common import *
def build(kernels, order, path):
    a=Asm()
    info={}
    for g in kernels:
        r=g(a)
        info[r[0]]=r
    a.pad()
    errs=a.check_branches()+a.check_waits()
    for e in errs: print("CHECK:",e)
    hdr=open('interleave_layers__memory_aug_recurrent_mem_tr__spectral_gfnet__prompt.s.ref').read().split('; Override launch')[0]
    txt=hdr+'\n'.join(info[n][1] for n in order)+'\n.amdgcn_target "amdgcn-amd-amdhsa--gfx950"\n'+a.text()+'\n'.join(r[2] for r in info.values())+'\n'
    open(path,'w').write(txt)
    return errs
if __name__=="__main__":
    build([prep.gen_prep],["prep_kernel"],"k.s")
```

```python
from la import *
MEML=0; TQ=9216; TK=11264; OL=13312; SPARE=15360; KVL=16384; WLB=49152; WLW=28672
PSLOT=72*4096
L16=0; IDX=1; KVR=2; WL=3; PK1=4; PK2=5; PK3=6; PK4=7
WIN=8; AQ=24; AK=32; AV=40; STG=48
W=lambda i: WIN+4*i

def units():
    U=[]
    for k in range(9):
        for nm in (0,1,2,3)+((4,5) if k<=4 else ()): U.append(('p',k,nm))
    D=[('p',k,nm) for k in range(5,9) for nm in (4,5)]
    O=[('o',t,kp) for t in range(9) for kp in range(2)]
    return U,D,O
U1,UD,UO=units()
LDSU=[U1[3*j+1] for j in range(14)]
L2U=UO[:3]
REGU=[u for u in U1+UD+UO if u not in LDSU and u not in L2U]
assert len(REGU)==55
def regof(u):
    i=REGU.index(u)
    return ('a',8*i) if i<32 else ('v',72+8*(i-32))
def rtxt(u,half=None):
    f,b=regof(u)
    if half is None: return f"{f}[{b}:{b+7}]"
    return f"{f}[{b+4*half}:{b+4*half+3}]"
def uoff(u):
    if u[0]=='p':
        _,k,nm=u
        return (nm>>1)*147456+(nm&1)*18432+k*2048
    _,t,kp=u
    return t*4096+kp*2048

def chain_setup(a, P, layer):
    flg=FLAGS+layer*FLAGL
    a.L(P+"A")
    a.I(f"""v_and_b32 v10, 15, v0
    v_lshrrev_b32 v11, 4, v0
    v_mov_b32 v{IDX}, 0x4444
    v_mov_b32 v12, 0xeeee
    v_and_b32 v13, 2, v0
    v_cmp_eq_u32 vcc, 2, v13
    v_cndmask_b32 v{IDX}, v{IDX}, v12, vcc
    s_lshl_b32 s8, s5, 9
    v_lshl_add_u32 v12, v10, 5, s8
    v_lshl_add_u32 v13, v11, 2, v12
    v_add_u32 v13, {TQ}, v13
    v_lshl_add_u32 v14, v11, 3, v12
    v_add_u32 v14, {TK}, v14
    v_lshl_or_b32 v{PK1}, v14, 16, v13
    v_lshlrev_b32 v13, 7, v11
    v_bfe_u32 v12, v0, 2, 1
    v_lshl_add_u32 v13, v12, 5, v13
    v_bfe_u32 v12, v0, 3, 1
    v_lshl_add_u32 v13, v12, 4, v13
    v_and_b32 v12, 1, v0
    v_lshl_add_u32 v13, v12, 3, v13
    v_add_u32 v13, {TQ}, v13
    v_lshlrev_b32 v14, 8, v11
    v_bfe_u32 v12, v0, 2, 2
    v_lshl_add_u32 v14, v12, 5, v14
    v_and_b32 v12, 3, v0
    v_lshl_add_u32 v14, v12, 3, v14
    v_add_u32 v14, {TK}, v14
    v_lshl_or_b32 v{PK2}, v14, 16, v13
    v_lshrrev_b32 v12, 1, v11
    v_lshlrev_b32 v13, 4, v12
    v_bfe_u32 v12, v0, 1, 2
    v_lshl_add_u32 v13, v12, 2, v13
    v_and_b32 v12, 1, v11
    v_lshl_add_u32 v13, v12, 1, v13
    v_and_b32 v12, 1, v0
    v_add_u32 v13, v13, v12
    v_lshl_add_u32 v13, v13, 4, s8
    v_add_u32 v13, {OL}, v13
    ; unit u
    s_lshl_b32 s9, s4, 1
    s_add_u32 s9, s9, s5
    s_add_u32 s10, s4, 64
    s_cmp_lt_u32 s5, 2
    s_cselect_b32 s40, s9, s10           ; u
    s_cselect_b32 s41, 1, 0
    s_cmp_eq_u32 s5, 2
    s_cselect_b32 s9, 1, 0
    s_cmp_lt_u32 s4, 8
    s_cselect_b32 s10, 1, 0
    s_and_b32 s9, s9, s10
    s_or_b32 s41, s41, s9
    s_min_u32 s40, s40, 71""")
    sdiv(a,42,40,18)
    a.I(f"""s_mul_i32 s9, s42, 18
    s_sub_u32 s43, s40, s9               ; lambda
    s_mul_i32 s44, s42, 144
    s_cmp_ge_u32 s43, 16
    s_cbranch_scc1 {P}A_u8
    s_and_b32 s9, s43, 1
    s_lshl_b32 s9, s9, 6
    s_add_u32 s44, s44, s9
    s_lshr_b32 s9, s43, 3
    s_lshl_b32 s9, s9, 2
    s_add_u32 s44, s44, s9
    v_lshrrev_b32 v12, 1, v10
    v_lshl_add_u32 v14, v12, 3, s44
    v_and_b32 v12, 1, v10
    v_lshl_add_u32 v14, v12, 1, v14      ; c
    s_bfe_u32 s9, s43, 0x20001
    v_mov_b32 v15, s9                    ; g_src
    s_branch {P}A_uj""")
    a.L(P+"A_u8")
    a.I(f"""s_add_u32 s44, s44, 128
    v_and_b32 v12, 7, v10
    v_lshl_add_u32 v14, v12, 1, s44
    s_sub_u32 s9, s43, 16
    s_lshl_b32 s9, s9, 1
    v_lshrrev_b32 v15, 3, v10
    v_add_u32 v15, s9, v15""")
    a.L(P+"A_uj")
    a.I(f"""v_lshrrev_b32 v16, 4, v14
    v_lshlrev_b32 v16, 8, v16            ; (c>>4)*256
    v_lshl_add_u32 v16, v15, 6, v16
    v_bfe_u32 v12, v14, 1, 1
    v_lshl_add_u32 v16, v12, 5, v16
    v_and_b32 v12, 1, v11
    v_lshl_add_u32 v16, v12, 4, v16
    v_bfe_u32 v12, v14, 2, 2
    v_lshl_add_u32 v16, v12, 2, v16
    v_lshl_or_b32 v{PK3}, v16, 16, v13
    v_lshrrev_b32 v12, 3, v0
    v_lshlrev_b32 v13, 12, v12
    v_and_b32 v12, 7, v0
    v_lshl_add_u32 v13, v12, 4, v13
    v_lshrrev_b32 v12, 5, v0
    v_lshlrev_b32 v14, 12, v12
    v_and_b32 v12, 31, v0
    v_lshl_add_u32 v14, v12, 2, v14
    v_lshl_or_b32 v{PK4}, v14, 16, v13
    v_cmp_eq_u32 s[46:47], 0, v10
    v_cmp_eq_u32 s[48:49], 4, v10
    v_cmp_eq_u32 s[50:51], 1, v10
    v_cmp_eq_u32 s[52:53], 5, v10
    v_lshrrev_b32 v12, 2, v10
    v_lshlrev_b32 v12, 1, v12
    v_and_b32 v13, 1, v0
    v_add_u32 v12, v12, v13
    v_mul_u32_u24 v17, 1152, v12
    v_lshl_add_u32 v17, v11, 5, v17
    v_bfe_u32 v12, v0, 1, 1
    v_lshl_add_u32 v17, v12, 2, v17
    v_lshlrev_b32 v{L16}, 4, v0
    v_add_u32 v{KVR}, {KVL}, v{L16}
    s_mul_i32 s9, s5, {WLW}
    s_add_u32 s45, s9, {WLB}
    v_add_u32 v{WL}, s45, v{L16}
    s_load_dwordx2 s[8:9], s[0:1], {KA['mem0']}
    s_waitcnt lgkmcnt(0)""")
    srd(a,12,8,9216)
    for k in range(9):
        for j in range(4):
            a.I(f"buffer_load_dword v{24+4*k+j}, v17, s[12:15], 0 offen offset:{128*k+8*j}")
    a.I(f"""s_mul_i32 s30, s4, {3*147456}
    s_mul_i32 s9, s5, 36864
    s_add_u32 s30, s30, s9
    s_add_u32 s30, s30, {WIMG}
    s_mul_i32 s31, s4, 147456
    s_add_u32 s31, s31, s9
    s_add_u32 s31, s31, {WOC}
    s_mul_i32 s32, s5, {18*4096}
    s_lshl_b32 s9, s4, 7
    s_add_u32 s32, s32, s9
    s_add_u32 s32, s32, {PART}
    s_lshl_b32 s33, s40, 12
    s_add_u32 s33, s33, {PART}
    s_mul_i32 s34, s5, 2304
    s_mov_b32 s35, {SCL}
    s_lshl_b32 s36, s5, 11
    s_add_u32 s36, s36, 8192
    s_mov_b32 s54, 0x00ff00ff
    s_mov_b32 s55, 0x00ff00ff
    s_waitcnt vmcnt(0)""")
    for k in range(9):
        a.I(f"ds_write_b128 v{L16}, v[{24+4*k}:{27+4*k}] offset:{MEML+1024*k}")
    order=U1+UD+UO
    for u in order:
        if u in L2U: continue
        base=30 if u[0]=='p' else 31
        a.I(f"s_add_u32 s9, s{base}, {uoff(u)}")
        if u in LDSU:
            j=LDSU.index(u)
            a.I(f"""s_add_u32 m0, s45, {j*2048}
            s_nop 0
            buffer_load_dwordx4 v{L16}, s[20:23], s9 offen lds
            buffer_load_dwordx4 v{L16}, s[20:23], s9 offen offset:1024 lds""")
        else:
            a.I(f"""buffer_load_dwordx4 {rtxt(u,0)}, v{L16}, s[20:23], s9 offen
            buffer_load_dwordx4 {rtxt(u,1)}, v{L16}, s[20:23], s9 offen offset:1024""")
    a.I(f"""v_mov_b32 v8, -1
    v_mov_b32 v9, -1
    v_mov_b32 v10, -1
    v_mov_b32 v11, -1
    v_and_b32 v12, 0xffff, v{PK4}
    v_lshrrev_b32 v13, 16, v{PK4}""")
    for sl in range(2):
        a.I(f"""s_add_u32 s9, s32, {sl*PSLOT}
        buffer_store_dwordx4 v[8:11], v12, s[20:23], s9 offen sc1
        s_add_u32 s9, s9, {8*4096}
        buffer_store_dwordx4 v[8:11], v12, s[20:23], s9 offen sc1
        s_add_u32 s9, s9, {8*4096}
        buffer_store_dword v8, v13, s[20:23], s9 offen sc1""")
    a.I(f"""s_lshl_b32 s9, s4, 2
    s_add_u32 s9, s9, s5
    s_mul_i32 s9, s9, 288
    s_add_u32 s9, s9, {MEMB}
    s_mov_b64 exec, 0x3ffff
    buffer_store_dwordx4 v[8:11], v{L16}, s[20:23], s9 offen sc1
    s_mov_b64 exec, -1
    s_lshl_b32 s9, s5, 4
    s_lshl_b64 s[64:65], 0xffff, s9
    s_waitcnt vmcnt(0) lgkmcnt(0)
    s_barrier""")
    a.I(f"""v_mov_b32 v8, 40
    v_mov_b32 v9, 1
    s_cmp_lg_u32 s5, 0
    s_cbranch_scc1 {P}A_bw
    s_mov_b64 exec, 1
    global_atomic_add v8, v9, s[28:29]
    s_mov_b64 exec, -1""")
    a.L(P+"A_bw")
    a.I(f"""v_mov_b32 v8, 36
    global_load_dwordx2 v[10:11], v8, s[28:29] sc1
    s_waitcnt vmcnt(0)
    v_readfirstlane_b32 s9, v11
    v_readfirstlane_b32 s10, v10
    s_cmp_ge_u32 s9, 32
    s_cbranch_scc1 {P}A_bd""")
    spin_tail(a,P+"A_bw",None,sleep=1)
    a.L(P+"A_bd")
    a.I(f"""s_lshl_b32 s37, s4, 7
    s_add_u32 s37, s37, {flg}
    s_lshl_b32 s38, s4, 14
    s_lshl_b32 s9, s5, 12
    s_add_u32 s38, s38, s9
    s_add_u32 s38, s38, {KV}
    s_add_u32 s39, s9, {KVL}
    v_mov_b32 v8, 0""")
    a.L(P+"A_f0")
    a.I(f"""buffer_load_dword v9, v8, s[20:23], s37 offen sc1
    s_waitcnt vmcnt(0)
    v_readfirstlane_b32 s9, v9
    s_cmp_eq_u32 s9, 1
    s_cbranch_scc1 {P}A_f0d""")
    spin_tail(a,P+"A_f0",None,sleep=1)
    a.L(P+"A_f0d")
    a.I("s_mov_b32 m0, s39\ns_nop 0")
    for j in range(4): a.I(f"buffer_load_dwordx4 v{L16}, s[20:23], s38 offen offset:{1024*j} sc1 lds")
    a.I(f"""s_add_u32 s37, s37, 4096
    s_add_u32 s38, s38, {32*16384}
    s_xor_b32 s39, s39, 49152
    s_mov_b32 s56, 0
    s_mov_b32 s6, 0                      ; step
    s_lshl_b32 s57, s4, 12
    s_add_u32 s57, s57, {KVM}
    s_mov_b32 s7, 0
    s_waitcnt vmcnt(0)
    s_cmp_eq_u32 s10, 0
    s_cbranch_scc0 {P}S_entry
    s_branch {P}F_entry""")

def chain_loop(a, P, st, dbg):
    q=LQ(a)
    def stg_read(j):
        b=STG+8*(j%3)
        q.op(f"ds_read_b128 v[{b}:{b+3}], v{WL} offset:{j*2048}",('w',j))
        q.op(f"ds_read_b128 v[{b+4}:{b+7}], v{WL} offset:{j*2048+1024}",('w',j))
    def prep_p1():
        for j in range(3): stg_read(j)
        for r in range(AQ,AQ+24): a.I(f"v_mov_b32 v{r}, 0")
        for r in range(W(3),W(3)+4): a.I(f"v_mov_b32 v{r}, -1")
    a.L(P+"_entry")
    if dbg: a.I("s_memtime s[86:87]")
    prep_p1()
    a.I(f"s_branch {P}_b1")
    a.L(P+"_top")
    q=LQ(a)
    a.I(f"v_lshrrev_b32 v19, 2, v{L16}")
    a.I(f"""buffer_load_dwordx4 v[8:11], v{L16}, s[20:23], s58 offen sc1
    buffer_load_dwordx4 v[12:15], v{L16}, s[20:23], s58 offen offset:1024 sc1
    buffer_load_dword v16, v19, s[20:23], s58 offen offset:2048 sc1""")
    prep_p1()
    a.I(f"v_add_u32 v18, s34, v{L16}")
    a.L(P+"_p0c")
    a.I(f"""s_waitcnt vmcnt(0)
    v_max3_u32 v17, v8, v9, v10
    v_max3_u32 v17, v17, v11, v12
    v_max3_u32 v17, v17, v13, v14
    v_max3_u32 v17, v17, v15, v16
    v_cmp_eq_u32 vcc, -1, v17
    s_cbranch_vccnz {P}_p0r""")
    a.L(P+"_p0d")
    a.I(f"""ds_write_b128 v18, v[8:11] offset:{MEML}
    ds_write_b128 v18, v[12:15] offset:{MEML+1024}
    v_add_u32 v19, s34, v19
    ds_write_b32 v19, v16 offset:{MEML+2048}""")
    a.L(P+"_b1")
    a.I("s_waitcnt lgkmcnt(0)\ns_barrier")
    q=LQ(a)
    def a_read(k): q.op(f"ds_read_b128 v[{W(k%4)}:{W(k%4)+3}], v{L16} offset:{MEML+1024*k}",('a',k))
    a_read(0); a_read(1)
    a.I(f"""v_and_b32 v{W(2)}, 0xffff, v{PK4}
    v_lshrrev_b32 v{W(2)+1}, 16, v{PK4}
    s_sub_u32 s9, {PSLOT}, s7
    s_add_u32 s9, s9, s32
    buffer_store_dwordx4 v[{W(3)}:{W(3)+3}], v{W(2)}, s[20:23], s9 offen {st}
    s_add_u32 s9, s9, {8*4096}
    buffer_store_dwordx4 v[{W(3)}:{W(3)+3}], v{W(2)}, s[20:23], s9 offen {st}
    s_add_u32 s9, s9, {8*4096}
    buffer_store_dword v{W(3)}, v{W(2)+1}, s[20:23], s9 offen {st}
    s_cmp_eq_u32 s56, 1
    s_cbranch_scc0 {P}_fw""")
    a.L(P+"_fd")
    a_read(2); a_read(3)
    a.I("s_mov_b32 m0, s39\ns_nop 0")
    for j in range(4): a.I(f"buffer_load_dwordx4 v{L16}, s[20:23], s38 offen offset:{1024*j} sc1 lds")
    a.I(f"""s_add_u32 s37, s37, 4096
    s_add_u32 s38, s38, {32*16384}
    s_xor_b32 s39, s39, 49152""")
    accof=lambda nm: AQ+4*nm
    kxslot=[STG+16+0, 0,0,0,0]
    KX={0:STG+16, 1:STG+0, 2:STG+4, 3:STG+8, 4:STG+12}
    SM=STG+20
    def kx_read(f,dst): q.op(f"ds_read_b128 v[{dst}:{dst+3}], v{KVR} offset:{f*1024}",('kx',f))
    for i,u in enumerate(U1):
        _,k,nm=u
        if nm==0: q.wait(('a',k))
        if u in LDSU:
            j=LDSU.index(u)
            if j>=3: q.wait(('w',j))
            b=STG+8*(j%3); B=f"v[{b}:{b+7}]"
        else: B=rtxt(u)
        a.I(f"v_smfmac_f32_16x16x64_bf16 {vr(accof(nm),4)}, {vr(W(k%4),4)}, {B}, v{IDX}")
        if u in LDSU:
            if j+3<14: stg_read(j+3)
            elif j==11: kx_read(0,KX[0])
            elif j==12: kx_read(1,KX[1]); kx_read(2,KX[2])
            elif j==13: kx_read(3,KX[3]); kx_read(4,KX[4])
        if k<=4 and nm==5: a_read(k+4)
        if i==43:
            a.I(f"v_and_b32 v{SM}, 0xffff, v{PK1}")
        if i==44:
            a.I(f"v_lshrrev_b32 v{SM+1}, 16, v{PK1}")
    stamp(a,P,1,False)
    def dv(i):
        _,k,nm=UD[i]
        a.I(f"v_smfmac_f32_16x16x64_bf16 {vr(accof(nm),4)}, {vr(W(k%4),4)}, {rtxt(UD[i])}, v{IDX}")
    dv(0); dv(1)
    a.I(f"""v_pk_add_f32 v[{AQ}:{AQ+1}], v[{AQ}:{AQ+1}], v[{AQ+2}:{AQ+3}]
    v_pk_add_f32 v[{AQ+4}:{AQ+5}], v[{AQ+4}:{AQ+5}], v[{AQ+6}:{AQ+7}]
    v_cvt_pk_bf16_f32 v{AQ}, v{AQ}, v{AQ+1}
    v_cvt_pk_bf16_f32 v{AQ+1}, v{AQ+4}, v{AQ+5}""")
    q.op(f"ds_write2_b32 v{SM}, v{AQ}, v{AQ+1} offset0:0 offset1:4",'tq')
    a.I(f"""v_pk_add_f32 v[{AK}:{AK+1}], v[{AK}:{AK+1}], v[{AK+2}:{AK+3}]
    v_pk_add_f32 v[{AK+4}:{AK+5}], v[{AK+4}:{AK+5}], v[{AK+6}:{AK+7}]
    v_cvt_pk_bf16_f32 v{AK}, v{AK}, v{AK+1}
    v_cvt_pk_bf16_f32 v{AK+1}, v{AK+4}, v{AK+5}""")
    q.op(f"ds_write_b64 v{SM+1}, v[{AK}:{AK+1}]",'tk')
    dv(2)
    a.I(f"v_and_b32 v{SM+2}, 0xffff, v{PK2}")
    dv(3)
    a.I(f"v_lshrrev_b32 v{SM+3}, 16, v{PK2}")
    q.all()
    a.I("s_barrier")
    QF=AQ; KM0=W(1); KM1=W(2); S1=W(3); S2=W(0)
    for ks in range(4):
        for rho in range(2):
            q.op(f"ds_read_b64_tr_b16 v[{QF+4*ks+2*rho}:{QF+4*ks+2*rho+1}], v{SM+2} offset:{ks*512+rho*64}",('qf',ks))
    for sg_ in range(2):
        for rho in range(2):
            d=(KM0,KM1)[sg_]+2*rho
            q.op(f"ds_read_b64_tr_b16 v[{d}:{d+1}], v{SM+3} offset:{sg_*1024+rho*128}",('km',sg_))
    dv(4)
    a.I(f"v_mov_b32 v{SM}, 0")
    dv(5)
    a.I(f"v_mov_b32 v{SM+1}, 0")
    dv(6)
    a.I(f"v_mov_b32 v{SM+2}, 0")
    dv(7)
    a.I(f"v_mov_b32 v{SM+3}, 0")
    def sx(f):
        tk=f>>2; ks=f&3; S=(S1,S2)[tk]
        q.wait(('qf',ks),('kx',f))
        c="0" if ks==0 else vr(S,4)
        a.I(f"v_mfma_f32_16x16x32_bf16 {vr(S,4)}, {vr(KX[f],4)}, {vr(QF+4*ks,4)}, {c}")
    sx(0); KX[5]=KX[0]; kx_read(5,KX[5])
    sx(1); KX[6]=KX[1]; kx_read(6,KX[6])
    sx(2); KX[7]=KX[2]; kx_read(7,KX[7])
    sx(3)
    a.I(f"v_pk_add_f32 v[{AV}:{AV+1}], v[{AV}:{AV+1}], v[{AV+2}:{AV+3}]")
    sx(4)
    a.I(f"v_pk_add_f32 v[{AV+4}:{AV+5}], v[{AV+4}:{AV+5}], v[{AV+6}:{AV+7}]")
    q.wait(('km',1))
    a.I(f"v_smfmac_f32_16x16x64_bf16 {vr(SM,4)}, {vr(KM0,4)}, {vr(QF,8)}, v{IDX}")
    a.I(f"v_cvt_pk_bf16_f32 v{AV}, v{AV}, v{AV+1}")
    a.I(f"v_smfmac_f32_16x16x64_bf16 {vr(SM,4)}, {vr(KM1,4)}, {vr(QF+8,8)}, v{IDX}")
    a.I(f"v_cvt_pk_bf16_f32 v{AV+1}, v{AV+4}, v{AV+5}")
    VF=STG+8; VM=AV; ON=AV+4; T=AV+2
    a.I(f"v_add_u32 v{T}, s36, v{KVR}")
    q.op(f"ds_read_b128 v[{VF}:{VF+3}], v{T}",'vf')
    q.op(f"ds_read_b128 v[{VF+4}:{VF+7}], v{T} offset:1024",'vf')
    sx(5)
    a.I(f"v_mov_b32 v{ON}, 0x3f803f80\nv_mov_b32 v{ON+1}, 0x3f803f80")
    sx(6)
    a.I(f"v_mov_b32 v{ON+2}, 0x3f803f80\nv_mov_b32 v{ON+3}, 0x3f803f80")
    sx(7)
    L2R=[AQ,AK,STG]
    for i,u in enumerate(L2U):
        b=L2R[i]; o=uoff(u)
        if o>=4096: a.I(f"s_add_u32 s9, s31, 4096"); sb="s9"; o-=4096
        else: sb="s31"
        a.I(f"""buffer_load_dwordx4 v[{b}:{b+3}], v{L16}, s[20:23], {sb} offen offset:{o}
        buffer_load_dwordx4 v[{b+4}:{b+7}], v{L16}, s[20:23], {sb} offen offset:{o+1024}""")
    a.I(f"""v_lshrrev_b32 v{T+1}, 1, v{L16}
    s_lshl_b32 s9, s5, 9
    s_add_u32 s9, s9, s57
    buffer_store_dwordx2 v[{VM}:{VM+1}], v{T+1}, s[20:23], s9 offen offset:2048 sc1
    s_mov_b64 exec, s[64:65]
    buffer_store_dwordx4 {vr(KM0,4)}, v{L16}, s[20:23], s57 offen sc1
    buffer_store_dwordx4 {vr(KM1,4)}, v{L16}, s[20:23], s57 offen offset:1024 sc1
    s_mov_b64 exec, -1""")
    a.I(f"""s_add_u32 s57, s57, {32*4096}
    s_cmp_eq_u32 s6, 63
    s_cbranch_scc1 {P}_fin""")
    stamp(a,P,2,False)
    def fill(k):
        if k==1: a.I(f"v_mov_b32 v{VM+2}, v{VM+1}\nv_mov_b32 v{VM+3}, 0")
    softmax(a,S1,S2,SM,STG+18,35,fill)
    a.I(f"v_and_b32 v{STG+16}, 0xffff, v{PK3}")
    q.wait('vf')
    O0=W(1); O1=W(2)
    pv(a,S1,SM,VF,VM,ON,O0,O1,S2,O0)
    a.I("s_mov_b64 exec, s[54:55]")
    q.op(f"ds_write_b128 v{STG+16}, {vr(O0,4)}",'ow')
    a.I("s_mov_b64 exec, -1")
    ACC=[W(0),W(2),W(3),AV,AV+4,STG+8,STG+12,STG+20, AQ]
    OA=[W(1),STG+16]
    for t in range(4):
        for r in range(4): a.I(f"v_mov_b32 v{ACC[t]+r}, 0")
    q.all()
    a.I("s_barrier")
    q.op(f"ds_read_b128 {vr(OA[0],4)}, v{L16} offset:{OL}",'oa0')
    q.op(f"ds_read_b128 {vr(OA[1],4)}, v{L16} offset:{OL+1024}",'oa1')
    for t in range(4,8):
        for r in range(4): a.I(f"v_mov_b32 v{ACC[t]+r}, 0")
    a.I(f"""v_xor_b32 v{KVR}, 49152, v{KVR}
    s_add_u32 s10, s32, s7
    s_add_u32 s11, s10, {8*4096}
    s_add_u32 s12, s10, {16*4096}
    s_and_b32 s13, s6, 3
    s_mul_i32 s13, s13, 9216
    s_add_u32 s13, s13, {MEMB}
    s_add_u32 s59, s6, 1
    s_and_b32 s59, s59, 3
    s_mul_i32 s59, s59, 9216
    s_add_u32 s59, s59, {MEMB}
    s_add_u32 s58, s59, s34
    s_waitcnt vmcnt(3)""")
    q.all()
    a.I(f"s_load_dword s56, s[16:17], s37 glc")
    def post(t):
        d=ACC[t]; o=ACC[(t//4)*4]+(t%4)
        return [f"v_pk_add_f32 v[{d}:{d+1}], v[{d}:{d+1}], v[{d+2}:{d+3}]", f"v_cvt_pk_bf16_f32 v{o}, v{d}, v{d+1}"]
    extra={3:[f"v_mov_b32 v{AQ}, 0",f"v_mov_b32 v{AQ+1}, 0"],4:[f"v_mov_b32 v{AQ+2}, 0",f"v_mov_b32 v{AQ+3}, 0"],
           5:[f"v_and_b32 v{AK}, 0xffff, v{PK4}"],6:[f"v_lshrrev_b32 v{AK+1}, 16, v{PK4}"]}
    pend=[]
    for i,u in enumerate(UO):
        _,t,kp=u
        B=vr(L2R[i],8) if u in L2U else rtxt(u)
        a.I(f"v_smfmac_f32_16x16x64_bf16 {vr(ACC[t],4)}, {vr(OA[kp],4)}, {B}, v{IDX}")
        for x in extra.get(i,[]): a.I(x)
        if kp==1 and t>=3: pend+=post(t-3)
        if pend: a.I(pend.pop(0))
        if u==('o',7,1):
            while pend: a.I(pend.pop(0))
            a.I(f"buffer_store_dwordx4 {vr(ACC[0],4)}, v{AK}, s[20:23], s10 offen {st}")
    while pend: a.I(pend.pop(0))
    for t in (6,7):
        for x in post(t): a.I(x)
    a.I(f"buffer_store_dwordx4 {vr(ACC[4],4)}, v{AK}, s[20:23], s11 offen {st}")
    for x in post(8): a.I(x)
    a.I(f"buffer_store_dword v{ACC[8]}, v{AK+1}, s[20:23], s12 offen {st}")
    stamp(a,P,3,False)
    R=W(0); AS=STG; RD=STG+4; RA=STG+8
    a.I(f"""s_add_u32 s6, s6, 1
    s_add_u32 s10, s33, s7
    s_sub_u32 s7, {PSLOT}, s7
    s_cmp_eq_u32 s41, 0
    s_cbranch_scc1 {P}_top
    v_lshrrev_b32 v{RA}, 1, v{L16}""")
    a.L(P+"_p7")
    for j in range(8):
        a.I(f"buffer_load_dwordx2 v[{R+2*j}:{R+2*j+1}], v{RA}, s[20:23], s10 offen offset:{512*j} sc1")
    a.I(f"""v_mov_b32 v{RD}, 0x3f80
    v_mov_b32 v{RD+1}, 0x3f800000
    v_cndmask_b32 v{AS}, 0, v{RD}, s[46:47]
    v_cndmask_b32 v{AS}, v{AS}, v{RD+1}, s[48:49]
    v_cndmask_b32 v{AS+1}, 0, v{RD}, s[50:51]
    v_cndmask_b32 v{AS+1}, v{AS+1}, v{RD+1}, s[52:53]
    v_mov_b32 v{AS+2}, v{AS}
    v_mov_b32 v{AS+3}, v{AS+1}
    v_lshrrev_b32 v{RA+1}, 16, v{PK3}
    v_mov_b32 v{RA+2}, -1""")
    for j in range(4):
        c="0" if j==0 else vr(RD,4)
        a.I(f"""s_waitcnt vmcnt({6-2*j})
        v_mfma_f32_16x16x32_bf16 {vr(RD,4)}, {vr(AS,4)}, {vr(R+4*j,4)}, {c}""")
    a.I(f"""v_cmp_u_f32 vcc, v{RD}, v{RD+1}
    v_cvt_pk_bf16_f32 v{RD}, v{RD}, v{RD+1}
    s_cbranch_vccnz {P}_p7r""")
    a.L(P+"_p7d")
    a.I(f"""s_mov_b32 exec_hi, 0
    buffer_store_dword v{RD}, v{RA+1}, s[20:23], s59 offen {st}
    buffer_store_dword v{RA+2}, v{RA+1}, s[20:23], s13 offen {st}
    s_mov_b32 exec_hi, -1
    s_branch {P}_top""")
    a.L(P+"_p7r")
    a.I(f"v_max3_u32 v{RD+2}, v{R}, v{R+1}, v{R+2}")
    for j in range(3,15,2): a.I(f"v_max3_u32 v{RD+2}, v{RD+2}, v{R+j}, v{R+j+1}")
    a.I(f"""v_max_u32 v{RD+2}, v{RD+2}, v{R+15}
    v_cmp_eq_u32 vcc, -1, v{RD+2}
    s_cbranch_vccz {P}_p7d""")
    if dbg: a.I("s_add_u32 s92, s92, 1")
    spin_tail(a,P+"_p7",P+"_p7d")
    a.L(P+"_p0r")
    if dbg: a.I("s_add_u32 s93, s93, 1")
    a.I(f"""s_sub_u32 s94, s94, 1
    s_cbranch_scc1 {P}_p0x
    buffer_load_dwordx4 v[8:11], v{L16}, s[20:23], s58 offen sc1
    buffer_load_dwordx4 v[12:15], v{L16}, s[20:23], s58 offen offset:1024 sc1
    buffer_load_dword v16, v19, s[20:23], s58 offen offset:2048 sc1
    s_branch {P}_p0c""")
    a.L(P+"_p0x")
    a.I(f"s_mov_b32 s94, 0\ns_branch {P}_p0d")
    a.L(P+"_fw")
    a.I(f"""s_cmp_ge_u32 s6, 63
    s_cbranch_scc1 {P}_fd
    v_mov_b32 v{W(2)+2}, 0""")
    if dbg: a.I("s_add_u32 s91, s91, 1")
    a.L(P+"_fw2")
    a.I(f"""buffer_load_dword v{W(2)+3}, v{W(2)+2}, s[20:23], s37 offen sc1
    s_waitcnt vmcnt(0)
    v_readfirstlane_b32 s9, v{W(2)+3}
    s_cmp_eq_u32 s9, 1
    s_cbranch_scc1 {P}_fd""")
    spin_tail(a,P+"_fw2",P+"_fd",sleep=1)
    a.L(P+"_fin")
    if dbg:
        a.I(f"""s_memtime s[62:63]
        s_waitcnt lgkmcnt(0)
        s_lshl_b32 s9, s4, 2
        s_add_u32 s9, s9, s5
        s_lshl_b32 s9, s9, 5
        s_add_u32 s9, s9, {DBGW}
        v_mov_b32 v8, s88
        v_mov_b32 v9, s86
        v_mov_b32 v10, s62
        v_mov_b32 v11, s91
        v_mov_b32 v12, s92
        v_mov_b32 v13, s93
        v_mov_b32 v14, s94
        v_mov_b32 v15, s60
        v_mov_b32 v16, 0
        s_mov_b64 exec, 1
        buffer_store_dwordx4 v[8:11], v16, s[20:23], s9 offen
        buffer_store_dwordx4 v[12:15], v16, s[20:23], s9 offen offset:16""")
    a.I("s_endpgm")

def gen_la(a, name, layer, xsrc, xdst, dbg=False):
    P=name[:3]+"_"
    kernel_begin(a,name)
    a.I(f"""s_cmp_ge_u32 s2, 256
    s_cbranch_scc1 {P}end
    s_load_dwordx2 s[16:17], s[0:1], {KA['ws']}
    s_load_dwordx2 s[28:29], s[0:1], {KA['dbg']}
    s_load_dwordx2 s[18:19], s[0:1], {KA['x']}
    s_getreg_b32 s3, hwreg(HW_REG_XCC_ID, 0, 4)
    v_lshrrev_b32 v1, 6, v0
    v_and_b32 v0, 63, v0
    v_readfirstlane_b32 s5, v1
    s_mov_b32 s94, {BUDGET}
    s_mov_b32 s91, 0
    s_mov_b32 s92, 0
    s_mov_b32 s93, 0""")
    if dbg: a.I("s_memtime s[88:89]")
    a.I("s_waitcnt lgkmcnt(0)")
    srd(a,20,16,WS_SIZE)
    if xsrc is not None:
        a.I(f"""s_add_u32 s18, s16, {xsrc}
        s_addc_u32 s19, s17, 0""")
    srd(a,24,18,XBYTES)
    a.I(f"""v_mov_b32 v4, {SPARE}
    s_cmp_lg_u32 s5, 0
    s_cbranch_scc1 {P}el_done
    s_and_b32 s3, s3, 7
    s_lshl_b32 s6, s3, 2
    v_mov_b32 v2, s6
    v_mov_b32 v3, 1
    s_mov_b64 exec, 1
    global_atomic_add v5, v2, v3, s[28:29] sc0
    s_waitcnt vmcnt(0)
    s_mov_b64 exec, -1
    v_readfirstlane_b32 s7, v5
    s_lshl_b32 s4, s3, 5
    s_add_u32 s4, s4, s7
    s_cmp_lt_u32 s7, 32
    s_cbranch_scc1 {P}el_pub
    v_mov_b32 v2, 32
    s_mov_b64 exec, 1
    global_atomic_add v5, v2, v3, s[28:29] sc0
    s_waitcnt vmcnt(0)
    s_mov_b64 exec, -1
    v_readfirstlane_b32 s7, v5
    v_and_b32 v2, 7, v0
    v_lshlrev_b32 v2, 2, v2""")
    a.L(P+"el_w")
    a.I(f"""global_load_dword v5, v2, s[28:29] sc1
    s_waitcnt vmcnt(0)
    s_mov_b32 s8, 0""")
    for x in range(8):
        a.I(f"v_readlane_b32 s{40+x}, v5, {x}\ns_add_u32 s8, s8, s{40+x}")
    a.I(f"""s_cmp_ge_u32 s8, 256
    s_cbranch_scc1 {P}el_s""")
    spin_tail(a,P+"el_w",None,sleep=2)
    a.L(P+"el_s")
    a.I("s_mov_b32 s4, 255")
    for x in range(8):
        a.I(f"""s_min_u32 s9, s{40+x}, 32
        s_sub_u32 s10, 32, s9
        s_add_u32 s11, s9, s7
        s_add_u32 s11, s11, {32*x}
        s_cmp_lt_u32 s7, s10
        s_cselect_b32 s4, s11, s4
        s_cselect_b32 s7, 0x10000, s7
        s_sub_u32 s7, s7, s10""")
    a.I(f"""s_cmp_ge_u32 s4, 32
    s_cbranch_scc1 {P}el_pub
    v_mov_b32 v2, 36
    s_mov_b64 exec, 1
    global_atomic_add v2, v3, s[28:29]
    s_waitcnt vmcnt(0)
    s_mov_b64 exec, -1""")
    a.L(P+"el_pub")
    a.I(f"""v_mov_b32 v5, s4
    ds_write_b32 v4, v5
    s_waitcnt lgkmcnt(0)""")
    a.L(P+"el_done")
    a.I(f"""s_barrier
    ds_read_b32 v5, v4
    s_waitcnt lgkmcnt(0)
    v_readfirstlane_b32 s4, v5
    s_barrier
    s_cmp_lt_u32 s4, 32
    s_cbranch_scc1 {P}A
    s_cmp_lt_u32 s4, 192
    s_cbranch_scc1 {P}B
    s_branch {P}C""")
    a.L(P+"end")
    a.I("s_endpgm")
    chain_setup(a,P,layer)
    chain_loop(a,P+"F","",dbg)
    chain_loop(a,P+"S","sc1",False)
    role_b(a,P,layer)
    role_c(a,P,layer,xdst)
    return (name, f"; @launch kernel={name} grid=(256,1,1) block=(256,1,1) lds={LDS_LA}", kernel_desc(name, 512, 96, accum=256))
```

```python
from asmb import *
WIMG=0x0000000; WOC=0x0E00000; WOT=0x1300000; FIMG=0x1800000; FINV=0x1900000; WFI=0x1A00000
TW1=0x1D00000; TW2=0x1D04000; CST=0x1D08000
FLAGS=0x1E00000
PART=0x1F00000; MEMB=0x2000000
X1=0x2100000; X2=0x2400000; X3=0x2700000; ZF=0x2A00000; ZO=0x2D00000
KVM=0x3000000; KV=0x4000000; OBUF=0x6000000
DBGW=0x8000000
WS_SIZE=0x10000000
XBYTES=2048*576*2
KA=dict(x=0,mem0=8,Wq=16,Wk=24,Wv=32,Wo=40,seg=48,bx=56,wr=64,wi=72,out=80,dbg=88,ws=96)

def kernel_begin(a, name):
    a.raw(f".text\n.globl {name}\n.p2align 8\n.type {name},@function\n{name}:")

def kernel_desc(name, vgpr, sgpr=96, accum=None):
    if accum is None: accum=(vgpr+3)//4*4
    return f""".section .rodata,"a"
.p2align 6
.amdhsa_kernel {name}
  .amdhsa_next_free_vgpr {vgpr}
  .amdhsa_next_free_sgpr {sgpr}
  .amdhsa_accum_offset {accum}
  .amdhsa_group_segment_fixed_size 0
  .amdhsa_kernarg_size 104
  .amdhsa_user_sgpr_count 2
  .amdhsa_user_sgpr_kernarg_segment_ptr 1
  .amdhsa_system_sgpr_workgroup_id_x 1
.end_amdhsa_kernel"""

def srd(a, d, ptr, size):
    a.I(f"""s_mov_b32 s{d}, s{ptr}
    s_and_b32 s{d+1}, s{ptr+1}, 0xffff
    s_mov_b32 s{d+2}, {size}
    s_mov_b32 s{d+3}, 0x00020000""")

def sdiv(a, q, x, d, tmp=None, maxx=1<<16):
    M=-(-(1<<32)//d)
    assert maxx*d <= (1<<32)
    a.I(f"s_mul_hi_u32 s{q}, s{x}, {M}")
```

```python
from common import *
from bstage import ln_addr, ln_load, ln_compute, XF_TH, XF_SIZE
import struct
def f2u(x): return struct.unpack('<I',struct.pack('<f',x))[0]
SCL=f2u(128**-0.5*1.4426950408889634)
LDS_LA=163840
FLAGL=0x80000
OFLAG=0x40000
NB=5
NG=4
BUDGET=400000

class LQ:
    def __init__(self,a): self.a=a; self.q=[]; self.done=0
    def op(self,text,tag=None):
        self.a.I(text); self.q.append(tag)
    def wait(self,*tags):
        idx=max(max(i for i,t in enumerate(self.q) if t==tag) for tag in tags)
        if idx<self.done: return
        n=len(self.q)-1-idx
        assert n<=15, n
        self.a.I(f"s_waitcnt lgkmcnt({n})"); self.done=idx+1
    def all(self):
        self.a.I("s_waitcnt lgkmcnt(0)"); self.done=len(self.q)

def spin_tail(a, loop, out, sleep=0):
    if sleep: a.I(f"s_sleep {sleep}")
    a.I(f"""s_sub_u32 s94, s94, 1
    s_cbranch_scc0 {loop}
    s_mov_b32 s94, 0""")
    if out: a.I(f"s_branch {out}")

def softmax(a, S1, S2, Sm, T, sC, fill=None):
    f=fill or (lambda k: None)
    a.I(f"""v_max3_f32 v{T}, v{S1}, v{S1+1}, v{S1+2}
    v_pk_add_f32 v[{Sm}:{Sm+1}], v[{Sm}:{Sm+1}], v[{Sm+2}:{Sm+3}]
    v_max3_f32 v{T}, v{T}, v{S1+3}, v{Sm}
    v_max3_f32 v{T+1}, v{S2}, v{S2+1}, v{S2+2}
    v_max3_f32 v{T}, v{T}, v{Sm+1}, v{S2+3}
    v_max_f32 v{T}, v{T}, v{T+1}
    v_mov_b32 v{T+1}, v{T}""")
    a.I(f"v_mov_b32 v{Sm+2}, 0\nv_mov_b32 v{Sm+3}, 0")
    f(0)
    a.I(f"""v_permlane16_swap_b32 v{T}, v{T+1}
    v_max_f32 v{T}, v{T}, v{T+1}
    v_mov_b32 v{T+1}, v{T}""")
    f(1)
    a.I(f"""v_permlane32_swap_b32 v{T}, v{T+1}
    v_max_f32 v{T}, v{T}, v{T+1}
    v_mul_f32 v{T}, s{sC}, v{T}""")
    regs=[S1,S1+1,S1+2,S1+3,S2,S2+1,S2+2,S2+3,Sm,Sm+1]
    for r in regs: a.I(f"v_fma_f32 v{r}, v{r}, s{sC}, -v{T}")
    for r in regs: a.I(f"v_exp_f32 v{r}, v{r}")
    a.I(f"""v_cvt_pk_bf16_f32 v{S1}, v{S1}, v{S1+1}
    v_cvt_pk_bf16_f32 v{S1+1}, v{S1+2}, v{S1+3}
    v_cvt_pk_bf16_f32 v{S1+2}, v{S2}, v{S2+1}
    v_cvt_pk_bf16_f32 v{S1+3}, v{S2+2}, v{S2+3}
    v_cvt_pk_bf16_f32 v{Sm}, v{Sm}, v{Sm+1}
    v_mov_b32 v{Sm+1}, 0""")

def pv(a, Px, Pm, VF, VM, ONES, O0, O1, SUM, OUT):
    a.I(f"""v_mfma_f32_16x16x32_bf16 v[{SUM}:{SUM+3}], v[{ONES}:{ONES+3}], v[{Px}:{Px+3}], 0
    v_mfma_f32_16x16x32_bf16 v[{SUM}:{SUM+3}], v[{ONES}:{ONES+3}], v[{Pm}:{Pm+3}], v[{SUM}:{SUM+3}]
    v_mfma_f32_16x16x32_bf16 v[{O0}:{O0+3}], v[{VF}:{VF+3}], v[{Px}:{Px+3}], 0
    v_mfma_f32_16x16x32_bf16 v[{O1}:{O1+3}], v[{VF+4}:{VF+7}], v[{Px}:{Px+3}], 0
    v_mfma_f32_16x16x32_bf16 v[{O0}:{O0+3}], v[{VM}:{VM+3}], v[{Pm}:{Pm+3}], v[{O0}:{O0+3}]
    v_mfma_f32_16x16x32_bf16 v[{O1}:{O1+3}], v[{VM+2}:{VM+5}], v[{Pm}:{Pm+3}], v[{O1}:{O1+3}]
    v_rcp_f32 v{SUM}, v{SUM}
    v_rcp_f32 v{SUM+1}, v{SUM+1}
    v_pk_mul_f32 v[{O0}:{O0+1}], v[{O0}:{O0+1}], v[{SUM}:{SUM+1}]
    v_pk_mul_f32 v[{O0+2}:{O0+3}], v[{O0+2}:{O0+3}], v[{SUM}:{SUM+1}]
    v_pk_mul_f32 v[{O1}:{O1+1}], v[{O1}:{O1+1}], v[{SUM}:{SUM+1}]
    v_pk_mul_f32 v[{O1+2}:{O1+3}], v[{O1+2}:{O1+3}], v[{SUM}:{SUM+1}]
    v_cvt_pk_bf16_f32 v{OUT}, v{O0}, v{O0+1}
    v_cvt_pk_bf16_f32 v{OUT+1}, v{O0+2}, v{O0+3}
    v_cvt_pk_bf16_f32 v{OUT+2}, v{O1}, v{O1+1}
    v_cvt_pk_bf16_f32 v{OUT+3}, v{O1+2}, v{O1+3}""")

def stamp(a, P, i, on):
    if on: a.I(f"s_memtime s[{60+2*i}:{61+2*i}]")

def role_b(a, P, layer):
    flg=FLAGS+layer*FLAGL
    L16=0; GO=1; LO=2; DEL=3; IDX=4
    QS=XF_SIZE+64-(XF_SIZE%64); QS=40960
    def wreg(ti,ks):
        f=ks*6+ti
        return ar(4*f,4) if f<64 else vr(80+4*(f-64),4)
    a.L(P+"B")
    a.I(f"""s_sub_u32 s8, s4, 32""")
    sdiv(a,6,8,NB)
    a.I(f"""s_mul_i32 s7, s6, {NB}
    s_sub_u32 s7, s8, s7
    v_mov_b32 v10, s5""")
    ln_addr(a,"v10",0,GO,LO,12)
    a.I(f"""v_and_b32 v10, 15, v0
    v_lshrrev_b32 v11, 2, v10
    v_lshlrev_b32 v11, 3, v11
    v_and_b32 v12, 3, v10
    v_add_u32 v11, v11, v12
    v_lshrrev_b32 v12, 4, v0
    v_lshlrev_b32 v12, 3, v12
    v_sub_u32 v{DEL}, v11, v12
    v_mov_b32 v{IDX}, 0x4444
    v_mov_b32 v11, 0xeeee
    v_and_b32 v12, 2, v0
    v_cmp_eq_u32 vcc, 2, v12
    v_cndmask_b32 v{IDX}, v{IDX}, v11, vcc
    v_lshlrev_b32 v{L16}, 4, v0""")
    a.I(f"""s_mul_i32 s8, s6, {3*147456}
    s_mul_i32 s9, s5, 36864
    s_add_u32 s8, s8, s9
    s_add_u32 s8, s8, {WIMG}""")
    for ti in range(6):
        a.I(f"s_add_u32 s{30+ti}, s8, {(ti>>1)*147456+(ti&1)*18432}")
    for ks in range(18):
        for ti in range(6):
            a.I(f"buffer_load_dwordx4 {wreg(ti,ks)}, v{L16}, s[20:23], s{30+ti} offen offset:{(ks&3)*1024}")
        if ks&3==3:
            for ti in range(6): a.I(f"s_add_u32 s{30+ti}, s{30+ti}, 4096")
    a.I(f"""s_mov_b32 s10, s7            ; s_q
    s_mov_b32 s11, -1                    ; s_a
    s_mov_b32 s12, {QS}
    s_mov_b32 s13, {QS+24576}
    s_mov_b32 s14, {SCL}
    s_waitcnt vmcnt(0)""")
    a.L(P+"B_loop")
    a.I(f"""s_cmp_ge_u32 s10, 64
    s_cbranch_scc1 {P}B_attn""")
    X=8; T=44
    a.I(f"s_mul_i32 s15, s10, {32*1152}")
    ln_load(a,X,GO,24,"s15")
    a.I(f"""s_lshl_b32 s16, s10, 5
    s_add_u32 s16, s16, s6               ; sh = s*32+h
    s_lshl_b32 s17, s16, 12
    s_lshl_b32 s18, s5, 10
    s_add_u32 s17, s17, s18
    s_add_u32 s17, s17, {KVM}
    v_mov_b32 v44, -1
    v_mov_b32 v45, -1
    v_mov_b32 v46, -1
    v_mov_b32 v47, -1
    buffer_store_dwordx4 v[44:47], v{L16}, s[20:23], s17 offen sc1
    s_waitcnt vmcnt(1)""")
    ln_compute(a,X,T,LO,36,37)
    a.I("s_waitcnt lgkmcnt(0)\ns_barrier")
    ACC=32; FR=8
    def rd(ks):
        for th in range(2):
            r=FR+((ks%3)*2+th)*4
            a.I(f"ds_read_b128 v[{r}:{r+3}], v{L16} offset:{th*XF_TH+ks*1024}")
    rd(0); rd(1)
    acc=lambda ti,th: ACC+(ti*2+th)*4
    for ks in range(18):
        if ks+2<18: rd(ks+2)
        a.I(f"s_waitcnt lgkmcnt({min(2,17-ks)*2})")
        for ti in range(6):
            for th in range(2):
                d=acc(ti,th); r=vr(FR+((ks%3)*2+th)*4,4)
                c="0" if ks==0 else vr(d,4)
                if ti<4: a.I(f"v_mfma_f32_16x16x32_bf16 {vr(d,4)}, {wreg(ti,ks)}, {r}, {c}")
                else:    a.I(f"v_mfma_f32_16x16x32_bf16 {vr(d,4)}, {r}, {wreg(ti,ks)}, {c}")
    a.I(f"""s_lshl_b32 s17, s16, 14
    s_add_u32 s17, s17, {KV}
    s_add_u32 s18, s18, s17              ; + w*1024  (K)
    s_lshl_b32 s19, s5, 11
    s_add_u32 s19, s19, s17
    s_add_u32 s19, s19, 8192             ; V + w*2048
    s_lshl_b32 s38, s5, 10
    s_add_u32 s38, s38, s12
    v_add_u32 v5, s38, v{L16}
    s_lshl_b32 s38, s5, 11
    s_add_u32 s38, s38, s12
    v_add_u32 v6, s38, v{L16}
    s_add_u32 s39, s18, 4096""")
    for m in range(2):
        for th in range(2):
            o=8+(m*2+th)*4; d0=acc(2*m,th); d1=acc(2*m+1,th)
            a.I(f"""v_cvt_pk_bf16_f32 v{o}, v{d0}, v{d0+1}
            v_cvt_pk_bf16_f32 v{o+1}, v{d1}, v{d1+1}
            v_cvt_pk_bf16_f32 v{o+2}, v{d0+2}, v{d0+3}
            v_cvt_pk_bf16_f32 v{o+3}, v{d1+2}, v{d1+3}
            ds_write_b128 v5, v[{o}:{o+3}] offset:{m*8192+th*4096}""")
            if m==1: a.I(f"buffer_store_dwordx4 v[{o}:{o+3}], v{L16}, s[20:23], s{18 if th==0 else 39} offen sc1")
    for tau in range(2):
        o=24+tau*4; d0=acc(4+tau,0); d1=acc(4+tau,1)
        a.I(f"""v_cvt_pk_bf16_f32 v{o}, v{d0}, v{d0+1}
        v_cvt_pk_bf16_f32 v{o+1}, v{d0+2}, v{d0+3}
        v_cvt_pk_bf16_f32 v{o+2}, v{d1}, v{d1+1}
        v_cvt_pk_bf16_f32 v{o+3}, v{d1+2}, v{d1+3}
        ds_write_b128 v6, v[{o}:{o+3}] offset:{16384+tau*1024}
        buffer_store_dwordx4 v[{o}:{o+3}], v{L16}, s[20:23], s19 offen offset:{tau*1024} sc1""")
    a.I(f"""s_waitcnt vmcnt(0) lgkmcnt(0)
    s_barrier
    s_cmp_lg_u32 s5, 0
    s_cbranch_scc1 {P}B_attn
    s_lshl_b32 s17, s16, 7
    s_add_u32 s17, s17, {flg}
    v_mov_b32 v8, 1
    s_mov_b64 exec, 1
    buffer_store_dword v8, v{L16}, s[20:23], s17 offen sc1
    s_mov_b64 exec, -1""")
    a.L(P+"B_attn")
    a.I(f"""s_cmp_lt_i32 s11, 0
    s_cbranch_scc1 {P}B_next
    s_lshl_b32 s16, s11, 5
    s_add_u32 s16, s16, s6
    s_lshl_b32 s17, s16, 12
    s_add_u32 s17, s17, {KVM}
    s_lshl_b32 s18, s5, 9
    s_add_u32 s18, s18, s17
    v_lshrrev_b32 v5, 1, v{L16}
    v_add_u32 v6, s13, v{L16}
    s_lshl_b32 s38, s5, 11
    v_add_u32 v7, s38, v6""")
    KM=8; VM=16; VF=20; QF=28; KF=44; S1=60; S2=64; Sm=68; ON=72; T=78; O0=44; O1=48
    a.I(f"""ds_read_b128 v[{VF}:{VF+3}], v7 offset:16384
    ds_read_b128 v[{VF+4}:{VF+7}], v7 offset:17408""")
    for i in range(4): a.I(f"v_mov_b32 v{ON+i}, 0x3f803f80")
    a.L(P+"B_poll")
    a.I(f"""buffer_load_dwordx2 v[{VM}:{VM+1}], v5, s[20:23], s18 offen offset:2048 sc1
    s_waitcnt vmcnt(0)
    v_max_u32 v{T}, v{VM}, v{VM+1}
    v_cmp_eq_u32 vcc, -1, v{T}
    s_cbranch_vccz {P}B_poll2""")
    spin_tail(a,P+"B_poll",None,sleep=6)
    a.L(P+"B_poll2")
    a.I(f"""buffer_load_dwordx4 v[{KM}:{KM+3}], v{L16}, s[20:23], s17 offen sc1
    buffer_load_dwordx4 v[{KM+4}:{KM+7}], v{L16}, s[20:23], s17 offen offset:1024 sc1
    s_waitcnt vmcnt(0)
    v_max3_u32 v{T}, v{KM}, v{KM+1}, v{KM+2}
    v_max3_u32 v{T}, v{T}, v{KM+3}, v{KM+4}
    v_max3_u32 v{T}, v{T}, v{KM+5}, v{KM+6}
    v_max_u32 v{T}, v{T}, v{KM+7}
    v_cmp_eq_u32 vcc, -1, v{T}
    s_cbranch_vccz {P}B_go""")
    spin_tail(a,P+"B_poll2",None)
    a.L(P+"B_go")
    a.I(f"""s_lshl_b32 s17, s16, 13
    s_lshl_b32 s18, s5, 11
    s_add_u32 s17, s17, s18
    s_add_u32 s17, s17, {OBUF}
    v_mov_b32 v76, 0xff800000
    v_mov_b32 v{VM+2}, v{VM+1}
    v_mov_b32 v{VM+3}, 0""")
    for tq in range(2):
        for ks in range(4): a.I(f"ds_read_b128 v[{QF+4*ks}:{QF+4*ks+3}], v6 offset:{tq*4096+ks*1024}")
        for i in range(4): a.I(f"v_mov_b32 v{Sm+i}, 0")
        for tk in range(2):
            S=(S1,S2)[tk]
            for ks in range(4): a.I(f"ds_read_b128 v[{KF+4*ks}:{KF+4*ks+3}], v6 offset:{8192+tk*4096+ks*1024}")
            a.I("s_waitcnt lgkmcnt(0)")
            for ks in range(4):
                c="0" if ks==0 else vr(S,4)
                a.I(f"v_mfma_f32_16x16x32_bf16 {vr(S,4)}, {vr(KF+4*ks,4)}, {vr(QF+4*ks,4)}, {c}")
            a.I("s_nop 3")
        for sg_ in range(2):
            a.I(f"v_smfmac_f32_16x16x64_bf16 {vr(Sm,4)}, {vr(KM+4*sg_,4)}, {vr(QF+8*sg_,8)}, v{IDX}")
        for tk in range(2):
            S=(S1,S2)[tk]
            for r in range(4):
                a.I(f"""v_cmp_le_i32 vcc, {r+4*(tk-tq)}, v{DEL}
                v_cndmask_b32 v{S+r}, v76, v{S+r}, vcc""")
        softmax(a,S1,S2,Sm,T,14)
        pv(a,S1,Sm,VF,VM,ON,O0,O1,S2,52+4*tq)
        a.I(f"buffer_store_dwordx4 v[{52+4*tq}:{55+4*tq}], v{L16}, s[20:23], s17 offen offset:{tq*1024} sc1")
        if tq==0: a.I("s_nop 1")
    a.I(f"""s_waitcnt vmcnt(0)
    s_barrier
    s_cmp_lg_u32 s5, 0
    s_cbranch_scc1 {P}B_next
    s_lshl_b32 s17, s16, 2
    s_add_u32 s17, s17, {flg+OFLAG}
    v_mov_b32 v8, 1
    s_mov_b64 exec, 1
    buffer_store_dword v8, v{L16}, s[20:23], s17 offen sc1
    s_mov_b64 exec, -1""")
    a.L(P+"B_next")
    a.I(f"""s_mov_b32 s11, s10
    s_add_u32 s10, s10, {NB}
    s_mov_b32 s38, s12
    s_mov_b32 s12, s13
    s_mov_b32 s13, s38
    s_cmp_lt_u32 s11, 64
    s_cbranch_scc1 {P}B_loop
    s_endpgm""")

def role_c(a, P, layer, xdst):
    flg=FLAGS+layer*FLAGL+OFLAG
    L16=0
    def wreg(kl,tau):
        f=kl*3+tau
        return ar(4*f,4) if f<64 else vr(128+4*(f-64),4)
    a.L(P+"C")
    a.I(f"""s_and_b32 s8, s4, 31
    s_cmp_ge_u32 s8, 24
    s_cbranch_scc1 {P}end
    s_sub_u32 s9, s4, 192
    s_lshr_b32 s9, s9, 5
    s_lshl_b32 s6, s9, 1
    s_cmp_ge_u32 s8, 12
    s_cselect_b32 s9, 1, 0
    s_add_u32 s6, s6, s9
    s_mul_i32 s9, s9, 12
    s_sub_u32 s7, s8, s9                 ; cb
    v_and_b32 v1, 7, v0
    v_lshlrev_b32 v1, 2, v1
    v_and_b32 v10, 15, v0
    v_lshrrev_b32 v11, 2, v10
    v_lshlrev_b32 v11, 3, v11
    v_and_b32 v12, 3, v10
    v_add_u32 v11, v11, v12
    v_mul_u32_u24 v2, 1152, v11
    v_lshrrev_b32 v12, 4, v0
    v_mul_u32_u24 v12, 24, v12
    v_add_u32 v2, v2, v12
    v_lshlrev_b32 v{L16}, 4, v0
    s_mul_i32 s9, s5, 6144
    v_add_u32 v3, s9, v{L16}
    s_mul_i32 s9, s5, 3072
    v_add_u32 v4, s9, v{L16}
    s_mul_i32 s8, s7, 393216
    s_mul_i32 s9, s5, 98304
    s_add_u32 s8, s8, s9
    s_add_u32 s8, s8, {WOT}""")
    for f in range(96):
        a.I(f"buffer_load_dwordx4 {wreg(f//3,f%3)}, v{L16}, s[20:23], s8 offen offset:{(f&3)*1024}")
        if f&3==3: a.I("s_add_u32 s8, s8, 4096")
    a.I("s_waitcnt vmcnt(0)")
    a.L(P+"C_loop")
    a.I(f"""s_lshl_b32 s10, s6, 5
    s_lshl_b32 s11, s5, 3
    s_add_u32 s10, s10, s11              ; s*32+8w
    s_lshl_b32 s11, s10, 2
    s_add_u32 s11, s11, {flg}
    s_lshl_b32 s12, s10, 13
    s_add_u32 s12, s12, {OBUF}
    s_mul_i32 s13, s6, {32*1152}
    s_mul_i32 s14, s7, 96
    s_add_u32 s13, s13, s14
    s_mul_i32 s14, s5, {4*1152}
    s_add_u32 s13, s13, s14
    buffer_load_dwordx4 v[8:11], v2, s[24:27], s13 offen
    buffer_load_dwordx2 v[12:13], v2, s[24:27], s13 offen offset:16""")
    a.L(P+"C_poll")
    a.I(f"""buffer_load_dword v5, v1, s[20:23], s11 offen sc1
    s_waitcnt vmcnt(0)
    v_cmp_ne_u32 vcc, 1, v5
    s_cbranch_vccz {P}C_go""")
    spin_tail(a,P+"C_poll",None,sleep=4)
    a.L(P+"C_go")
    ACC=16; FB=40; NR=22
    def ld(f):
        r=FB+4*(f%NR)
        a.I(f"buffer_load_dwordx4 v[{r}:{r+3}], v{L16}, s[20:23], s12 offen offset:{(f&3)*1024} sc1")
        if f&3==3: a.I("s_add_u32 s12, s12, 4096")
    for f in range(NR): ld(f)
    for kl in range(32):
        issued=min(64,NR+2*kl)
        a.I(f"s_waitcnt vmcnt({issued-2*kl-2})")
        for th in range(2):
            r=FB+4*((2*kl+th)%NR)
            for tau in range(3):
                d=ACC+(th*3+tau)*4
                c="0" if kl==0 else vr(d,4)
                a.I(f"v_mfma_f32_16x16x32_bf16 {vr(d,4)}, {wreg(kl,tau)}, {vr(r,4)}, {c}")
        for f in (NR+2*kl,NR+2*kl+1):
            if f<64: ld(f)
    for i in range(6): a.I(f"ds_write_b128 v3, {vr(ACC+4*i,4)} offset:{1024*i}")
    a.I(f"""s_waitcnt lgkmcnt(0)
    s_barrier
    s_cmp_ge_u32 s5, 2
    s_cbranch_scc1 {P}C_next""")
    for w in range(4):
        for tau in range(3):
            a.I(f"ds_read_b128 {vr(FB+(w*3+tau)*4,4)}, v4 offset:{w*6144+tau*1024}")
    a.I("s_waitcnt lgkmcnt(0)")
    for p in range(6):
        x=8+p; d=FB+2*p
        a.I(f"""v_pk_add_f32 v[{d}:{d+1}], v[{d}:{d+1}], v[{d+12}:{d+13}]
        v_pk_add_f32 v[{d+24}:{d+25}], v[{d+24}:{d+25}], v[{d+36}:{d+37}]
        v_lshlrev_b32 v14, 16, v{x}
        v_and_b32 v15, 0xffff0000, v{x}
        v_pk_add_f32 v[{d}:{d+1}], v[{d}:{d+1}], v[{d+24}:{d+25}]
        v_pk_add_f32 v[14:15], v[14:15], v[{d}:{d+1}]
        v_cvt_pk_bf16_f32 v{x}, v14, v15""")
    a.I(f"""s_add_u32 s13, s13, {xdst}
    buffer_store_dwordx4 v[8:11], v2, s[20:23], s13 offen
    buffer_store_dwordx2 v[12:13], v2, s[20:23], s13 offen offset:16
    s_nop 0""")
    a.L(P+"C_next")
    a.I(f"""s_barrier
    s_add_u32 s6, s6, {NG}
    s_cmp_lt_u32 s6, 64
    s_cbranch_scc1 {P}C_loop
    s_endpgm""")
```

```python
from common import *
N5=640; N1=1728; N2=512; N3=1152; N4=1296; N6=56; N7=256
B5=0; B1=B5+N5; B2=B1+N1; B3=B2+N2; B4=B3+N3; B6=B4+N4; B7=B6+N6; NT=B7+N7
assert NT%4==0
PREP_WGS=NT//4

def transpose8(a, R, nd, O):
    for j in range(2*nd):
        for p in range(4):
            a.I(f"v_perm_b32 v{O+4*j+p}, v{R+(2*p+1)*nd+(j>>1)}, v{R+(2*p)*nd+(j>>1)}, s{30+(j&1)}")

def gen_prep(a):
    name="prep_kernel"
    kernel_begin(a,name)
    a.I(f"""s_cmp_ge_u32 s2, {PREP_WGS}
    s_cbranch_scc1 P_end
    s_load_dwordx4 s[4:7], s[0:1], {KA['Wq']}
    s_load_dwordx4 s[8:11], s[0:1], {KA['Wv']}
    s_load_dwordx4 s[12:15], s[0:1], {KA['wr']}
    s_load_dwordx2 s[16:17], s[0:1], {KA['ws']}
    v_lshrrev_b32 v1, 6, v0
    v_and_b32 v0, 63, v0
    v_readfirstlane_b32 s3, v1
    s_lshl_b32 s2, s2, 2
    s_add_u32 s3, s3, s2
    v_lshrrev_b32 v1, 4, v0
    v_and_b32 v2, 15, v0
    s_mov_b32 s30, 0x05040100
    s_mov_b32 s31, 0x07060302
    s_waitcnt lgkmcnt(0)""")
    srd(a,20,16,WS_SIZE)
    a.I(f"""s_cmp_lt_u32 s3, {B1}
    s_cbranch_scc1 P_T5
    s_cmp_lt_u32 s3, {B2}
    s_cbranch_scc1 P_T1
    s_cmp_lt_u32 s3, {B3}
    s_cbranch_scc1 P_T2
    s_cmp_lt_u32 s3, {B4}
    s_cbranch_scc1 P_T3
    s_cmp_lt_u32 s3, {B6}
    s_cbranch_scc1 P_T4
    s_cmp_lt_u32 s3, {B7}
    s_cbranch_scc1 P_T6""")
    a.I(f"""s_sub_u32 s3, s3, {B7}
    s_lshl_b32 s3, s3, 12
    s_add_u32 s3, s3, {FLAGS}
    v_lshlrev_b32 v3, 4, v0
    v_mov_b32 v4, 0
    v_mov_b32 v5, 0
    v_mov_b32 v6, 0
    v_mov_b32 v7, 0
    buffer_store_dwordx4 v[4:7], v3, s[20:23], s3 offen
    buffer_store_dwordx4 v[4:7], v3, s[20:23], s3 offen offset:1024
    buffer_store_dwordx4 v[4:7], v3, s[20:23], s3 offen offset:2048
    buffer_store_dwordx4 v[4:7], v3, s[20:23], s3 offen offset:3072
    s_endpgm""")
    a.L("P_T1")
    a.I(f"s_sub_u32 s3, s3, {B1}")
    sdiv(a,32,3,576)
    a.I("""s_mul_i32 s33, s32, 576
    s_sub_u32 s3, s3, s33""")
    sdiv(a,33,3,18)
    a.I("""s_mul_i32 s34, s33, 18
    s_sub_u32 s34, s3, s34       ; ks
    s_cmp_eq_u32 s32, 1
    s_cselect_b32 s18, s6, s4
    s_cselect_b32 s19, s7, s5
    s_cmp_eq_u32 s32, 2
    s_cselect_b32 s18, s8, s18
    s_cselect_b32 s19, s9, s19""")
    srd(a,24,18,576*8192)
    a.I("""v_lshlrev_b32 v3, 16, v1
    v_lshl_add_u32 v3, v2, 4, v3
    s_lshl_b32 s35, s34, 18
    s_lshl_b32 s36, s33, 8
    s_add_u32 s35, s35, s36""")
    for t in range(8):
        a.I(f"buffer_load_dwordx4 v[{8+4*t}:{11+4*t}], v3, s[24:27], s35 offen")
        if t<7: a.I("s_add_u32 s35, s35, 8192")
    a.I(f"""v_lshrrev_b32 v4, 2, v2
    v_mul_u32_u24 v4, 36864, v4
    v_lshl_add_u32 v4, v1, 8, v4
    v_and_b32 v5, 3, v2
    v_lshl_add_u32 v4, v5, 6, v4
    s_mul_i32 s36, s33, 3
    s_add_u32 s36, s36, s32
    s_mul_i32 s36, s36, 147456
    s_lshl_b32 s37, s34, 10
    s_add_u32 s36, s36, s37
    s_add_u32 s36, s36, {WIMG}
    s_add_u32 s37, s36, 18432
    s_waitcnt vmcnt(0)""")
    transpose8(a,8,4,40)
    a.I("""s_cmp_eq_u32 s32, 2
    s_cbranch_scc1 P_T1v""")
    for j in range(8):
        tau=(j>>1)&1; nl=2*(j>>2)+(j&1)
        a.I(f"buffer_store_dwordx4 v[{40+4*j}:{43+4*j}], v4, s[20:23], s{36+tau} offen offset:{nl*16}")
    a.I("s_endpgm")
    a.L("P_T1v")
    for j in range(8):
        tau=j>>2; nl=j&3
        a.I(f"buffer_store_dwordx4 v[{40+4*j}:{43+4*j}], v4, s[20:23], s{36+tau} offen offset:{nl*16}")
    a.I("s_endpgm")
    a.L("P_T2")
    srd(a,24,10,4096*1152)
    a.I(f"""s_sub_u32 s3, s3, {B2}
    s_lshr_b32 s32, s3, 4          ; h
    s_lshr_b32 s33, s3, 2
    s_and_b32 s33, s33, 3          ; ks
    s_and_b32 s34, s3, 3           ; w
    v_lshrrev_b32 v3, 1, v1
    v_lshlrev_b32 v3, 4, v3
    v_and_b32 v4, 1, v1
    v_lshl_add_u32 v3, v4, 2, v3
    v_mul_u32_u24 v3, 1152, v3
    v_lshl_add_u32 v5, v2, 1, v3
    v_lshl_add_u32 v3, v2, 4, v3
    s_mul_i32 s35, s32, 147456
    s_mul_i32 s36, s33, 36864
    s_add_u32 s36, s35, s36
    s_mul_i32 s37, s34, 288
    s_add_u32 s36, s36, s37""")
    offs=[0,1,8,9,2,3,10,11]
    for t in range(8):
        a.I(f"""s_add_u32 s37, s36, {offs[t]*1152}
        buffer_load_dwordx4 v[{8+4*t}:{11+4*t}], v3, s[24:27], s37 offen
        buffer_load_ushort v{72+t}, v5, s[24:27], s37 offen offset:256""")
    a.I(f"""v_lshlrev_b32 v4, 4, v0
    s_mul_i32 s37, s34, 36864
    s_add_u32 s35, s35, s37
    s_lshl_b32 s37, s33, 10
    s_add_u32 s35, s35, s37
    s_add_u32 s35, s35, {WOC}
    s_waitcnt vmcnt(0)""")
    transpose8(a,8,4,40)
    for p in range(4):
        a.I(f"v_lshl_or_b32 v{80+p}, v{73+2*p}, 16, v{72+2*p}")
    for j in range(8):
        a.I(f"""buffer_store_dwordx4 v[{40+4*j}:{43+4*j}], v4, s[20:23], s35 offen
        s_add_u32 s35, s35, 4096""")
    a.I("buffer_store_dwordx4 v[80:83], v4, s[20:23], s35 offen\ns_endpgm")
    a.L("P_T3")
    srd(a,24,10,4096*1152)
    a.I(f"s_sub_u32 s3, s3, {B3}")
    sdiv(a,32,3,9)
    a.I(f"""s_mul_i32 s33, s32, 9
    s_sub_u32 s33, s3, s33         ; qg
    s_lshl_b32 s34, s33, 4
    v_add_u32 v5, s34, v2          ; Q
    v_mul_u32_u24 v3, 9216, v1
    v_lshl_add_u32 v3, v5, 3, v3
    s_mul_i32 s35, s32, 36864""")
    for t in range(8):
        a.I(f"buffer_load_dwordx2 v[{8+2*t}:{9+2*t}], v3, s[24:27], s35 offen")
        if t<7: a.I("s_add_u32 s35, s35, 1152")
    a.I(f"""v_mul_u32_u24 v6, 171, v5
    v_lshrrev_b32 v6, 11, v6       ; cb
    v_mul_u32_u24 v7, 12, v6
    v_sub_u32 v7, v5, v7           ; rem
    v_mul_u32_u24 v24, 11, v7
    v_lshrrev_b32 v24, 5, v24      ; mu
    v_mul_u32_u24 v25, 3, v24
    v_sub_u32 v25, v7, v25         ; tau
    v_mul_u32_u24 v4, 393216, v6
    v_lshl_add_u32 v4, v25, 10, v4
    v_lshl_add_u32 v4, v1, 8, v4
    v_lshl_add_u32 v4, v24, 6, v4
    s_mul_i32 s35, s32, 3072
    s_add_u32 s35, s35, {WOT}
    s_waitcnt vmcnt(0)""")
    transpose8(a,8,2,40)
    for j in range(4):
        a.I(f"buffer_store_dwordx4 v[{40+4*j}:{43+4*j}], v4, s[20:23], s35 offen offset:{16*j}")
    a.I("s_endpgm")
    a.L("P_T4")
    a.I(f"""s_sub_u32 s3, s3, {B4}
    s_cmp_ge_u32 s3, 648
    s_cselect_b32 s38, 1, 0          ; inv?
    s_cselect_b32 s39, 648, 0
    s_sub_u32 s3, s3, s39            ; f""")
    sdiv(a,32,3,18)
    a.I(f"""s_mul_i32 s33, s32, 18
    s_sub_u32 s33, s3, s33           ; ks
    s_lshl_b32 s34, s33, 5
    v_lshl_add_u32 v3, v1, 3, s34
    s_mov_b32 s40, {-(-(1<<32)//576)}
    s_mov_b32 s41, 0x3ae38e39        ; 1/576
    s_cmp_eq_u32 s38, 1
    s_cbranch_scc1 P_T4i
    s_lshl_b32 s34, s32, 4
    v_add_u32 v4, s34, v2            ; c (fixed)""")
    def elem(dst, d, c, wgt):
        a.I(f"""v_cmp_lt_u32 vcc, 288, v{c}
        v_subrev_u32 v30, 288, v{c}
        v_cndmask_b32 v30, v{c}, v30, vcc
        v_mov_b32 v31, 144
        v_cndmask_b32 v31, 0, v31, vcc
        v_mad_u32_u24 v30, v30, v{d}, v31
        v_mul_hi_u32 v31, v30, s40
        v_mul_u32_u24 v31, 576, v31
        v_sub_u32 v30, v30, v31
        v_cvt_f32_u32 v30, v30
        v_mul_f32 v30, s41, v30
        v_cos_f32 v{dst}, v30""")
        if wgt:
            a.I(f"""v_cmp_eq_u32 vcc, 0, v{c}
            v_cmp_eq_u32 s[42:43], v{c}, v34
            s_or_b64 vcc, vcc, s[42:43]
            v_add_f32 v31, v{dst}, v{dst}
            v_cndmask_b32 v{dst}, v31, v{dst}, vcc""")
    for t in range(8):
        a.I(f"v_add_u32 v5, {t}, v3")
        elem(8+t,5,4,False)
    a.I(f"s_mov_b32 s35, {FIMG}\ns_branch P_T4s")
    a.L("P_T4i")
    sdiv(a,36,32,3)
    a.I(f"""s_mul_i32 s37, s36, 3
    s_sub_u32 s37, s32, s37          ; tau
    s_mul_i32 s36, s36, 48
    s_lshl_b32 s37, s37, 2
    s_add_u32 s36, s36, s37
    v_lshrrev_b32 v4, 2, v2
    v_mul_u32_u24 v4, 12, v4
    v_and_b32 v5, 3, v2
    v_add3_u32 v4, v4, v5, s36       ; d (fixed)
    v_mov_b32 v34, 288""")
    for t in range(8):
        a.I(f"v_add_u32 v5, {t}, v3")
        elem(8+t,4,5,True)
    a.I(f"s_mov_b32 s35, {FINV}")
    a.L("P_T4s")
    a.I("s_nop 1")
    for p in range(4):
        a.I(f"v_cvt_pk_bf16_f32 v{20+p}, v{8+2*p}, v{9+2*p}")
    a.I("""s_lshl_b32 s3, s3, 10
    s_add_u32 s35, s35, s3
    v_lshlrev_b32 v4, 4, v0
    buffer_store_dwordx4 v[20:23], v4, s[20:23], s35 offen
    s_endpgm""")
    a.L("P_T5")
    srd(a,24,12,2048*578)
    srd(a,44,14,2048*578)
    a.I(f"""s_lshr_b32 s32, s3, 7        ; kg
    s_lshr_b32 s33, s3, 6
    s_and_b32 s33, s33, 1          ; hf
    s_lshr_b32 s34, s3, 3
    s_and_b32 s34, s34, 7          ; q
    s_and_b32 s35, s3, 7
    s_lshl_b32 s36, s32, 6
    v_add_u32 v3, s36, v0          ; kd
    v_lshlrev_b32 v4, 1, v3
    s_lshl_b32 s36, s33, 5
    s_lshl_b32 s37, s34, 2
    s_add_u32 s36, s36, s37
    s_lshl_b32 s36, s36, 5         ; 32*(32hf+4q)
    s_lshl_b32 s37, s35, 2
    s_add_u32 s36, s36, s37        ; ks0
    s_mul_i32 s36, s36, 578""")
    for i in range(4):
        for k in range(4):
            a.I(f"""buffer_load_ushort v{8+4*k+i}, v4, s[24:27], s36 offen offset:{578*k}
            buffer_load_ushort v{24+4*k+i}, v4, s[44:47], s36 offen offset:{578*k}""")
        if i<3: a.I(f"s_add_u32 s36, s36, {32*578}")
    a.I(f"""v_lshlrev_b32 v5, 13, v3
    s_lshl_b32 s36, s34, 10
    s_lshl_b32 s37, s33, 9
    s_add_u32 s36, s36, s37
    s_lshl_b32 s37, s35, 6
    s_add_u32 s36, s36, s37
    s_add_u32 s36, s36, {WFI}
    v_cmp_gt_u32 vcc, 289, v3
    s_and_saveexec_b64 s[48:49], vcc
    s_waitcnt vmcnt(0)""")
    for r in range(16):
        a.I(f"v_lshl_or_b32 v{8+r}, v{24+r}, 16, v{8+r}")
    for k in range(4):
        a.I(f"buffer_store_dwordx4 v[{8+4*k}:{11+4*k}], v5, s[20:23], s36 offen offset:{16*k}")
    a.I("s_endpgm")
    a.L("P_T6")
    a.I(f"""s_sub_u32 s3, s3, {B6}
    v_and_b32 v3, 31, v0           ; l&31
    v_lshrrev_b32 v4, 5, v0        ; hf
    v_bfe_u32 v5, v3, 2, 1
    v_lshlrev_b32 v5, 5, v5
    v_lshrrev_b32 v6, 3, v3
    v_lshl_add_u32 v5, v6, 2, v5
    v_and_b32 v6, 3, v3
    v_add_u32 v5, v5, v6
    s_mov_b32 s41, 0x3a000000      ; 1/2048
    v_lshlrev_b32 v7, 4, v0
    s_cmp_ge_u32 s3, 54
    s_cbranch_scc1 P_end
    s_cmp_ge_u32 s3, 32
    s_cbranch_scc1 P_T6c
    s_cmp_ge_u32 s3, 16
    s_cbranch_scc1 P_T6b""")
    def cs(dst, ang, off):
        a.I(f"""v_add_u32 v30, {off}, v{ang}
        v_and_b32 v30, 0x7ff, v30
        v_cvt_f32_u32 v30, v30
        v_mul_f32 v30, s41, v30
        v_cos_f32 v{dst}, v30""")
    a.I("""s_lshl_b32 s32, s3, 1
    v_lshl_add_u32 v8, v4, 5, s32
    v_mul_u32_u24 v9, v8, v3
    v_add_u32 v10, v9, v3""")
    cs(12,9,0); cs(13,10,0); cs(14,9,1536); cs(15,10,1536)
    a.I(f"""s_lshl_b32 s3, s3, 10
    s_add_u32 s3, s3, {TW1}
    s_nop 0
    buffer_store_dwordx4 v[12:15], v7, s[20:23], s3 offen
    s_endpgm""")
    a.L("P_T6b")
    import struct
    sc=struct.unpack('<I',struct.pack('<f',1.0/(2048*576)))[0]
    a.I(f"""s_sub_u32 s3, s3, 16
    s_lshr_b32 s32, s3, 3
    s_lshl_b32 s32, s32, 4
    v_add_u32 v8, s32, v5          ; s2
    s_and_b32 s33, s3, 1
    s_lshl_b32 s33, s33, 1         ; r&3
    s_bfe_u32 s34, s3, 0x20001     ; (u>>1)&3 = r>>2
    s_lshl_b32 s34, s34, 3
    s_add_u32 s33, s33, s34
    v_lshl_add_u32 v11, v4, 2, s33 ; k1
    v_mul_u32_u24 v9, v8, v11
    v_add_u32 v10, v9, v8""")
    cs(12,9,0); cs(13,10,0); cs(14,9,1536); cs(15,10,1536)
    a.I(f"""s_mov_b32 s35, {sc:#x}
    s_nop 0
    v_mul_f32 v12, s35, v12
    v_mul_f32 v13, s35, v13
    v_mul_f32 v14, s35, v14
    v_mul_f32 v15, s35, v15
    s_lshl_b32 s3, s3, 10
    s_add_u32 s3, s3, {TW2}
    buffer_store_dwordx4 v[12:15], v7, s[20:23], s3 offen
    s_endpgm""")
    a.L("P_T6c")
    a.I(f"""s_sub_u32 s3, s3, 32
    s_cmp_ge_u32 s3, 6
    s_cbranch_scc1 P_T6d
    s_lshr_b32 s32, s3, 1
    s_mov_b32 s36, 0
    s_cmp_eq_u32 s32, 1
    s_cselect_b32 s36, 1536, s36
    s_cmp_eq_u32 s32, 2
    s_cselect_b32 s36, 512, s36
    s_and_b32 s33, s3, 1
    s_lshl_b32 s33, s33, 4
    v_lshl_add_u32 v8, v4, 2, s33     ; 16k+4hf
    v_lshlrev_b32 v9, 6, v3           ; a*64""")
    for t in range(8):
        a.I(f"""v_add_u32 v10, {(t&3)+8*(t>>2)}, v8
        v_mul_u32_u24 v10, v10, v9""")
        cs(12+t,10,"s36")
    a.I("s_branch P_T6s")
    a.L("P_T6d")
    a.I(f"""s_sub_u32 s32, s3, 6
    s_cmp_ge_u32 s32, 8
    s_cselect_b32 s36, 1536, 0
    s_bfe_u32 s33, s32, 0x10002       ; phi
    s_lshl_b32 s33, s33, 4
    v_add_u32 v9, s33, v5             ; a
    v_lshlrev_b32 v9, 5, v9           ; a*32
    s_and_b32 s34, s32, 3
    s_lshl_b32 s34, s34, 3
    v_lshl_add_u32 v8, v4, 5, s34     ; 32hf+8ks""")
    for t in range(8):
        a.I(f"""v_add_u32 v10, {t}, v8
        v_mul_u32_u24 v10, v10, v9""")
        cs(12+t,10,"s36")
    a.L("P_T6s")
    a.I("s_nop 1")
    for p in range(4):
        a.I(f"v_cvt_pk_bf16_f32 v{20+p}, v{12+2*p}, v{13+2*p}")
    a.I(f"""s_lshl_b32 s3, s3, 10
    s_add_u32 s3, s3, {CST}
    buffer_store_dwordx4 v[20:23], v7, s[20:23], s3 offen""")
    a.L("P_end")
    a.I("s_endpgm")
    return (name, f"; @launch kernel={name} grid=({PREP_WGS},1,1) block=(256,1,1) lds=0", kernel_desc(name, 88, 64))
```

```python
import sys
from build import *
import bstage, chain
dbg = set(int(x) for x in sys.argv[2].split(',')) if len(sys.argv)>2 else False
out = sys.argv[1]
ks=[prep.gen_prep,
    lambda a: chain.gen_la(a,"la0_kernel",0,None,X1,dbg),
    lambda a: chain.gen_la(a,"la1_kernel",1,X2,X3,False),
    lambda a: bstage.gen_l4(a,"l4a_kernel",X1), lambda a: bstage.gen_l4(a,"l4b_kernel",X3),
    lambda a: bstage.gen_l5(a,"l5_kernel"),
    lambda a: bstage.gen_l6(a,"l6a_kernel",X1,X2), lambda a: bstage.gen_l6(a,"l6b_kernel",X3,None)]
build(ks,["prep_kernel","la0_kernel","l4a_kernel","l5_kernel","l6a_kernel","la1_kernel","l4b_kernel","l5_kernel","l6b_kernel"],out)
```

```python
import re

REG = re.compile(r'^(-|\|)?(abs\()?([vas])(?:(\d+)|\[(\d+):(\d+)\])\)?\|?$')
TRANS = ('v_exp_f32','v_log_f32','v_rcp_f32','v_rsq_f32','v_sqrt_f32','v_sin_f32','v_cos_f32','v_rcp_iflag_f32')

def regs_of(tok):
    tok = tok.strip()
    if tok in ('vcc',): return {('s','vcc_lo'),('s','vcc_hi')}
    if tok in ('vcc_lo','vcc_hi'): return {('s',tok)}
    if tok == 'exec': return {('s','exec_lo'),('s','exec_hi')}
    if tok in ('exec_lo','exec_hi'): return {('s',tok)}
    if tok == 'm0': return {('s','m0')}
    m = REG.match(tok)
    if not m: return set()
    f = m.group(3)
    if m.group(4) is not None: return {(f,int(m.group(4)))}
    return {(f,i) for i in range(int(m.group(5)), int(m.group(6))+1)}

def split_ops(s):
    out=[]; depth=0; cur=''
    for ch in s:
        if ch in '[(': depth+=1
        if ch in '])': depth-=1
        if ch==',' and depth==0:
            out.append(cur.strip()); cur=''
        else: cur+=ch
    if cur.strip(): out.append(cur.strip())
    return out

class Ins:
    def __init__(self, text):
        self.text = text
        t = text.split(';')[0].strip()
        parts = t.split(None,1)
        self.mn = mn = parts[0]
        rest = parts[1] if len(parts)>1 else ''
        ops = split_ops(rest)
        self.mods = ''
        if ops:
            l = ops[-1].split(None,1)
            ops[-1] = l[0]
            if len(l)>1: self.mods = l[1]
        self.ops = ops
        self.is_mfma = mn.startswith('v_mfma') or mn.startswith('v_smfmac')
        self.is_valu = mn.startswith('v_') and not self.is_mfma
        self.is_vmem = mn.startswith('buffer_') or mn.startswith('global_')
        self.is_ds = mn.startswith('ds_')
        self.is_salu = mn.startswith('s_')
        self.is_smem = mn.startswith('s_load') or mn.startswith('s_memtime') or mn.startswith('s_memrealtime') or mn.startswith('s_atomic')
        self.is_trans = any(mn.startswith(x) for x in TRANS)
        self.is_dpp = ('_dpp' in mn) or ('row_' in rest) or ('quad_perm' in rest)
        self.is_dot = mn.startswith('v_dot')
        self.is_perml = mn.startswith('v_permlane')
        self.is_rl = mn.startswith('v_readlane') or mn.startswith('v_readfirstlane')
        self.passes = 0
        self.rd=set(); self.wr=set(); self.srcC=set(); self.srcAB=set(); self.stdata=set(); self.lddst=set()
        R = [regs_of(o) for o in ops]
        if self.is_mfma:
            self.passes = 8 if '32x32' in mn else 4
            self.wr = set(R[0])
            if mn.startswith('v_smfmac'):
                self.srcAB = R[1]|R[2]|R[3]; self.srcC = set(R[0])
            else:
                self.srcAB = R[1]|R[2]; self.srcC = set(R[3])
            self.rd = self.srcAB|self.srcC
        elif self.is_vmem:
            lds = ' lds' in (' '+self.mods) or '_lds_' in mn
            if mn in ('buffer_wbl2','buffer_inv'):
                pass
            elif lds:
                for r in R: self.rd|=r
                self.rd|={('s','m0')}
            elif '_load_' in mn:
                self.wr=set(R[0]); self.lddst=set(R[0])
                for r in R[1:]: self.rd|=r
            elif '_store_' in mn:
                for r in R: self.rd|=r
                d = R[0] if mn.startswith('buffer_') else R[1]
                if 'x3' in mn or 'x4' in mn: self.stdata=set(d)
            elif '_atomic_' in mn:
                ret = 'sc0' in self.mods
                if mn.startswith('buffer_'):
                    for r in R: self.rd|=r
                    if ret: self.wr=set(R[0]); self.lddst=set(R[0])
                else:
                    if ret:
                        self.wr=set(R[0]); self.lddst=set(R[0])
                        for r in R[1:]: self.rd|=r
                    else:
                        for r in R: self.rd|=r
            else: raise ValueError(text)
        elif self.is_ds:
            if mn.startswith('ds_read') or mn.startswith('ds_bpermute') or mn.startswith('ds_permute') or mn.startswith('ds_swizzle'):
                self.wr=set(R[0]); self.lddst=set(R[0])
                for r in R[1:]: self.rd|=r
            else:
                for r in R: self.rd|=r
        elif self.is_valu:
            if mn.startswith('v_cmp'):
                self.wr=set(R[0])
                if mn.startswith('v_cmpx'): self.wr|=regs_of('exec')
                for r in R[1:]: self.rd|=r
            elif self.is_perml and 'swap' in mn:
                self.wr=R[0]|R[1]; self.rd=R[0]|R[1]
            elif mn.startswith('v_add_co') or mn.startswith('v_sub_co') or mn.startswith('v_addc_co') or mn.startswith('v_subb_co') or mn.startswith('v_mad_u64'):
                self.wr=R[0]|R[1]
                for r in R[2:]: self.rd|=r
            elif mn == 'v_nop':
                pass
            else:
                self.wr=set(R[0])
                for r in R[1:]: self.rd|=r
                if mn.startswith('v_fmac') or mn.startswith('v_pk_fmac') or mn.startswith('v_dot2c') or mn.startswith('v_writelane') or self.is_dpp:
                    self.rd|=R[0]
        elif self.is_salu:
            if mn.startswith('s_cmp') or mn.startswith('s_bitcmp'):
                for r in R: self.rd|=r
            elif mn.startswith('s_cbranch') or mn in ('s_branch','s_barrier','s_endpgm','s_nop','s_waitcnt','s_sleep','s_setprio'):
                pass
            elif 'saveexec' in mn:
                self.wr=R[0]|regs_of('exec'); self.rd=R[1]|regs_of('exec')
            else:
                if R: self.wr=set(R[0])
                for r in R[1:]: self.rd|=r
                if mn.startswith('s_addk') or mn.startswith('s_mulk') or mn.startswith('s_atomic'): self.rd|=R[0]
                if self.is_smem: self.lddst=set(R[0])
    def states(self):
        if self.mn=='s_nop': return int(self.ops[0],0)+1
        return 1

def legacy(i): return ('16x16x16' in i.mn) or ('32x32x8' in i.mn)
def vg(s): return {r for r in s if r[0] in 'va'}
def sg(s): return {r for r in s if r[0]=='s'}

def need(p, c):
    n=0
    if p.is_mfma:
        big = p.passes==8
        D = p.wr
        if c.is_mfma:
            if D & c.srcAB: n=max(n, 12 if big else 8)
            if D & c.srcC:
                if not (c.srcC==D and c.passes==p.passes and legacy(c)==legacy(p)): n=max(n, 10 if big else 6)
            elif D & c.wr:
                if c.passes!=p.passes or c.wr!=D: n=max(n, 10 if big else 6)
        elif c.is_valu:
            if D & (c.rd|c.wr): n=max(n, 12 if big else 8)
            if p.srcC & c.wr: n=max(n, 7 if big else 3)
        elif c.is_vmem or c.is_ds:
            if D & (c.rd|c.wr): n=max(n, 12 if big else 8)
    if p.is_valu:
        W = vg(p.wr); SW = sg(p.wr)
        if c.is_mfma and (W & c.rd): n=max(n,2)
        if c.is_valu:
            if p.is_trans and not c.is_trans and (W & c.rd): n=max(n,1)
            if c.is_dpp and (W & c.rd): n=max(n,2)
            if c.is_perml and (W & c.rd): n=max(n,2)
            if c.is_rl and (W & c.rd): n=max(n,1)
            if SW & c.rd: n=max(n, 4 if (c.is_rl or c.mn.startswith('v_writelane')) else 2)
            if p.is_dot and (W & (c.rd|c.wr)):
                if not (c.mn==p.mn and not (W & (regs_of(c.ops[1])|regs_of(c.ops[2])))): n=max(n,3)
            if ('op_sel' in p.mods and not p.mn.startswith('v_pk')) or 'sdwa' in p.mn or 'dst_sel' in p.mods:
                if W & (c.rd|c.wr): n=max(n,1)
        if p.is_dot and (c.is_vmem or c.is_ds or c.is_mfma) and (W & c.rd): n=max(n,3)
        if c.is_vmem and (SW & c.rd): n=max(n,5)
        if ('s','exec_lo') in SW:
            if c.is_dpp: n=max(n,5)
            if c.is_mfma or c.is_rl or c.is_perml: n=max(n,4)
    if p.stdata:
        if c.wr & p.stdata: n=max(n, 2 if c.is_valu else 1)
    if p.is_salu and ('s','m0') in p.wr and (c.is_vmem or c.is_ds) and ('s','m0') in c.rd: n=max(n,1)
    return n

class Asm:
    def __init__(self):
        self.items=[]
        self.uid=0
    def I(self, fmt, *a):
        for line in fmt.split('\n'):
            line=line.strip()
            if not line or line.startswith(';'): continue
            if line.endswith(':'): self.items.append(('l',line[:-1])); continue
            self.items.append(('i',Ins(line)))
    def L(self, name): self.items.append(('l',name))
    def raw(self, s): self.items.append(('r',s))
    def lab(self, p='L'):
        self.uid+=1; return f"{p}_{self.uid}"
    def pad(self):
        out=[]; win=[]
        for it in self.items:
            if it[0]=='r':
                out.append(it); win=[]; continue
            if it[0]=='l':
                out.append(it); continue
            c=it[1]
            while True:
                req=0; d=0
                for wi in range(len(win)-1,-1,-1):
                    p=win[wi]
                    n=need(p,c)
                    if n>d and p.is_mfma:
                        t=0; lm=0; lp=p.passes; prev=p
                        for x in win[wi+1:]+[c]:
                            t+=4*prev.states()
                            if x.is_mfma:
                                t=max(t,lm+4*lp); lm=t; lp=x.passes
                            prev=x
                        r=n-(t//4-1)
                    else:
                        r=n-d
                    if r>req: req=r
                    d+=p.states()
                    if d>=20: break
                if req<=0: break
                k=min(req,16)
                nop=Ins(f"s_nop {k-1}"); out.append(('i',nop)); win.append(nop)
            out.append(it); win.append(c)
            if c.mn in ('s_branch','s_endpgm'): win=[]
            win=win[-24:]
        self.items=out
    def check_branches(self):
        pos={n:i for i,(k,n) in enumerate(self.items) if k=='l'}
        errs=[]
        for i,(k,c) in enumerate(self.items):
            if k!='i' or not (c.mn.startswith('s_cbranch') or c.mn=='s_branch'): continue
            tgt=c.ops[0]
            if tgt not in pos: errs.append(f"unknown label {tgt}"); continue
            win=[]; j=i
            while j>=0 and len(win)<24:
                kk,x=self.items[j]
                if kk=='r': break
                if kk=='i':
                    if j!=i and x.mn in ('s_branch','s_endpgm'): break
                    win.insert(0,x)
                j-=1
            j=pos[tgt]; dd=0
            while j<len(self.items) and dd<20:
                kk,x=self.items[j]
                if kk=='r': break
                if kk=='i':
                    d=dd
                    for p in reversed(win):
                        if need(p,x)>d: errs.append(f"hazard across branch {c.text} : {p.text} -> {x.text} need {need(p,x)} have {d}")
                        d+=p.states()
                        if d>=20: break
                    dd+=x.states()
                    if x.mn in ('s_branch','s_endpgm'): break
                j+=1
        return errs
    def check_waits(self, start=0, end=None):
        vm=[]; lg=[]; errs=[]
        for k,c in self.items[start:end]:
            if k=='r': vm=[]; lg=[]; continue
            if k!='i': continue
            if c.mn=='s_waitcnt':
                t=c.text
                m=re.search(r'vmcnt\((\d+)\)',t)
                if m:
                    n=int(m.group(1)); vm=vm[len(vm)-n:] if n>0 and len(vm)>n else (vm if n>0 else [])
                m=re.search(r'lgkmcnt\((\d+)\)',t)
                if m:
                    n=int(m.group(1))
                    if n>0 and any(x.is_smem and 'memtime' not in x.mn for x in lg): errs.append("counted lgkmcnt with SMEM outstanding: "+t)
                    lg=lg[len(lg)-n:] if n>0 and len(lg)>n else (lg if n>0 else [])
                continue
            touch=c.rd|c.wr
            for q in (vm,lg):
                for x in q:
                    if x.lddst & touch and 'nowarn' not in c.text:
                        errs.append(f"pending load {x.text}  touched by {c.text}")
            if c.is_vmem and c.mn not in (): vm.append(c)
            if c.is_ds or (c.is_smem and 'memtime' not in c.mn): lg.append(c)
            if c.mn in ('s_branch','s_endpgm'): vm=[]; lg=[]
        return errs
    def text(self):
        o=[]
        for k,x in self.items:
            if k=='i': o.append('    '+x.text)
            elif k=='l': o.append(x+':')
            else: o.append(x)
        return '\n'.join(o)+'\n'

def vr(a,n=1): return f"v{a}" if n==1 else f"v[{a}:{a+n-1}]"
def ar(a,n=1): return f"a{a}" if n==1 else f"a[{a}:{a+n-1}]"
def sr(a,n=1): return f"s{a}" if n==1 else f"s[{a}:{a+n-1}]"
```

```python
from chaindefs import *

def chain_setup(a, P, layer):
    flg=FLAGS+layer*FLAGL
    a.L(P+"A")
    a.I(f"""v_and_b32 v10, 15, v0
    v_lshrrev_b32 v11, 4, v0
    v_mov_b32 v{IDX}, 0x4444
    v_mov_b32 v12, 0xeeee
    v_and_b32 v13, 2, v0
    v_cmp_eq_u32 vcc, 2, v13
    v_cndmask_b32 v{IDX}, v{IDX}, v12, vcc
    s_lshl_b32 s8, s5, 9
    v_lshl_add_u32 v12, v10, 5, s8
    v_lshl_add_u32 v13, v11, 2, v12
    v_add_u32 v13, {TQ}, v13
    v_lshl_add_u32 v14, v11, 3, v12
    v_add_u32 v14, {TK}, v14
    v_lshl_or_b32 v{PK1}, v14, 16, v13
    v_lshlrev_b32 v13, 7, v11
    v_bfe_u32 v12, v0, 2, 1
    v_lshl_add_u32 v13, v12, 5, v13
    v_bfe_u32 v12, v0, 3, 1
    v_lshl_add_u32 v13, v12, 4, v13
    v_and_b32 v12, 1, v0
    v_lshl_add_u32 v13, v12, 3, v13
    v_add_u32 v13, {TQ}, v13
    v_lshlrev_b32 v14, 8, v11
    v_bfe_u32 v12, v0, 2, 2
    v_lshl_add_u32 v14, v12, 5, v14
    v_and_b32 v12, 3, v0
    v_lshl_add_u32 v14, v12, 3, v14
    v_add_u32 v14, {TK}, v14
    v_lshl_or_b32 v{PK2}, v14, 16, v13
    v_lshrrev_b32 v12, 1, v11
    v_lshlrev_b32 v13, 4, v12
    v_bfe_u32 v12, v0, 1, 2
    v_lshl_add_u32 v13, v12, 2, v13
    v_and_b32 v12, 1, v11
    v_lshl_add_u32 v13, v12, 1, v13
    v_and_b32 v12, 1, v0
    v_add_u32 v13, v13, v12
    v_lshl_add_u32 v13, v13, 4, s8
    v_add_u32 v13, {OL}, v13
    s_lshr_b32 s9, s4, 3
    s_mul_i32 s9, s9, 18
    s_and_b32 s10, s4, 7
    s_add_u32 s9, s9, s10
    s_lshl_b32 s10, s5, 3
    s_add_u32 s9, s9, s10                ; 18*(h>>3)+(h&7)+8w
    s_lshr_b32 s10, s4, 1
    s_mul_i32 s10, s10, 18
    s_and_b32 s11, s4, 1
    s_add_u32 s10, s10, s11
    s_add_u32 s10, s10, 16               ; 18*(h>>1)+16+(h&1)
    s_cmp_lt_u32 s5, 2
    s_cselect_b32 s40, s9, s10           ; u
    s_cselect_b32 s41, 1, 0
    s_cmp_eq_u32 s5, 2
    s_cselect_b32 s9, 1, 0
    s_cmp_lt_u32 s4, 8
    s_cselect_b32 s10, 1, 0
    s_and_b32 s9, s9, s10
    s_or_b32 s41, s41, s9
    s_min_u32 s40, s40, 71""")
    sdiv(a,42,40,18)
    a.I(f"""s_mul_i32 s9, s42, 18
    s_sub_u32 s43, s40, s9               ; lambda
    v_and_b32 v18, 7, v10
    s_cmp_ge_u32 s43, 16
    s_cbranch_scc1 {P}A_u8
    s_lshl_b32 s44, s42, 7
    s_and_b32 s9, s43, 1
    s_lshl_b32 s9, s9, 5
    s_add_u32 s44, s44, s9
    s_lshr_b32 s9, s43, 3
    s_lshl_b32 s9, s9, 6
    s_add_u32 s44, s44, s9
    v_lshl_add_u32 v14, v18, 2, s44
    s_bfe_u32 s9, s43, 0x20001
    v_mov_b32 v15, s9                    ; g_src
    s_branch {P}A_uj""")
    a.L(P+"A_u8")
    a.I(f"""s_lshl_b32 s44, s42, 4
    s_add_u32 s44, s44, 512
    v_and_b32 v12, 3, v10
    v_lshl_add_u32 v14, v12, 2, s44
    s_sub_u32 s9, s43, 16
    s_lshl_b32 s9, s9, 1
    v_lshrrev_b32 v15, 2, v18
    v_add_u32 v15, s9, v15""")
    a.L(P+"A_uj")
    a.I("""v_and_b32 v12, 2, v11
    v_add_u32 v14, v14, v12              ; c = c0 + 2*(g>>1)""")
    a.I(f"""v_lshrrev_b32 v16, 4, v14
    v_lshlrev_b32 v16, 8, v16            ; (c>>4)*256
    v_lshl_add_u32 v16, v15, 6, v16
    v_bfe_u32 v12, v14, 1, 1
    v_lshl_add_u32 v16, v12, 5, v16
    v_and_b32 v12, 1, v11
    v_lshl_add_u32 v16, v12, 4, v16
    v_bfe_u32 v12, v14, 2, 2
    v_lshl_add_u32 v16, v12, 2, v16
    v_lshl_or_b32 v{PK3}, v16, 16, v13
    v_lshrrev_b32 v12, 3, v0
    v_lshlrev_b32 v13, 12, v12
    v_and_b32 v12, 7, v0
    v_lshl_add_u32 v13, v12, 4, v13
    v_lshrrev_b32 v12, 5, v0
    v_lshlrev_b32 v14, 12, v12
    v_and_b32 v12, 31, v0
    v_lshl_add_u32 v14, v12, 2, v14
    v_mov_b32 v{PK4}, v13
    v_mov_b32 v19, v14
    ; Asel -> v[20:23]
    v_mov_b32 v12, 0x3f80
    v_mov_b32 v13, 0x3f800000
    v_and_b32 v14, 4, v10
    v_cmp_eq_u32 vcc, 4, v14
    v_cndmask_b32 v12, v12, v13, vcc
    v_and_b32 v14, 2, v10
    v_cmp_eq_u32 vcc, 0, v14
    v_cndmask_b32 v12, 0, v12, vcc
    v_lshrrev_b32 v13, 3, v10
    v_lshlrev_b32 v13, 1, v13
    v_and_b32 v14, 1, v10
    v_add_u32 v13, v13, v14
    v_cmp_eq_u32 vcc, 0, v13
    v_cndmask_b32 v20, 0, v12, vcc
    v_cmp_eq_u32 vcc, 1, v13
    v_cndmask_b32 v21, 0, v12, vcc
    v_cmp_eq_u32 vcc, 2, v13
    v_cndmask_b32 v22, 0, v12, vcc
    v_cmp_eq_u32 vcc, 3, v13
    v_cndmask_b32 v23, 0, v12, vcc
    v_lshrrev_b32 v12, 2, v10
    v_lshlrev_b32 v12, 1, v12
    v_and_b32 v13, 1, v0
    v_add_u32 v12, v12, v13
    v_mul_u32_u24 v17, 1152, v12
    v_lshl_add_u32 v17, v11, 5, v17
    v_bfe_u32 v12, v0, 1, 1
    v_lshl_add_u32 v17, v12, 2, v17
    v_lshlrev_b32 v{L16}, 4, v0
    v_add_u32 v{KVR}, {KVL}, v{L16}
    s_mul_i32 s9, s5, {WLW}
    s_add_u32 s45, s9, {WLB}
    v_add_u32 v{WL}, s45, v{L16}
    s_load_dwordx2 s[8:9], s[0:1], {KA['mem0']}
    s_waitcnt lgkmcnt(0)""")
    srd(a,12,8,9216)
    for k in range(9):
        for j in range(4):
            a.I(f"buffer_load_dword v{24+4*k+j}, v17, s[12:15], 0 offen offset:{128*k+8*j}")
    a.I(f"""s_mul_i32 s30, s4, {3*147456}
    s_mul_i32 s9, s5, 36864
    s_add_u32 s30, s30, s9
    s_add_u32 s30, s30, {WIMG}
    s_mul_i32 s31, s4, 147456
    s_add_u32 s31, s31, s9
    s_add_u32 s31, s31, {WOC}
    s_mul_i32 s32, s5, {18*4096}
    s_lshl_b32 s9, s4, 7
    s_add_u32 s32, s32, s9
    s_add_u32 s32, s32, {PART}
    s_lshl_b32 s33, s40, 12
    s_add_u32 s33, s33, {PART}
    s_mul_i32 s34, s5, 2304
    s_mov_b32 s35, {SCL}
    s_mov_b32 s48, {SCL}
    s_mov_b32 s49, {SCL}
    s_lshl_b32 s36, s4, 7
    s_add_u32 s36, s36, {PART}
    s_lshl_b32 s52, s5, 16
    s_mov_b32 s53, 0
    s_add_u32 s50, s36, {2*PSLOT}
    s_waitcnt vmcnt(0)""")
    a.I(f"""s_or_b32 s9, s4, s5
    s_cmp_lg_u32 s9, 0
    s_cbranch_scc1 {P}A_nm
    s_mov_b32 s9, {MEMB}""")
    for k in range(9):
        a.I(f"buffer_store_dwordx4 v[{24+4*k}:{27+4*k}], v{L16}, s[20:23], s9 offen sc1\ns_add_u32 s9, s9, 1024")
    a.L(P+"A_nm")
    a.I(f"ds_write_b128 v{L16}, v[20:23] offset:{SPARE}")
    order=U1+UD+UO
    for u in order:
        if u in L2U: continue
        base=30 if u[0]=='p' else 31
        a.I(f"s_add_u32 s9, s{base}, {uoff(u)}")
        if u in LDSU:
            j=LDSU.index(u)
            a.I(f"""s_add_u32 m0, s45, {(j+1)*2048}
            s_nop 0
            buffer_load_dwordx4 v{L16}, s[20:23], s9 offen lds
            buffer_load_dwordx4 v{L16}, s[20:23], s9 offen offset:1024 lds""")
        else:
            a.I(f"""buffer_load_dwordx4 {rtxt(u,0)}, v{L16}, s[20:23], s9 offen
            buffer_load_dwordx4 {rtxt(u,1)}, v{L16}, s[20:23], s9 offen offset:1024""")
    a.I(f"""v_mov_b32 v8, -1
    v_mov_b32 v9, -1
    v_mov_b32 v10, -1
    v_mov_b32 v11, -1
    v_mov_b32 v12, v{PK4}
    v_mov_b32 v13, v19""")
    for sl in range(1):
        a.I(f"""s_add_u32 s9, s32, {sl*PSLOT}
        buffer_store_dwordx4 v[8:11], v12, s[20:23], s9 offen sc1
        s_add_u32 s9, s9, {8*4096}
        buffer_store_dwordx4 v[8:11], v12, s[20:23], s9 offen sc1
        s_add_u32 s9, s9, {8*4096}
        buffer_store_dword v8, v13, s[20:23], s9 offen sc1""")
    a.I(f"""s_lshl_b32 s9, s4, 2
    s_add_u32 s9, s9, s5
    s_mul_i32 s9, s9, 288
    s_add_u32 s9, s9, {MEMB}
    s_cmp_lt_u32 s4, 8
    s_cselect_b32 s9, {SCR}, s9
    s_mov_b64 exec, 0x3ffff
    buffer_store_dwordx4 v[8:11], v{L16}, s[20:23], s9 offen sc1
    s_lshl_b32 s54, s4, 2
    s_add_u32 s54, s54, {HINT}
    s_and_b32 s55, s4, 7
    s_lshl_b32 s55, s55, 8
    s_add_u32 s55, s55, {HINT}
    s_mov_b64 exec, 0xff
    v_lshlrev_b32 v12, 4, v{L16}
    v_mov_b32 v13, 0
    buffer_store_dword v13, v12, s[20:23], s54 offen sc1
    s_mov_b64 exec, -1
    s_waitcnt vmcnt(0) lgkmcnt(0)
    s_barrier""")
    a.I(f"""v_mov_b32 v8, 40
    v_mov_b32 v9, 1
    s_cmp_lg_u32 s5, 0
    s_cbranch_scc1 {P}A_bw
    s_mov_b64 exec, 1
    global_atomic_add v8, v9, s[28:29]
    s_mov_b64 exec, -1""")
    a.L(P+"A_bw")
    a.I(f"""v_mov_b32 v8, 36
    global_load_dwordx2 v[10:11], v8, s[28:29] sc1
    s_waitcnt vmcnt(0)
    v_readfirstlane_b32 s9, v11
    v_readfirstlane_b32 s10, v10
    s_cmp_ge_u32 s9, 32
    s_cbranch_scc1 {P}A_bd""")
    spin_tail(a,P+"A_bw",None,sleep=1)
    a.L(P+"A_bd")
    a.I(f"""s_lshl_b32 s37, s4, 13
    s_add_u32 s37, s37, {flg}
    s_lshl_b32 s38, s4, 21
    s_lshl_b32 s9, s5, 11
    s_add_u32 s38, s38, s9
    s_add_u32 s38, s38, {KV}             ; K src (s=0) + w*2048
    s_add_u32 s39, s9, {KVL}
    v_mov_b32 v8, 0""")
    a.L(P+"A_f0")
    a.I(f"""buffer_load_dword v9, v8, s[20:23], s37 offen sc1
    s_waitcnt vmcnt(0)
    v_readfirstlane_b32 s9, v9
    s_cmp_eq_u32 s9, 1
    s_cbranch_scc1 {P}A_f0d""")
    spin_tail(a,P+"A_f0",None,sleep=1)
    a.L(P+"A_f0d")
    a.I("s_mov_b32 m0, s39\ns_nop 0")
    for j in range(2): a.I(f"buffer_load_dwordx4 v{L16}, s[20:23], s38 offen offset:{1024*j} sc1 lds")
    a.I(f"""s_add_u32 s37, s37, 128
    s_xor_b32 s39, s39, 8192
    s_mov_b32 s56, 0
    s_mov_b32 s6, 0                      ; step
    s_lshl_b32 s57, s4, 21
    s_lshl_b32 s46, s5, 10
    s_add_u32 s57, s57, s46
    s_add_u32 s57, s57, {KVM-4096}
    s_mov_b32 s7, 0                      ; tag
    s_lshl_b32 s46, s5, 11
    s_add_u32 s34, s46, {MEMB+1024}
    s_add_u32 s11, s32, {8*4096}
    s_add_u32 s12, s32, {16*4096}
    s_lshr_b32 s52, s5, 1
    s_lshl_b32 s52, s52, 12
    s_add_u32 s58, s52, 2048
    s_cmp_eq_u32 s5, 3
    s_cselect_b32 s52, 8192, s52
    s_cselect_b32 s58, 8192, s58
    s_add_u32 s47, s31, {L2T*4096}
    s_cmp_eq_u32 s5, 1
    s_cselect_b32 s40, 1, 0
    s_cmp_eq_u32 s41, 0
    s_cselect_b32 s40, 2, s40
    s_waitcnt vmcnt(0)
    s_cmp_eq_u32 s10, 0
    s_cbranch_scc0 {P}S_entry
    s_branch {P}F_entry""")

from chainloop import chain_loop

def gen_la(a, name, layer, xsrc, xdst, dbg=False):
    P=name[:3]+"_"
    kernel_begin(a,name)
    a.I(f"""s_cmp_ge_u32 s2, 256
    s_cbranch_scc1 {P}end
    s_load_dwordx2 s[16:17], s[0:1], {KA['ws']}
    s_load_dwordx2 s[28:29], s[0:1], {KA['dbg']}
    s_load_dwordx2 s[18:19], s[0:1], {KA['x']}
    s_getreg_b32 s3, hwreg(HW_REG_XCC_ID, 0, 4)
    v_lshrrev_b32 v1, 6, v0
    v_and_b32 v0, 63, v0
    v_readfirstlane_b32 s5, v1
    s_mov_b32 s94, {BUDGET}
    s_mov_b32 s90, 0
    s_mov_b32 s91, 0
    s_mov_b32 s92, 0
    s_mov_b32 s93, 0""")
    if dbg: a.I("s_memtime s[88:89]")
    a.I("s_waitcnt lgkmcnt(0)")
    srd(a,20,16,WS_SIZE)
    if xsrc is not None:
        a.I(f"""s_add_u32 s18, s16, {xsrc}
        s_addc_u32 s19, s17, 0""")
    srd(a,24,18,XBYTES)
    a.I(f"""v_mov_b32 v4, {SPARE}
    s_cmp_lg_u32 s5, 0
    s_cbranch_scc1 {P}el_done
    s_and_b32 s3, s3, 7
    s_lshl_b32 s6, s3, 2
    v_mov_b32 v2, s6
    v_mov_b32 v3, 1
    s_mov_b64 exec, 1
    global_atomic_add v5, v2, v3, s[28:29] sc0
    s_waitcnt vmcnt(0)
    s_mov_b64 exec, -1
    v_readfirstlane_b32 s7, v5
    s_lshl_b32 s4, s3, 5
    s_add_u32 s4, s4, s7
    s_cmp_lt_u32 s7, 32
    s_cbranch_scc1 {P}el_pub
    v_mov_b32 v2, 32
    s_mov_b64 exec, 1
    global_atomic_add v5, v2, v3, s[28:29] sc0
    s_waitcnt vmcnt(0)
    s_mov_b64 exec, -1
    v_readfirstlane_b32 s7, v5
    v_and_b32 v2, 7, v0
    v_lshlrev_b32 v2, 2, v2""")
    a.L(P+"el_w")
    a.I(f"""global_load_dword v5, v2, s[28:29] sc1
    s_waitcnt vmcnt(0)
    s_mov_b32 s8, 0""")
    for x in range(8):
        a.I(f"v_readlane_b32 s{40+x}, v5, {x}\ns_add_u32 s8, s8, s{40+x}")
    a.I(f"""s_cmp_ge_u32 s8, 256
    s_cbranch_scc1 {P}el_s""")
    spin_tail(a,P+"el_w",None,sleep=2)
    a.L(P+"el_s")
    a.I("s_mov_b32 s4, 255")
    for x in range(8):
        a.I(f"""s_min_u32 s9, s{40+x}, 32
        s_sub_u32 s10, 32, s9
        s_add_u32 s11, s9, s7
        s_add_u32 s11, s11, {32*x}
        s_cmp_lt_u32 s7, s10
        s_cselect_b32 s4, s11, s4
        s_cselect_b32 s7, 0x10000, s7
        s_sub_u32 s7, s7, s10""")
    a.I(f"""s_cmp_ge_u32 s4, 32
    s_cbranch_scc1 {P}el_pub
    v_mov_b32 v2, 36
    s_mov_b64 exec, 1
    global_atomic_add v2, v3, s[28:29]
    s_waitcnt vmcnt(0)
    s_mov_b64 exec, -1""")
    a.L(P+"el_pub")
    a.I(f"""v_mov_b32 v5, s4
    ds_write_b32 v4, v5
    s_waitcnt lgkmcnt(0)""")
    a.L(P+"el_done")
    a.I(f"""s_barrier
    ds_read_b32 v5, v4
    s_waitcnt lgkmcnt(0)
    v_readfirstlane_b32 s4, v5
    s_barrier
    s_cmp_lt_u32 s4, 32
    s_cbranch_scc1 {P}A
    s_cmp_lt_u32 s4, 192
    s_cbranch_scc1 {P}B
    s_branch {P}C""")
    a.L(P+"end")
    a.I("s_endpgm")
    chain_setup(a,P,layer)
    chain_loop(a,P+"F","",dbg)
    chain_loop(a,P+"S","sc1",False)
    role_b(a,P,layer)
    role_c(a,P,layer,xdst)
    return (name, f"; @launch kernel={name} grid=(256,1,1) block=(256,1,1) lds={LDS_LA}", kernel_desc(name, 512, 96, accum=256))
```

```python
from la import *
MEML=0; TQ=9216; TK=11264; OL=13312; SPARE=15360; KVL=16384; WLB=32768; WLW=32768
PSLOT=72*4096
HINT=MEMB+0x10000
SCR=MEMB+0x20000
L16=0; IDX=1; KVR=2; WL=3; PK1=4; PK2=5; PK3=6; PK4=7
WIN=8; AQ=24; AK=32; AV=40; STG=48
W=lambda i: WIN+4*i
KAP=[0,2,4,6,8,1,3,5,7]
TORD=[8,0,1,2,3,4,5,6,7]
def units():
    U=[('p',j,nm) for j in range(5) for nm in range(6)]
    U+=[('p',j,nm) for j in range(5,9) for nm in (0,1)]
    U+=[('p',j,nm) for j in range(5,9) for nm in (2,3)]
    D=[('p',j,nm) for j in range(5,9) for nm in (4,5)]
    O=[('o',t,kp) for t in TORD for kp in range(2)]
    return U,D,O
U1,UD,UO=units()
NL=15
LIDX=[4,7,11,13,16,19,22,25,28,31,33,36,38,40,43]
LDSU=[U1[i] for i in LIDX]
L2T=4
L2U=[('o',L2T,0),('o',L2T,1)]
REGU=[u for u in U1+UD+UO if u not in LDSU and u not in L2U]
assert len(REGU)==55
def regof(u):
    i=REGU.index(u)
    return ('a',8*i) if i<32 else ('v',72+8*(i-32))
def rtxt(u,half=None):
    f,b=regof(u)
    if half is None: return f"{f}[{b}:{b+7}]"
    return f"{f}[{b+4*half}:{b+4*half+3}]"
def uoff(u):
    if u[0]=='p':
        _,j,nm=u
        return (nm>>1)*147456+(nm&1)*18432+KAP[j]*2048
    _,t,kp=u
    return t*4096+kp*2048
```

```python
from chaindefs import *
import os
G=lambda n,d: int(os.environ.get(n,d))
D_LATE=G("DLATE",18)
D_E0=G("DE0",0)
D_NR=G("DNR",16)
U_LL=G("ULL",2)
U_LC=G("ULC",18)
HCHK=G("HCHK",10)
HPOLL=[int(x) for x in os.environ.get("HPOLL","0,2,6,8").split(",")]
U_R=G("UR",8)
UBB=G("UBB",7)
G2=G("G2",1)
R2=G("R2",1)
D_E1=G("DE1",3)
D_G=G("DG",6)

def chain_loop(a, P, st, dbg):
    def E(i):
        if dbg and 100 in dbg: a.I(f"s_memtime s[{60+2*i}:{61+2*i}]")
    cnt=lambda r: a.I(f"s_add_u32 s{r}, s{r}, 1") if dbg else None
    q=LQ(a)
    BUF=[1,0,1,0,1,0,1,0]+[(j+1)%3 if False else None for j in range(8,NL)]
    BUF=[1,0,1,0,1,2,0,1,2,0,1,2,0,1,2]
    BUF=[j%3 for j in range(NL)]
    NXT={}
    for j in range(NL):
        n=[k for k in range(j+1,NL) if BUF[k]==BUF[j]]
        if n: NXT[j]=n[0]
    def stg_read(j):
        b=STG+8*BUF[j]
        q.op(f"ds_read_b128 v[{b}:{b+3}], v{WL} offset:{(j+1)*2048}",('w',j))
        q.op(f"ds_read_b128 v[{b+4}:{b+7}], v{WL} offset:{(j+1)*2048+1024}",('w',j))
    def z2(r): return f"v_mov_b64 v[{r}:{r+1}], 0"
    def pace(n,r):
        for i in range(n): a.I(f"v_mov_b32 v{r}, 0\ns_nop 2")
    PB=W(3); LP=W(1)
    out=[]
    a.L(P+"_entry")
    if dbg:
        a.I("s_memtime s[86:87]\ns_waitcnt lgkmcnt(0)\ns_mov_b32 s69, s86")
        if 100 not in dbg:
            for i in range(12): a.I(f"s_mov_b32 s{70+i}, 0")
    a.I(f"""s_lshl_b32 s42, s5, 1
    s_lshl_b32 s42, 3, s42
    s_mov_b32 s43, 0
    s_mov_b32 s59, {MEMB}
    s_branch {P}_ent""")
    a.L(P+"_top")
    E(14)
    a.I("s_barrier")
    E(0)
    q=LQ(a)
    accof=lambda nm: AQ+4*nm
    KX={0:STG+0, 1:STG+8, 2:STG+12, 3:STG+16, 4:STG+20}
    SM=STG+4
    def kx_read(f,dst): q.op(f"ds_read_b128 v[{dst}:{dst+3}], v{KVR} offset:{f*1024}",('kx',f))
    def a_read(j): q.op(f"ds_read_b128 {vr(W(j%4),4)}, v{L16} offset:{MEML+1024*KAP[j]}",('a',j))
    vm=[]
    def vop(t,tag): a.I(t); vm.append(tag)
    def vwait(tag):
        idx=max(i for i,t in enumerate(vm) if t==tag)
        a.I(f"s_waitcnt vmcnt({len(vm)-1-idx})")
    late=f"buffer_load_dwordx4 v{L16}, s[20:23], s34 offen sc1 lds"
    rback=f"ds_read_b128 {vr(LP,4)}, v{PK4} offset:{MEML+1024}"
    def chk3():
        a.I(f"s_or_b64 vcc, vcc, s[8:9]\ns_cbranch_scc1 {P}_lr")
        a.L(f"{P}_ld")
        def ool():
            r=LP
            a.L(f"{P}_lr")
            a.I(f"""v_cmp_eq_u32 vcc, -1, v{r}
            v_cmp_eq_u32 s[8:9], -1, v{r+1}
            s_or_b64 vcc, vcc, s[8:9]
            v_cmp_eq_u32 s[8:9], -1, v{r+2}
            s_or_b64 vcc, vcc, s[8:9]
            v_cmp_eq_u32 s[8:9], -1, v{r+3}
            s_or_b64 vcc, vcc, s[8:9]
            s_cbranch_scc0 {P}_ld""")
            cnt(90)
            a.I(f"""s_sub_u32 s94, s94, 1
            s_cbranch_scc1 {P}_lx
            s_add_u32 m0, s46, {MEML+1024}
            s_nop 0
            {late}
            s_waitcnt vmcnt(0)
            {rback}
            s_waitcnt lgkmcnt(0)
            s_branch {P}_lr""")
            a.L(f"{P}_lx")
            a.I(f"s_mov_b32 s94, 0\ns_branch {P}_ld")
        out.append(ool)
    att={}
    def add(i,*x): att.setdefault(i,[]).extend(x)
    c=U_LC
    add(U_LL, lambda: vop(late,'late'))
    add(U_R+4, lambda: vop(f"buffer_store_dwordx4 {vr(PB,4)}, v{L16}, s[20:23], s57 offen sc1",'pub'))
    add(U_R+5, lambda: a_read(3), "s_add_u32 s57, s57, 4096")
    add(5, lambda: a_read(4))
    add(c-1, f"v_add_u32 v{PK4}, s46, v{L16}")
    add(c, lambda: vwait('late'), lambda: q.op(rback,'rb'))
    add(c+4, lambda: q.wait('rb'), f"v_cmp_u_f32 vcc, v{LP}, v{LP+1}")
    add(c+5, f"v_cmp_u_f32 s[8:9], v{LP+2}, v{LP+3}")
    add(c+6, chk3, "s_barrier", lambda: a_read(5))
    r=U_R
    add(r, "s_mov_b32 m0, s45", "s_add_u32 s53, s38, 8192", lambda: vop(f"buffer_load_dwordx4 v{L16}, s[20:23], s53 offen sc1 lds",'V'))
    add(r+2, lambda: vop(f"buffer_load_dwordx4 v{L16}, s[20:23], s53 offen offset:1024 sc1 lds",'V'), "s_add_u32 s38, s38, 16384")
    add(r+3, "s_cmp_eq_u32 s56, 1", f"s_cbranch_scc0 {P}_fw", lambda: a.L(P+"_fd"), "s_mov_b32 m0, s39")
    add(r+7, lambda: vop(f"buffer_load_dwordx4 v{L16}, s[20:23], s38 offen sc1 lds",'K'))
    add(r+9, lambda: vop(f"buffer_load_dwordx4 v{L16}, s[20:23], s38 offen offset:1024 sc1 lds",'K'))
    add(c+8, lambda: a_read(6), lambda: a_read(7))
    add(29, lambda: a_read(8))
    add(36, "s_add_u32 s37, s37, 128", "s_xor_b32 s39, s39, 8192")
    add(37, "s_and_b32 s7, s6, 1")
    add(39, f"v_and_b32 v{SM}, 0xffff, v{PK1}")
    add(40, f"v_add_f32 v{AQ}, v{AQ}, v{AQ+2}")
    add(41, "s_mov_b32 s13, s59", f"v_add_f32 v{AQ+1}, v{AQ+1}, v{AQ+3}")
    add(42, "s_add_u32 s59, s6, 1", "s_and_b32 s59, s59, 3", f"v_add_f32 v{AQ+4}, v{AQ+4}, v{AQ+6}")
    add(43, f"v_add_f32 v{AQ+5}, v{AQ+5}, v{AQ+7}")
    add(44, "s_mul_i32 s59, s59, 9216", f"s_add_u32 s59, s59, {MEMB}", f"v_cvt_pk_bf16_f32 v{AQ}, v{AQ}, v{AQ+1}")
    add(45, f"v_cvt_pk_bf16_f32 v{AQ+1}, v{AQ+4}, v{AQ+5}")
    for j in range(3): a_read(j)
    stg_read(0)
    a.I(f"s_add_u32 m0, s46, {MEML+1024}")
    add(0, lambda: stg_read(1))
    add(6, lambda: a.I(f"s_waitcnt vmcnt({len(vm)})"), lambda: stg_read(2))
    def order(xs):
        return xs
    for i,u in enumerate(U1):
        _,j,nm=u
        q.wait(('a',j))
        if u in LDSU:
            jj=LDSU.index(u)
            q.wait(('w',jj))
            b=STG+8*BUF[jj]; B=f"v[{b}:{b+7}]"
        else: B=rtxt(u)
        a.I(f"v_smfmac_f32_16x16x64_bf16 {vr(accof(nm),4)}, {vr(W(j%4),4)}, {B}, v{IDX}")
        if i==0: E(1)
        if i==29: E(2)
        if i==45: E(3)
        if u in LDSU:
            if jj in NXT: stg_read(NXT[jj])
            elif jj==12: kx_read(0,KX[0])
            elif jj==13: kx_read(1,KX[1]); kx_read(2,KX[2])
            elif jj==14: kx_read(3,KX[3]); kx_read(4,KX[4])
        xs=att.get(i,[])
        isv=lambda x: isinstance(x,tuple) or (isinstance(x,str) and x.startswith('v_'))
        def em(x):
            if isinstance(x,tuple): x[1]()
            elif callable(x): x()
            else: a.I(x)
        for x in xs:
            if not isv(x): em(x)
        if i+1<len(U1):
            tg=[('a',U1[i+1][1])]
            if U1[i+1] in LDSU: tg.append(('w',LDSU.index(U1[i+1])))
            q.wait(*tg)
        for x in xs:
            if isv(x): em(x)
    def dv(i):
        _,j,nm=UD[i]
        a.I(f"v_smfmac_f32_16x16x64_bf16 {vr(accof(nm),4)}, {vr(W(j%4),4)}, {rtxt(UD[i])}, v{IDX}")
    q.op(f"ds_write2_b32 v{SM}, v{AQ}, v{AQ+1} offset0:0 offset1:4",'tq')
    dv(0)
    a.I(f"""s_add_u32 s34, s46, s59
    v_lshrrev_b32 v{SM+1}, 16, v{PK1}
    v_add_f32 v{AK}, v{AK}, v{AK+2}
    v_add_f32 v{AK+1}, v{AK+1}, v{AK+3}
    v_cvt_pk_bf16_f32 v{AK}, v{AK}, v{AK+1}
    v_add_f32 v{AK+4}, v{AK+4}, v{AK+6}
    v_add_f32 v{AK+5}, v{AK+5}, v{AK+7}
    v_cvt_pk_bf16_f32 v{AK+1}, v{AK+4}, v{AK+5}""")
    q.op(f"ds_write_b64 v{SM+1}, v[{AK}:{AK+1}]",'tk')
    dv(1)
    a.I(f"s_add_u32 s34, s34, 1024\nv_and_b32 v{SM+2}, 0xffff, v{PK2}")
    dv(2)
    a.I(f"v_lshrrev_b32 v{SM+3}, 16, v{PK2}")
    dv(3)
    a.I(z2(SM))
    q.all()
    E(4)
    a.I("s_barrier\ns_mov_b32 s56, s41")
    E(5)
    QF=AQ; KM0=W(1); KM1=W(2); S1=W(3); S2=W(0)
    def qf(ks):
        for rho in range(2):
            q.op(f"ds_read_b64_tr_b16 v[{QF+4*ks+2*rho}:{QF+4*ks+2*rho+1}], v{SM+2} offset:{ks*512+rho*64}",('qf',ks))
    def km(sg_):
        for rho in range(2):
            d=(KM0,KM1)[sg_]+2*rho
            q.op(f"ds_read_b64_tr_b16 v[{d}:{d+1}], v{SM+3} offset:{sg_*1024+rho*128}",('km',sg_))
    qf(0); qf(1)
    dv(4); qf(2)
    dv(5); qf(3)
    dv(6); km(0)
    dv(7); km(1)
    a.I(z2(SM+2))
    def sx(f):
        tk=f>>2; ks=f&3; Sx=(S1,S2)[tk]
        q.wait(('qf',ks),('kx',f))
        c="0" if ks==0 else vr(Sx,4)
        a.I(f"v_mfma_f32_16x16x32_bf16 {vr(Sx,4)}, {vr(KX[f],4)}, {vr(QF+4*ks,4)}, {c}")
    VF=STG+16; VM=AV; ON=AV+4; T=STG+2
    sx(0); KX[5]=KX[0]; kx_read(5,KX[5])
    sx(1); KX[6]=KX[1]; kx_read(6,KX[6])
    a.I(f"v_add_f32 v{AV}, v{AV}, v{AV+2}")
    sx(2); KX[7]=KX[2]; kx_read(7,KX[7])
    a.I(f"v_add_f32 v{AV+1}, v{AV+1}, v{AV+3}")
    sx(3)
    a.I(f"v_add_f32 v{AV+4}, v{AV+4}, v{AV+6}\nv_add_f32 v{AV+5}, v{AV+5}, v{AV+7}")
    sx(4)
    a.I(f"v_cvt_pk_bf16_f32 v{AV}, v{AV}, v{AV+1}")
    q.wait(('km',1))
    a.I(f"v_smfmac_f32_16x16x64_bf16 {vr(SM,4)}, {vr(KM0,4)}, {vr(QF,8)}, v{IDX}")
    a.I(f"v_cvt_pk_bf16_f32 v{AV+1}, v{AV+4}, v{AV+5}")
    a.I(f"v_smfmac_f32_16x16x64_bf16 {vr(SM,4)}, {vr(KM1,4)}, {vr(QF+8,8)}, v{IDX}")
    sx(5)
    a.I(f"v_max3_f32 v{T}, v{S1}, v{S1+1}, v{S1+2}")
    sx(6)
    a.I(f"""v_add_f32 v{SM}, v{SM}, v{SM+2}
    v_add_f32 v{SM+1}, v{SM+1}, v{SM+3}""")
    sx(7)
    E(6)
    a.I(f"""s_cmp_eq_u32 s6, 63
    v_max3_f32 v{T}, v{T}, v{S1+3}, v{SM}
    v_max_f32 v{T}, v{T}, v{SM+1}
    s_cbranch_scc1 {P}_fin""")
    vop(f"buffer_load_dwordx4 v[{AQ}:{AQ+3}], v{L16}, s[20:23], s47 offen",'l2')
    a.I(f"""v_mov_b32 v{VM+2}, v{VM+1}
    v_mov_b32 v{VM+3}, 0
    {z2(SM+2)}
    v_mov_b32 v{ON}, 0x3f803f80""")
    E(7)
    a.I(f"""v_max3_f32 v{T}, v{T}, v{S2}, v{S2+1}
    v_max3_f32 v{T}, v{T}, v{S2+2}, v{S2+3}
    v_mov_b32 v{T+1}, v{T}""")
    vop(f"buffer_load_dwordx4 v[{AQ+4}:{AQ+7}], v{L16}, s[20:23], s47 offen offset:1024",'l2')
    a.I(f"""v_mov_b32 v{ON+1}, v{ON}
    v_permlane16_swap_b32 v{T}, v{T+1}
    v_max_f32 v{T}, v{T}, v{T+1}
    v_mov_b32 v{T+1}, v{T}""")
    vop(f"buffer_load_dwordx4 v[{AK}:{AK+3}], v{L16}, s[20:23], s47 offen offset:2048",'l2')
    a.I(f"""v_mov_b64 v[{ON+2}:{ON+3}], v[{ON}:{ON+1}]
    v_permlane32_swap_b32 v{T}, v{T+1}
    v_max_f32 v{T}, v{T}, v{T+1}
    v_mul_f32 v{T}, s35, v{T}""")
    for r in (S1,S1+2,S2,S2+2,SM):
        a.I(f"v_pk_fma_f32 v[{r}:{r+1}], v[{r}:{r+1}], s[48:49], v[{T}:{T+1}] op_sel_hi:[1,1,0] neg_lo:[0,0,1] neg_hi:[0,0,1]")
    vwait('V')
    q.op(f"ds_read_b128 v[{VF}:{VF+3}], v{WL}",'vf')
    q.op(f"ds_read_b128 v[{VF+4}:{VF+7}], v{WL} offset:1024",'vf')
    q.op(f"ds_write_b64 v{WL}, v[{VM}:{VM+1}]",'vmw')
    for r in (S1,S1+1,S1+2,S1+3,S2,S2+1,S2+2,S2+3): a.I(f"v_exp_f32 v{r}, v{r}")
    a.I(f"""v_cvt_pk_bf16_f32 v{S1}, v{S1}, v{S1+1}
    v_cvt_pk_bf16_f32 v{S1+1}, v{S1+2}, v{S1+3}
    v_cvt_pk_bf16_f32 v{S1+2}, v{S2}, v{S2+1}
    v_cvt_pk_bf16_f32 v{S1+3}, v{S2+2}, v{S2+3}
    v_exp_f32 v{SM}, v{SM}""")
    q.wait('vf')
    E(8)
    O0=W(1); O1=W(2); SUM=S2; Px=S1
    L2R=[AQ,AK]
    ACC={8:W(0), 0:W(2), 1:STG+4, 2:STG+8, 3:W(3), 4:AV, 5:AV+4, 6:STG+16, 7:STG+20}
    OA=[W(1),STG+0]; AD=STG+12
    a.I(f"""v_mfma_f32_16x16x32_bf16 {vr(O0,4)}, {vr(VF,4)}, {vr(Px,4)}, 0
    v_exp_f32 v{SM+1}, v{SM+1}
    v_mfma_f32_16x16x32_bf16 {vr(O1,4)}, {vr(VF+4,4)}, {vr(Px,4)}, 0
    v_cvt_pk_bf16_f32 v{SM}, v{SM}, v{SM+1}
    v_mov_b32 v{SM+1}, 0
    v_mfma_f32_16x16x32_bf16 {vr(SUM,4)}, {vr(ON,4)}, {vr(Px,4)}, 0""")
    vop(f"buffer_load_dwordx4 v[{AK+4}:{AK+7}], v{L16}, s[20:23], s47 offen offset:3072",'l2')
    a.I(f"""v_and_b32 v{STG}, 0xffff, v{PK3}
    v_mfma_f32_16x16x32_bf16 {vr(SUM,4)}, {vr(ON,4)}, {vr(SM,4)}, {vr(SUM,4)}
    s_add_u32 s6, s6, 1
    v_lshlrev_b32 v{AD+2}, 4, v{L16}
    v_mov_b32 v{AD+3}, s6
    v_mfma_f32_16x16x32_bf16 {vr(O0,4)}, {vr(VM,4)}, {vr(SM,4)}, {vr(O0,4)}
    {z2(STG+8)}
    {z2(STG+10)}
    v_mfma_f32_16x16x32_bf16 {vr(O1,4)}, {vr(VM+2,4)}, {vr(SM,4)}, {vr(O1,4)}
    {z2(W(3))}
    v_rcp_f32 v{SUM}, v{SUM}
    {z2(W(3)+2)}
    {z2(STG+16)}
    v_mul_f32 v{O0}, v{O0}, v{SUM}
    v_mul_f32 v{O0+1}, v{O0+1}, v{SUM}
    v_mul_f32 v{O0+2}, v{O0+2}, v{SUM}
    v_mul_f32 v{O0+3}, v{O0+3}, v{SUM}
    v_pk_mul_f32 v[{O1}:{O1+1}], v[{O1}:{O1+1}], v[{SUM}:{SUM+1}] op_sel_hi:[1,0]
    v_pk_mul_f32 v[{O1+2}:{O1+3}], v[{O1+2}:{O1+3}], v[{SUM}:{SUM+1}] op_sel_hi:[1,0]
    v_cvt_pk_bf16_f32 v{O0}, v{O0}, v{O0+1}
    v_cvt_pk_bf16_f32 v{O0+1}, v{O0+2}, v{O0+3}
    v_cvt_pk_bf16_f32 v{O0+2}, v{O1}, v{O1+1}
    v_cvt_pk_bf16_f32 v{O0+3}, v{O1+2}, v{O1+3}""")
    q.op(f"ds_write_b128 v{STG}, {vr(O0,4)}",'ow')
    a.I("s_mov_b64 exec, s[42:43]")
    vop(f"buffer_store_dword v{AD+3}, v{AD+2}, s[20:23], s54 offen {st}",'hp')
    a.I("s_mov_b64 exec, -1")
    for r in (W(0),W(0)+2,W(2),W(2)+2,STG+4,STG+6,AV,AV+2,AV+4,AV+6): a.I(z2(r))
    a.I(f"""v_bfe_u32 v{AD+1}, v{L16}, 2, 7
    v_lshrrev_b32 v{PK4}, 7, v{L16}
    v_and_b32 v{AD}, 0x70, v{L16}
    v_lshl_add_u32 v{PK4}, v{PK4}, 12, v{AD}""")
    q.all()
    E(9)
    a.I("s_barrier")
    E(10)
    q.op(f"ds_read_b128 {vr(OA[0],4)}, v{L16} offset:{OL}",'oa0')
    q.op(f"ds_read_b128 {vr(OA[1],4)}, v{L16} offset:{OL+1024}",'oa1')
    def post(t):
        d=ACC[t]; o=d if t==8 else ACC[(t//4)*4]+(t%4)
        return [f"v_add_f32 v{d}, v{d}, v{d+2}", f"v_add_f32 v{d+1}, v{d+1}, v{d+3}", f"v_cvt_pk_bf16_f32 v{o}, v{d}, v{d+1}"]
    AS=ACC[1]; RD=ACC[2]; C7=AD
    RA=[AQ,AQ+4,AK,AK+4]
    RB=[W(0),W(1),W(2),STG+16]
    def p7_issue(x="",RR=RA):
        for j in range(4):
            a.I(f"buffer_load_dwordx4 {vr(RR[j],4)}, v{L16}, s[20:23], s33 offen offset:{1024*j} sc1{x}")
    a.I(f"{z2(STG+18)}\n{z2(STG+20)}\nv_lshrrev_b32 v{AD+2}, 9, v{L16}")
    for i,u in enumerate(UO):
        _,t,kp=u; n=i>>1
        if i==0: q.wait('oa0')
        if i==1: q.wait('oa1')
        if u==L2U[0]: vwait('l2')
        B=vr(L2R[kp],8) if u in L2U else rtxt(u)
        a.I(f"v_smfmac_f32_16x16x64_bf16 {vr(ACC[t],4)}, {vr(OA[kp],4)}, {B}, v{IDX}")
        if i in HPOLL: vop(f"buffer_load_dword v{AD}, v{AD+1}, s[20:23], s55 offen sc1 ; nowarn",'poll')
        if i==0: E(11); a.I(z2(STG+22))
        if i==1: a.I(f"v_lshl_add_u32 v{AD+2}, v{AD+2}, 12, v{AD+1}")
        if i==2: a.I(f"v_xor_b32 v{KVR}, 8192, v{KVR}")
        if i==9: a.I(f"ds_read_b128 {vr(AS,4)}, v{L16} offset:{SPARE}")
        if i==HCHK+1:
            a.I(f"s_cbranch_vccnz {P}_hw")
            a.L(P+"_hd")
        if i==15: a.I("s_cmp_eq_u32 s40, 0")
        if kp==1 and n>=1:
            p=post(TORD[n-1]); a.I(p[0]); a.I(p[1])
        if kp==0 and n>=2:
            a.I(post(TORD[n-2])[2])
            if TORD[n-2] in (8,0,4): a.I(f"v_bfi_b32 v{ACC[TORD[n-2]]}, 1, s7, v{ACC[TORD[n-2]]}")
        if i==HCHK: a.I(f"v_cmp_ne_u32 vcc, s6, v{AD} ; nowarn")
        if i==4: vop(f"buffer_store_dword v{ACC[8]}, v{AD+2}, s[20:23], s12 offen {st}",'st8')
        if i==12: vop(f"buffer_store_dwordx4 {vr(ACC[0],4)}, v{PK4}, s[20:23], s32 offen {st}",'stA')
    a.I(post(6)[2])
    a.I(f"v_lshrrev_b32 v{AD+2}, 16, v{PK3}\nv_mov_b32 v{AD+3}, -1")
    for x in post(7): a.I(x)
    a.I(f"buffer_store_dwordx4 {vr(ACC[4],4)}, v{PK4}, s[20:23], s11 offen {st}")
    E(12)
    def fetch_pub():
        a.I(f"""s_waitcnt lgkmcnt(0)
        v_lshrrev_b32 v{STG}, 16, v{PK1}
        ds_read_b64 v[{PB}:{PB+1}], v{STG}
        ds_read_b64 v[{PB+2}:{PB+3}], v{WL}
        s_load_dword s41, s[16:17], s37 offset:128 glc""")
        for r in range(AV,AV+8,2): a.I(z2(r))
    def zero_qk():
        for r in range(AQ,AQ+16,2): a.I(z2(r))
    def p7_check(base,RR=RA):
        for j in range(4):
            c="0" if j==0 else vr(RD,4); r=RR[j]
            a.I(f"s_waitcnt vmcnt({base+3-j})")
            if j==0: a.I(f"v_xor_b32 v{C7}, s7, v{r} ; nowarn")
            else: a.I(f"v_bitop3_b32 v{C7}, v{C7}, v{r}, s7 bitop3:0xf6 ; nowarn")
            a.I(f"v_mfma_f32_16x16x32_bf16 {vr(RD,4)}, {vr(AS,4)}, {vr(r,4)}, {c} ; nowarn")
        a.I(f"v_and_b32 v{C7}, 1, v{C7}\nv_cmp_ne_u32 vcc, 0, v{C7}")
    def p7_fin():
        a.I(f"""v_add_f32_dpp v{RD}, v{RD}, v{RD} row_ror:8 row_mask:0xf bank_mask:0xf
        v_add_f32_dpp v{RD+1}, v{RD+1}, v{RD+1} row_ror:8 row_mask:0xf bank_mask:0xf
        v_cvt_pk_bf16_f32 v{RD+2}, v{RD}, v{RD+1}
        buffer_store_dword v{RD+2}, v{AD+2}, s[20:23], s59 offen {st}""")
    repo=f"buffer_store_dword v{AD+3}, v{AD+2}, s[20:23], s13 offen {st}"
    def reduce(tag, two, mid, ctr):
        p7_issue()
        mid()
        if two: p7_issue("",RB)
        a.L(f"{P}_r{tag}")
        p7_check(4 if two else 0)
        a.I(f"s_cbranch_vccnz {P}_rr{tag}")
        a.L(f"{P}_rd{tag}")
        p7_fin()
        def ool():
            a.L(f"{P}_rr{tag}")
            cnt(ctr)
            a.I(f"""s_sub_u32 s94, s94, 1
            s_cbranch_scc1 {P}_rx{tag}
            s_mov_b64 exec, vcc""")
            p7_issue()
            a.I("s_mov_b64 exec, -1")
            if two:
                p7_check(4,RB)
                a.I(f"s_nop 5\ns_cbranch_vccz {P}_rd{tag}")
                cnt(ctr)
                a.I("s_mov_b64 exec, vcc")
                p7_issue("",RB)
                a.I("s_mov_b64 exec, -1")
            a.I(f"s_branch {P}_r{tag}")
            a.L(f"{P}_rx{tag}")
            a.I(f"s_mov_b32 s94, 0\ns_nop 7\ns_branch {P}_rd{tag}")
        out.append(ool)
    a.I(f"s_cbranch_scc0 {P}_ne")
    pace(D_E0,RD)
    reduce("e", R2, lambda: (fetch_pub(), pace(D_E1,RD)), 92)
    E(13)
    a.I(f"s_barrier\n{repo}\ns_branch {P}_g")
    a.L(P+"_ne")
    fetch_pub()
    pace(D_NR,RD)
    a.I(f"""s_cmp_eq_u32 s40, 1
    s_barrier
    s_cbranch_scc0 {P}_g0""")
    reduce("l", 0, lambda: pace(8,RD), 92)
    E(13)
    a.I(repo)
    zero_qk()
    a.I(f"s_branch {P}_top")
    a.L(P+"_ent")
    fetch_pub()
    a.I(f"""s_cmp_eq_u32 s5, 1
    s_cbranch_scc0 {P}_g""")
    zero_qk()
    a.I(f"s_branch {P}_top")
    a.L(P+"_g0")
    E(13)
    a.L(P+"_g")
    GA=STG+1; GB=STG+2; CK=STG+3
    G0=STG+16; G1=STG+20
    def g_issue(x=""):
        a.I(f"""buffer_load_dwordx4 {vr(G0,4)}, v{GA}, s[20:23], s59 offen sc1{x}
        buffer_load_dwordx4 {vr(G1,4)}, v{GB}, s[20:23], s59 offen sc1{x}""")
    a.I(f"""v_add_u32 v{GA}, s52, v{L16}
    v_add_u32 v{GB}, s58, v{L16}""")
    pace(D_G,CK)
    g_issue()
    a.I("s_waitcnt vmcnt(4)")
    zero_qk()
    for k in range(G2-1):
        g_issue(" ; nowarn"); pace(3,CK)
    a.L(P+"_ga")
    if G2: g_issue(" ; nowarn")
    a.I(f"""s_waitcnt vmcnt({2*G2+1})
    v_max3_u32 v{CK}, v{G0}, v{G0+1}, v{G0+2} ; nowarn
    v_max_u32 v{CK}, v{CK}, v{G0+3} ; nowarn
    ds_write_b128 v{GA}, {vr(G0,4)} offset:{MEML} ; nowarn
    s_waitcnt vmcnt({2*G2})
    v_max3_u32 v{CK}, v{CK}, v{G1}, v{G1+1} ; nowarn
    v_max3_u32 v{CK}, v{CK}, v{G1+2}, v{G1+3} ; nowarn
    ds_write_b128 v{GB}, {vr(G1,4)} offset:{MEML} ; nowarn
    v_cmpx_eq_u32 vcc, -1, v{CK}""")
    cnt(93)
    a.I(f"s_cbranch_execz {P}_gd")
    if not G2: g_issue(" ; nowarn")
    a.I(f"""s_sub_u32 s94, s94, 1
    s_cbranch_scc0 {P}_ga
    s_mov_b32 s94, 0""")
    a.L(P+"_gd")
    a.I(f"""s_mov_b64 exec, -1
    s_waitcnt lgkmcnt(0)
    s_branch {P}_top""")
    for f in out: f()
    a.L(P+"_hw")
    cnt(91)
    a.I(f"""buffer_load_dword v{AD}, v{AD+1}, s[20:23], s55 offen sc1 ; nowarn
    v_cmp_ne_u32 vcc, s6, v{AD} ; nowarn
    s_cbranch_vccz {P}_hd
    s_sub_u32 s94, s94, 1
    s_cbranch_scc0 {P}_hw
    s_mov_b32 s94, 0
    s_branch {P}_hd""")
    a.L(P+"_fw")
    a.I(f"""s_cmp_ge_u32 s6, 63
    s_cbranch_scc1 {P}_fd""")
    a.L(P+"_fw2")
    a.I(f"""buffer_load_dword v{L16}, off, s[20:23], s37 sc1
    s_waitcnt vmcnt(0)
    v_readfirstlane_b32 s56, v{L16}
    v_mbcnt_lo_u32_b32 v{L16}, -1, 0
    v_mbcnt_hi_u32_b32 v{L16}, -1, v{L16}
    v_lshlrev_b32 v{L16}, 4, v{L16}
    s_cmp_eq_u32 s56, 1
    s_cbranch_scc1 {P}_fd""")
    spin_tail(a,P+"_fw2",P+"_fd",sleep=1)
    a.L(P+"_fin")
    a.I(f"""v_lshrrev_b32 v{AQ+4}, 16, v{PK1}
    ds_read_b64 v[{AQ}:{AQ+1}], v{AQ+4}
    v_mov_b64 v[{AQ+2}:{AQ+3}], v[{VM}:{VM+1}]
    s_waitcnt lgkmcnt(0)
    buffer_store_dwordx4 {vr(AQ,4)}, v{L16}, s[20:23], s57 offen sc1""")
    if dbg and 100 in dbg:
        a.I(f"""s_waitcnt lgkmcnt(0)
        s_lshl_b32 s9, s4, 2
        s_add_u32 s9, s9, s5
        s_lshl_b32 s9, s9, 7
        s_add_u32 s9, s9, {DBGW}
        s_nop 7
        v_mov_b32 v48, 0""")
        for i in range(16): a.I(f"v_mov_b32 v{8+i}, s{60+2*i}")
        a.I("s_mov_b64 exec, 1")
        for i in range(4): a.I(f"buffer_store_dwordx4 v[{8+4*i}:{11+4*i}], v48, s[20:23], s9 offen offset:{16*i}")
    elif dbg:
        a.I(f"""s_memtime s[62:63]
        s_waitcnt lgkmcnt(0)
        s_lshl_b32 s9, s4, 2
        s_add_u32 s9, s9, s5
        s_lshl_b32 s9, s9, 7
        s_add_u32 s9, s9, {DBGW}
        s_nop 7
        v_mov_b32 v8, s88
        v_mov_b32 v9, s86
        v_mov_b32 v10, s62
        v_mov_b32 v11, s91
        v_mov_b32 v12, s92
        v_mov_b32 v13, s93
        v_mov_b32 v14, s90
        v_mov_b32 v15, s60
        v_mov_b32 v48, 0""")
        for i in range(12): a.I(f"v_mov_b32 v{16+i}, s{70+i}")
        a.I("s_mov_b64 exec, 1")
        for i in range(5): a.I(f"buffer_store_dwordx4 v[{8+4*i}:{11+4*i}], v48, s[20:23], s9 offen offset:{16*i}")
    a.I("s_endpgm")
```

```python
from asmb import *
WIMG=0x0000000; WOC=0x0E00000; WOT=0x1300000; FIMG=0x1800000; FINV=0x1900000; WFI=0x1A00000
TW1=0x1D00000; TW2=0x1D04000; CST=0x1D08000
FLAGS=0x1E00000
PART=0x1F00000; MEMB=0x2000000
X1=0x2100000; X2=0x2400000; X3=0x2700000; ZF=0x2A00000; ZO=0x2D00000
OBUF=0x6000000
KV=0x8000000
KVM=KV+0x100000+4096
DBGW=0xF000000
WS_SIZE=0x10000000
XBYTES=2048*576*2
KA=dict(x=0,mem0=8,Wq=16,Wk=24,Wv=32,Wo=40,seg=48,bx=56,wr=64,wi=72,out=80,dbg=88,ws=96)

def kernel_begin(a, name):
    a.raw(f".text\n.globl {name}\n.p2align 8\n.type {name},@function\n{name}:")

def kernel_desc(name, vgpr, sgpr=96, accum=None):
    if accum is None: accum=(vgpr+3)//4*4
    return f""".section .rodata,"a"
.p2align 6
.amdhsa_kernel {name}
  .amdhsa_next_free_vgpr {vgpr}
  .amdhsa_next_free_sgpr {sgpr}
  .amdhsa_accum_offset {accum}
  .amdhsa_group_segment_fixed_size 0
  .amdhsa_kernarg_size 104
  .amdhsa_user_sgpr_count 2
  .amdhsa_user_sgpr_kernarg_segment_ptr 1
  .amdhsa_system_sgpr_workgroup_id_x 1
.end_amdhsa_kernel"""

def srd(a, d, ptr, size):
    a.I(f"""s_mov_b32 s{d}, s{ptr}
    s_and_b32 s{d+1}, s{ptr+1}, 0xffff
    s_mov_b32 s{d+2}, {size}
    s_mov_b32 s{d+3}, 0x00020000""")

def sdiv(a, q, x, d, tmp=None, maxx=1<<16):
    M=-(-(1<<32)//d)
    assert maxx*d <= (1<<32)
    a.I(f"s_mul_hi_u32 s{q}, s{x}, {M}")
```

```python
from common import *
from bstage import ln_addr, ln_load, ln_compute, XF_TH, XF_SIZE
import struct
def f2u(x): return struct.unpack('<I',struct.pack('<f',x))[0]
SCL=f2u(128**-0.5*1.4426950408889634)
LDS_LA=163840
FLAGL=0x80000
OFLAG=0x40000
NB=5
NG=4
BUDGET=400000
import os
BST=os.environ.get('BST','sc1')
BRB=os.environ.get('BRB','')

class LQ:
    def __init__(self,a): self.a=a; self.q=[]; self.done=0
    def op(self,text,tag=None):
        self.a.I(text); self.q.append(tag)
    def wait(self,*tags):
        idx=max(max(i for i,t in enumerate(self.q) if t==tag) for tag in tags)
        if idx<self.done: return
        n=len(self.q)-1-idx
        assert n<=15, n
        self.a.I(f"s_waitcnt lgkmcnt({n})"); self.done=idx+1
    def all(self):
        self.a.I("s_waitcnt lgkmcnt(0)"); self.done=len(self.q)

def spin_tail(a, loop, out, sleep=0):
    if sleep: a.I(f"s_sleep {sleep}")
    a.I(f"""s_sub_u32 s94, s94, 1
    s_cbranch_scc0 {loop}
    s_mov_b32 s94, 0""")
    if out: a.I(f"s_branch {out}")

def softmax(a, S1, S2, Sm, T, sC, fill=None):
    f=fill or (lambda k: None)
    a.I(f"""v_max3_f32 v{T}, v{S1}, v{S1+1}, v{S1+2}
    v_pk_add_f32 v[{Sm}:{Sm+1}], v[{Sm}:{Sm+1}], v[{Sm+2}:{Sm+3}]
    v_max3_f32 v{T}, v{T}, v{S1+3}, v{Sm}
    v_max3_f32 v{T+1}, v{S2}, v{S2+1}, v{S2+2}
    v_max3_f32 v{T}, v{T}, v{Sm+1}, v{S2+3}
    v_max_f32 v{T}, v{T}, v{T+1}
    v_mov_b32 v{T+1}, v{T}""")
    a.I(f"v_mov_b32 v{Sm+2}, 0\nv_mov_b32 v{Sm+3}, 0")
    f(0)
    a.I(f"""v_permlane16_swap_b32 v{T}, v{T+1}
    v_max_f32 v{T}, v{T}, v{T+1}
    v_mov_b32 v{T+1}, v{T}""")
    f(1)
    a.I(f"""v_permlane32_swap_b32 v{T}, v{T+1}
    v_max_f32 v{T}, v{T}, v{T+1}
    v_mul_f32 v{T}, s{sC}, v{T}""")
    regs=[S1,S1+1,S1+2,S1+3,S2,S2+1,S2+2,S2+3,Sm,Sm+1]
    for r in regs: a.I(f"v_fma_f32 v{r}, v{r}, s{sC}, -v{T}")
    for r in regs: a.I(f"v_exp_f32 v{r}, v{r}")
    a.I(f"""v_cvt_pk_bf16_f32 v{S1}, v{S1}, v{S1+1}
    v_cvt_pk_bf16_f32 v{S1+1}, v{S1+2}, v{S1+3}
    v_cvt_pk_bf16_f32 v{S1+2}, v{S2}, v{S2+1}
    v_cvt_pk_bf16_f32 v{S1+3}, v{S2+2}, v{S2+3}
    v_cvt_pk_bf16_f32 v{Sm}, v{Sm}, v{Sm+1}
    v_mov_b32 v{Sm+1}, 0""")

def pv(a, Px, Pm, VF, VM, ONES, O0, O1, SUM, OUT):
    a.I(f"""v_mfma_f32_16x16x32_bf16 v[{SUM}:{SUM+3}], v[{ONES}:{ONES+3}], v[{Px}:{Px+3}], 0
    v_mfma_f32_16x16x32_bf16 v[{SUM}:{SUM+3}], v[{ONES}:{ONES+3}], v[{Pm}:{Pm+3}], v[{SUM}:{SUM+3}]
    v_mfma_f32_16x16x32_bf16 v[{O0}:{O0+3}], v[{VF}:{VF+3}], v[{Px}:{Px+3}], 0
    v_mfma_f32_16x16x32_bf16 v[{O1}:{O1+3}], v[{VF+4}:{VF+7}], v[{Px}:{Px+3}], 0
    v_mfma_f32_16x16x32_bf16 v[{O0}:{O0+3}], v[{VM}:{VM+3}], v[{Pm}:{Pm+3}], v[{O0}:{O0+3}]
    v_mfma_f32_16x16x32_bf16 v[{O1}:{O1+3}], v[{VM+2}:{VM+5}], v[{Pm}:{Pm+3}], v[{O1}:{O1+3}]
    v_rcp_f32 v{SUM}, v{SUM}
    v_rcp_f32 v{SUM+1}, v{SUM+1}
    v_pk_mul_f32 v[{O0}:{O0+1}], v[{O0}:{O0+1}], v[{SUM}:{SUM+1}]
    v_pk_mul_f32 v[{O0+2}:{O0+3}], v[{O0+2}:{O0+3}], v[{SUM}:{SUM+1}]
    v_pk_mul_f32 v[{O1}:{O1+1}], v[{O1}:{O1+1}], v[{SUM}:{SUM+1}]
    v_pk_mul_f32 v[{O1+2}:{O1+3}], v[{O1+2}:{O1+3}], v[{SUM}:{SUM+1}]
    v_cvt_pk_bf16_f32 v{OUT}, v{O0}, v{O0+1}
    v_cvt_pk_bf16_f32 v{OUT+1}, v{O0+2}, v{O0+3}
    v_cvt_pk_bf16_f32 v{OUT+2}, v{O1}, v{O1+1}
    v_cvt_pk_bf16_f32 v{OUT+3}, v{O1+2}, v{O1+3}""")

def stamp(a, P, i, on):
    if on: a.I(f"""s_memtime s[66:67]
    s_waitcnt lgkmcnt(0)
    s_sub_u32 s68, s66, s69
    s_add_u32 s{70+i}, s{70+i}, s68
    s_mov_b32 s69, s66""")

def role_b(a, P, layer):
    flg=FLAGS+layer*FLAGL
    L16=0; GO=1; LO=2; DEL=3; IDX=4
    QS=XF_SIZE+64-(XF_SIZE%64); QS=40960
    BTK=38912
    def wreg(ti,ks):
        f=ks*6+ti
        return ar(4*f,4) if f<64 else vr(80+4*(f-64),4)
    a.L(P+"B")
    a.I(f"""s_sub_u32 s8, s4, 32""")
    sdiv(a,6,8,NB)
    a.I(f"""s_mul_i32 s7, s6, {NB}
    s_sub_u32 s7, s8, s7
    v_mov_b32 v10, s5""")
    ln_addr(a,"v10",0,GO,LO,12)
    a.I(f"""v_and_b32 v10, 15, v0
    v_lshrrev_b32 v11, 2, v10
    v_lshlrev_b32 v11, 3, v11
    v_and_b32 v12, 3, v10
    v_add_u32 v11, v11, v12
    v_lshrrev_b32 v12, 4, v0
    v_lshlrev_b32 v12, 3, v12
    v_sub_u32 v{DEL}, v11, v12
    v_mov_b32 v{IDX}, 0x4444
    v_mov_b32 v11, 0xeeee
    v_and_b32 v12, 2, v0
    v_cmp_eq_u32 vcc, 2, v12
    v_cndmask_b32 v{IDX}, v{IDX}, v11, vcc
    v_lshlrev_b32 v{L16}, 4, v0""")
    a.I(f"""s_mul_i32 s8, s6, {3*147456}
    s_mul_i32 s9, s5, 36864
    s_add_u32 s8, s8, s9
    s_add_u32 s8, s8, {WIMG}""")
    for ti in range(6):
        a.I(f"s_add_u32 s{30+ti}, s8, {(ti>>1)*147456+(ti&1)*18432}")
    for ks in range(18):
        for ti in range(6):
            a.I(f"buffer_load_dwordx4 {wreg(ti,ks)}, v{L16}, s[20:23], s{30+ti} offen offset:{(ks&3)*1024}")
        if ks&3==3:
            for ti in range(6): a.I(f"s_add_u32 s{30+ti}, s{30+ti}, 4096")
    a.I(f"""s_mov_b32 s10, s7            ; s_q
    s_mov_b32 s11, -1                    ; s_a
    s_mov_b32 s12, {QS}
    s_mov_b32 s13, {QS+24576}
    s_mov_b32 s14, {SCL}
    s_waitcnt vmcnt(0)""")
    a.L(P+"B_loop")
    a.I(f"""s_cmp_ge_u32 s10, 64
    s_cbranch_scc1 {P}B_attn""")
    X=8; T=44
    a.I(f"s_mul_i32 s15, s10, {32*1152}")
    ln_load(a,X,GO,24,"s15")
    a.I(f"""s_lshl_b32 s16, s6, 21
    s_lshl_b32 s17, s10, 12
    s_add_u32 s17, s17, s16
    s_lshl_b32 s18, s5, 10
    s_add_u32 s17, s17, s18
    s_add_u32 s17, s17, {KVM}
    v_mov_b32 v44, -1
    v_mov_b32 v45, -1
    v_mov_b32 v46, -1
    v_mov_b32 v47, -1
    buffer_store_dwordx4 v[44:47], v{L16}, s[20:23], s17 offen sc1
    s_waitcnt vmcnt(1)""")
    ln_compute(a,X,T,LO,36,37)
    a.I("s_waitcnt lgkmcnt(0)\ns_barrier")
    ACC=32; FR=8
    def rd(ks):
        for th in range(2):
            r=FR+((ks%3)*2+th)*4
            a.I(f"ds_read_b128 v[{r}:{r+3}], v{L16} offset:{th*XF_TH+ks*1024}")
    rd(0); rd(1)
    acc=lambda ti,th: ACC+(ti*2+th)*4
    for ks in range(18):
        if ks+2<18: rd(ks+2)
        a.I(f"s_waitcnt lgkmcnt({min(2,17-ks)*2})")
        for ti in range(6):
            for th in range(2):
                d=acc(ti,th); r=vr(FR+((ks%3)*2+th)*4,4)
                c="0" if ks==0 else vr(d,4)
                if ti<4: a.I(f"v_mfma_f32_16x16x32_bf16 {vr(d,4)}, {wreg(ti,ks)}, {r}, {c}")
                else:    a.I(f"v_mfma_f32_16x16x32_bf16 {vr(d,4)}, {r}, {wreg(ti,ks)}, {c}")
    a.I(f"""s_lshl_b32 s17, s10, 14
    s_add_u32 s17, s17, s16
    s_add_u32 s17, s17, {KV}
    s_add_u32 s18, s18, s17              ; + w*1024  (K)
    s_lshl_b32 s19, s5, 11
    s_add_u32 s19, s19, s17
    s_add_u32 s19, s19, 8192             ; V + w*2048
    s_lshl_b32 s38, s5, 10
    s_add_u32 s38, s38, s12
    v_add_u32 v5, s38, v{L16}
    s_lshl_b32 s38, s5, 11
    s_add_u32 s38, s38, s12
    v_add_u32 v6, s38, v{L16}
    s_add_u32 s39, s18, 4096""")
    for m in range(2):
        for th in range(2):
            o=8+(m*2+th)*4; d0=acc(2*m,th); d1=acc(2*m+1,th)
            a.I(f"""v_cvt_pk_bf16_f32 v{o}, v{d0}, v{d0+1}
            v_cvt_pk_bf16_f32 v{o+1}, v{d1}, v{d1+1}
            v_cvt_pk_bf16_f32 v{o+2}, v{d0+2}, v{d0+3}
            v_cvt_pk_bf16_f32 v{o+3}, v{d1+2}, v{d1+3}
            ds_write_b128 v5, v[{o}:{o+3}] offset:{m*8192+th*4096}""")
            if m==1: a.I(f"buffer_store_dwordx4 v[{o}:{o+3}], v{L16}, s[20:23], s{18 if th==0 else 39} offen sc1")
    for tau in range(2):
        o=24+tau*4; d0=acc(4+tau,0); d1=acc(4+tau,1)
        a.I(f"""v_cvt_pk_bf16_f32 v{o}, v{d0}, v{d0+1}
        v_cvt_pk_bf16_f32 v{o+1}, v{d0+2}, v{d0+3}
        v_cvt_pk_bf16_f32 v{o+2}, v{d1}, v{d1+1}
        v_cvt_pk_bf16_f32 v{o+3}, v{d1+2}, v{d1+3}
        ds_write_b128 v6, v[{o}:{o+3}] offset:{16384+tau*1024}
        buffer_store_dwordx4 v[{o}:{o+3}], v{L16}, s[20:23], s19 offen offset:{tau*1024} {BST}""")
    if BRB:
        a.I(f"""s_waitcnt vmcnt(0)
        buffer_load_dwordx4 v[8:11], v{L16}, s[20:23], s19 offen {BRB}
        buffer_load_dwordx4 v[12:15], v{L16}, s[20:23], s19 offen offset:1024 {BRB}""")
    a.I(f"""s_waitcnt vmcnt(0) lgkmcnt(0)
    s_barrier
    s_cmp_lg_u32 s5, 0
    s_cbranch_scc1 {P}B_attn
    s_lshl_b32 s17, s6, 6
    s_add_u32 s17, s17, s10
    s_lshl_b32 s17, s17, 7
    s_add_u32 s17, s17, {flg}
    v_mov_b32 v8, 1
    s_mov_b64 exec, 1
    buffer_store_dword v8, v{L16}, s[20:23], s17 offen sc1
    s_mov_b64 exec, -1""")
    a.L(P+"B_attn")
    a.I(f"""s_cmp_lt_i32 s11, 0
    s_cbranch_scc1 {P}B_next
    s_lshl_b32 s16, s11, 5
    s_add_u32 s16, s16, s6
    s_lshl_b32 s17, s6, 21
    s_lshl_b32 s18, s11, 12
    s_add_u32 s17, s17, s18
    s_add_u32 s17, s17, {KVM}
    s_lshl_b32 s18, s5, 10
    s_add_u32 s18, s18, s17
    v_add_u32 v6, s13, v{L16}
    s_lshl_b32 s38, s5, 11
    v_add_u32 v7, s38, v6""")
    KM=8; VM=16; VF=20; QF=28; KF=44; S1=60; S2=64; Sm=68; ON=72; T=78; O0=44; O1=48
    a.I(f"""ds_read_b128 v[{VF}:{VF+3}], v7 offset:16384
    ds_read_b128 v[{VF+4}:{VF+7}], v7 offset:17408""")
    for i in range(4): a.I(f"v_mov_b32 v{ON+i}, 0x3f803f80")
    a.L(P+"B_poll")
    a.I(f"""buffer_load_dwordx4 v[{KM}:{KM+3}], v{L16}, s[20:23], s18 offen sc1
    s_waitcnt vmcnt(0)
    v_max3_u32 v{T}, v{KM}, v{KM+1}, v{KM+2}
    v_max_u32 v{T}, v{T}, v{KM+3}
    v_cmp_eq_u32 vcc, -1, v{T}
    s_cbranch_vccz {P}B_go""")
    spin_tail(a,P+"B_poll",None,sleep=6)
    a.L(P+"B_go")
    a.I(f"""s_lshl_b32 s38, s5, 9
    ; TKw = (16w+n)*32+g*8
    v_and_b32 v{T}, 0xf0, v{L16}
    v_lshl_add_u32 v{T}, v{T}, 1, s38
    v_lshrrev_b32 v{T+1}, 8, v{L16}
    v_lshl_add_u32 v{T}, v{T+1}, 3, v{T}
    ds_write_b64 v{T}, v[{KM}:{KM+1}] offset:{BTK}
    v_mov_b64 v[{VM}:{VM+1}], v[{KM+2}:{KM+3}]
    v_and_b32 v{T}, 0x300, v{L16}
    v_bfe_u32 v{T+1}, v{L16}, 4, 4
    v_lshl_add_u32 v{T}, v{T+1}, 3, v{T}
    s_waitcnt lgkmcnt(0)
    s_barrier""")
    for sg_ in range(2):
        for rho in range(2):
            a.I(f"ds_read_b64_tr_b16 v[{KM+4*sg_+2*rho}:{KM+4*sg_+2*rho+1}], v{T} offset:{BTK+sg_*1024+rho*128}")
    a.I(f"""s_lshl_b32 s17, s16, 13
    s_lshl_b32 s18, s5, 11
    s_add_u32 s17, s17, s18
    s_add_u32 s17, s17, {OBUF}
    v_mov_b32 v76, 0xff800000
    v_mov_b32 v{VM+2}, v{VM+1}
    v_mov_b32 v{VM+3}, 0""")
    for tq in range(2):
        for ks in range(4): a.I(f"ds_read_b128 v[{QF+4*ks}:{QF+4*ks+3}], v6 offset:{tq*4096+ks*1024}")
        for i in range(4): a.I(f"v_mov_b32 v{Sm+i}, 0")
        for tk in range(2):
            S=(S1,S2)[tk]
            for ks in range(4): a.I(f"ds_read_b128 v[{KF+4*ks}:{KF+4*ks+3}], v6 offset:{8192+tk*4096+ks*1024}")
            a.I("s_waitcnt lgkmcnt(0)")
            for ks in range(4):
                c="0" if ks==0 else vr(S,4)
                a.I(f"v_mfma_f32_16x16x32_bf16 {vr(S,4)}, {vr(KF+4*ks,4)}, {vr(QF+4*ks,4)}, {c}")
            a.I("s_nop 3")
        for sg_ in range(2):
            a.I(f"v_smfmac_f32_16x16x64_bf16 {vr(Sm,4)}, {vr(KM+4*sg_,4)}, {vr(QF+8*sg_,8)}, v{IDX}")
        for tk in range(2):
            S=(S1,S2)[tk]
            for r in range(4):
                a.I(f"""v_cmp_le_i32 vcc, {r+4*(tk-tq)}, v{DEL}
                v_cndmask_b32 v{S+r}, v76, v{S+r}, vcc""")
        softmax(a,S1,S2,Sm,T,14)
        pv(a,S1,Sm,VF,VM,ON,O0,O1,S2,52+4*tq)
        a.I(f"buffer_store_dwordx4 v[{52+4*tq}:{55+4*tq}], v{L16}, s[20:23], s17 offen offset:{tq*1024} sc1")
        if tq==0: a.I("s_nop 1")
    a.I(f"""s_waitcnt vmcnt(0)
    s_barrier
    s_cmp_lg_u32 s5, 0
    s_cbranch_scc1 {P}B_next
    s_lshl_b32 s17, s16, 2
    s_add_u32 s17, s17, {flg+OFLAG}
    v_mov_b32 v8, 1
    s_mov_b64 exec, 1
    buffer_store_dword v8, v{L16}, s[20:23], s17 offen sc1
    s_mov_b64 exec, -1""")
    a.L(P+"B_next")
    a.I(f"""s_mov_b32 s11, s10
    s_add_u32 s10, s10, {NB}
    s_mov_b32 s38, s12
    s_mov_b32 s12, s13
    s_mov_b32 s13, s38
    s_cmp_lt_u32 s11, 64
    s_cbranch_scc1 {P}B_loop
    s_endpgm""")

def role_c(a, P, layer, xdst):
    flg=FLAGS+layer*FLAGL+OFLAG
    L16=0
    def wreg(kl,tau):
        f=kl*3+tau
        return ar(4*f,4) if f<64 else vr(128+4*(f-64),4)
    a.L(P+"C")
    a.I(f"""s_and_b32 s8, s4, 31
    s_cmp_ge_u32 s8, 24
    s_cbranch_scc1 {P}end
    s_sub_u32 s9, s4, 192
    s_lshr_b32 s9, s9, 5
    s_lshl_b32 s6, s9, 1
    s_cmp_ge_u32 s8, 12
    s_cselect_b32 s9, 1, 0
    s_add_u32 s6, s6, s9
    s_mul_i32 s9, s9, 12
    s_sub_u32 s7, s8, s9                 ; cb
    v_and_b32 v1, 7, v0
    v_lshlrev_b32 v1, 2, v1
    v_and_b32 v10, 15, v0
    v_lshrrev_b32 v11, 2, v10
    v_lshlrev_b32 v11, 3, v11
    v_and_b32 v12, 3, v10
    v_add_u32 v11, v11, v12
    v_mul_u32_u24 v2, 1152, v11
    v_lshrrev_b32 v12, 4, v0
    v_mul_u32_u24 v12, 24, v12
    v_add_u32 v2, v2, v12
    v_lshlrev_b32 v{L16}, 4, v0
    s_mul_i32 s9, s5, 6144
    v_add_u32 v3, s9, v{L16}
    s_mul_i32 s9, s5, 3072
    v_add_u32 v4, s9, v{L16}
    s_mul_i32 s8, s7, 393216
    s_mul_i32 s9, s5, 98304
    s_add_u32 s8, s8, s9
    s_add_u32 s8, s8, {WOT}""")
    for f in range(96):
        a.I(f"buffer_load_dwordx4 {wreg(f//3,f%3)}, v{L16}, s[20:23], s8 offen offset:{(f&3)*1024}")
        if f&3==3: a.I("s_add_u32 s8, s8, 4096")
    a.I("s_waitcnt vmcnt(0)")
    a.L(P+"C_loop")
    a.I(f"""s_lshl_b32 s10, s6, 5
    s_lshl_b32 s11, s5, 3
    s_add_u32 s10, s10, s11              ; s*32+8w
    s_lshl_b32 s11, s10, 2
    s_add_u32 s11, s11, {flg}
    s_lshl_b32 s12, s10, 13
    s_add_u32 s12, s12, {OBUF}
    s_mul_i32 s13, s6, {32*1152}
    s_mul_i32 s14, s7, 96
    s_add_u32 s13, s13, s14
    s_mul_i32 s14, s5, {4*1152}
    s_add_u32 s13, s13, s14
    buffer_load_dwordx4 v[8:11], v2, s[24:27], s13 offen
    buffer_load_dwordx2 v[12:13], v2, s[24:27], s13 offen offset:16""")
    a.L(P+"C_poll")
    a.I(f"""buffer_load_dword v5, v1, s[20:23], s11 offen sc1
    s_waitcnt vmcnt(0)
    v_cmp_ne_u32 vcc, 1, v5
    s_cbranch_vccz {P}C_go""")
    spin_tail(a,P+"C_poll",None,sleep=4)
    a.L(P+"C_go")
    ACC=16; FB=40; NR=22
    def ld(f):
        r=FB+4*(f%NR)
        a.I(f"buffer_load_dwordx4 v[{r}:{r+3}], v{L16}, s[20:23], s12 offen offset:{(f&3)*1024} sc1")
        if f&3==3: a.I("s_add_u32 s12, s12, 4096")
    for f in range(NR): ld(f)
    for kl in range(32):
        issued=min(64,NR+2*kl)
        a.I(f"s_waitcnt vmcnt({issued-2*kl-2})")
        for th in range(2):
            r=FB+4*((2*kl+th)%NR)
            for tau in range(3):
                d=ACC+(th*3+tau)*4
                c="0" if kl==0 else vr(d,4)
                a.I(f"v_mfma_f32_16x16x32_bf16 {vr(d,4)}, {wreg(kl,tau)}, {vr(r,4)}, {c}")
        for f in (NR+2*kl,NR+2*kl+1):
            if f<64: ld(f)
    for i in range(6): a.I(f"ds_write_b128 v3, {vr(ACC+4*i,4)} offset:{1024*i}")
    a.I(f"""s_waitcnt lgkmcnt(0)
    s_barrier
    s_cmp_ge_u32 s5, 2
    s_cbranch_scc1 {P}C_next""")
    for w in range(4):
        for tau in range(3):
            a.I(f"ds_read_b128 {vr(FB+(w*3+tau)*4,4)}, v4 offset:{w*6144+tau*1024}")
    a.I("s_waitcnt lgkmcnt(0)")
    for p in range(6):
        x=8+p; d=FB+2*p
        a.I(f"""v_pk_add_f32 v[{d}:{d+1}], v[{d}:{d+1}], v[{d+12}:{d+13}]
        v_pk_add_f32 v[{d+24}:{d+25}], v[{d+24}:{d+25}], v[{d+36}:{d+37}]
        v_lshlrev_b32 v14, 16, v{x}
        v_and_b32 v15, 0xffff0000, v{x}
        v_pk_add_f32 v[{d}:{d+1}], v[{d}:{d+1}], v[{d+24}:{d+25}]
        v_pk_add_f32 v[14:15], v[14:15], v[{d}:{d+1}]
        v_cvt_pk_bf16_f32 v{x}, v14, v15""")
    a.I(f"""s_add_u32 s13, s13, {xdst}
    buffer_store_dwordx4 v[8:11], v2, s[20:23], s13 offen
    buffer_store_dwordx2 v[12:13], v2, s[20:23], s13 offen offset:16
    s_nop 0""")
    a.L(P+"C_next")
    a.I(f"""s_barrier
    s_add_u32 s6, s6, {NG}
    s_cmp_lt_u32 s6, 64
    s_cbranch_scc1 {P}C_loop
    s_endpgm""")
```

```python
from common import *
N5=640; N1=1728; N2=512; N3=1152; N4=1296; N6=56; N7=256
B5=0; B1=B5+N5; B2=B1+N1; B3=B2+N2; B4=B3+N3; B6=B4+N4; B7=B6+N6; NT=B7+N7
assert NT%4==0
PREP_WGS=NT//4

def transpose8(a, R, nd, O):
    for j in range(2*nd):
        for p in range(4):
            a.I(f"v_perm_b32 v{O+4*j+p}, v{R+(2*p+1)*nd+(j>>1)}, v{R+(2*p)*nd+(j>>1)}, s{30+(j&1)}")

def gen_prep(a):
    name="prep_kernel"
    kernel_begin(a,name)
    a.I(f"""s_cmp_ge_u32 s2, {PREP_WGS}
    s_cbranch_scc1 P_end
    s_load_dwordx4 s[4:7], s[0:1], {KA['Wq']}
    s_load_dwordx4 s[8:11], s[0:1], {KA['Wv']}
    s_load_dwordx4 s[12:15], s[0:1], {KA['wr']}
    s_load_dwordx2 s[16:17], s[0:1], {KA['ws']}
    v_lshrrev_b32 v1, 6, v0
    v_and_b32 v0, 63, v0
    v_readfirstlane_b32 s3, v1
    s_lshl_b32 s2, s2, 2
    s_add_u32 s3, s3, s2
    v_lshrrev_b32 v1, 4, v0
    v_and_b32 v2, 15, v0
    s_mov_b32 s30, 0x05040100
    s_mov_b32 s31, 0x07060302
    s_waitcnt lgkmcnt(0)""")
    srd(a,20,16,WS_SIZE)
    a.I(f"""s_cmp_lt_u32 s3, {B1}
    s_cbranch_scc1 P_T5
    s_cmp_lt_u32 s3, {B2}
    s_cbranch_scc1 P_T1
    s_cmp_lt_u32 s3, {B3}
    s_cbranch_scc1 P_T2
    s_cmp_lt_u32 s3, {B4}
    s_cbranch_scc1 P_T3
    s_cmp_lt_u32 s3, {B6}
    s_cbranch_scc1 P_T4
    s_cmp_lt_u32 s3, {B7}
    s_cbranch_scc1 P_T6""")
    a.I(f"""s_sub_u32 s3, s3, {B7}
    s_lshl_b32 s3, s3, 12
    s_add_u32 s3, s3, {FLAGS}
    v_lshlrev_b32 v3, 4, v0
    v_mov_b32 v4, 0
    v_mov_b32 v5, 0
    v_mov_b32 v6, 0
    v_mov_b32 v7, 0
    buffer_store_dwordx4 v[4:7], v3, s[20:23], s3 offen
    buffer_store_dwordx4 v[4:7], v3, s[20:23], s3 offen offset:1024
    buffer_store_dwordx4 v[4:7], v3, s[20:23], s3 offen offset:2048
    buffer_store_dwordx4 v[4:7], v3, s[20:23], s3 offen offset:3072
    s_endpgm""")
    a.L("P_T1")
    a.I(f"s_sub_u32 s3, s3, {B1}")
    sdiv(a,32,3,576)
    a.I("""s_mul_i32 s33, s32, 576
    s_sub_u32 s3, s3, s33""")
    sdiv(a,33,3,18)
    a.I("""s_mul_i32 s34, s33, 18
    s_sub_u32 s34, s3, s34       ; ks
    s_cmp_eq_u32 s32, 1
    s_cselect_b32 s18, s6, s4
    s_cselect_b32 s19, s7, s5
    s_cmp_eq_u32 s32, 2
    s_cselect_b32 s18, s8, s18
    s_cselect_b32 s19, s9, s19""")
    srd(a,24,18,576*8192)
    a.I("""v_lshlrev_b32 v3, 16, v1
    v_lshl_add_u32 v3, v2, 4, v3
    s_lshl_b32 s35, s34, 18
    s_lshl_b32 s36, s33, 8
    s_add_u32 s35, s35, s36""")
    for t in range(8):
        a.I(f"buffer_load_dwordx4 v[{8+4*t}:{11+4*t}], v3, s[24:27], s35 offen")
        if t<7: a.I("s_add_u32 s35, s35, 8192")
    a.I(f"""v_lshrrev_b32 v4, 2, v2
    v_mul_u32_u24 v4, 36864, v4
    v_lshl_add_u32 v4, v1, 8, v4
    v_and_b32 v5, 3, v2
    v_lshl_add_u32 v4, v5, 6, v4
    s_mul_i32 s36, s33, 3
    s_add_u32 s36, s36, s32
    s_mul_i32 s36, s36, 147456
    s_lshl_b32 s37, s34, 10
    s_add_u32 s36, s36, s37
    s_add_u32 s36, s36, {WIMG}
    s_add_u32 s37, s36, 18432
    s_waitcnt vmcnt(0)""")
    transpose8(a,8,4,40)
    a.I("""s_cmp_eq_u32 s32, 2
    s_cbranch_scc1 P_T1v""")
    for j in range(8):
        tau=(j>>1)&1; nl=2*(j>>2)+(j&1)
        a.I(f"buffer_store_dwordx4 v[{40+4*j}:{43+4*j}], v4, s[20:23], s{36+tau} offen offset:{nl*16}")
    a.I("s_endpgm")
    a.L("P_T1v")
    for j in range(8):
        tau=j>>2; nl=j&3
        a.I(f"buffer_store_dwordx4 v[{40+4*j}:{43+4*j}], v4, s[20:23], s{36+tau} offen offset:{nl*16}")
    a.I("s_endpgm")
    a.L("P_T2")
    srd(a,24,10,4096*1152)
    a.I(f"""s_sub_u32 s3, s3, {B2}
    s_lshr_b32 s32, s3, 4          ; h
    s_lshr_b32 s33, s3, 2
    s_and_b32 s33, s33, 3          ; ks
    s_and_b32 s34, s3, 3           ; w
    v_lshrrev_b32 v3, 1, v1
    v_lshlrev_b32 v3, 4, v3
    v_and_b32 v4, 1, v1
    v_lshl_add_u32 v3, v4, 2, v3
    v_mul_u32_u24 v3, 1152, v3
    v_lshl_add_u32 v5, v2, 1, v3
    v_lshl_add_u32 v3, v2, 3, v3
    s_lshl_b32 s38, s34, 5
    v_add_u32 v5, s38, v5
    s_lshl_b32 s38, s34, 8
    v_add_u32 v3, s38, v3
    s_mul_i32 s35, s32, 147456
    s_mul_i32 s36, s33, 36864
    s_add_u32 s36, s35, s36""")
    offs=[0,1,8,9,2,3,10,11]
    for t in range(8):
        a.I(f"""s_add_u32 s37, s36, {offs[t]*1152}
        buffer_load_dwordx2 v[{8+4*t}:{9+4*t}], v3, s[24:27], s37 offen
        buffer_load_dwordx2 v[{10+4*t}:{11+4*t}], v3, s[24:27], s37 offen offset:128
        buffer_load_ushort v{72+t}, v5, s[24:27], s37 offen offset:1024""")
    a.I(f"""v_lshlrev_b32 v4, 4, v0
    s_mul_i32 s37, s34, 36864
    s_add_u32 s35, s35, s37
    s_lshl_b32 s37, s33, 10
    s_add_u32 s35, s35, s37
    s_add_u32 s35, s35, {WOC}
    s_waitcnt vmcnt(0)""")
    transpose8(a,8,4,40)
    for p in range(4):
        a.I(f"v_lshl_or_b32 v{80+p}, v{73+2*p}, 16, v{72+2*p}")
    for j in range(8):
        a.I(f"""buffer_store_dwordx4 v[{40+4*j}:{43+4*j}], v4, s[20:23], s35 offen
        s_add_u32 s35, s35, 4096""")
    a.I("buffer_store_dwordx4 v[80:83], v4, s[20:23], s35 offen\ns_endpgm")
    a.L("P_T3")
    srd(a,24,10,4096*1152)
    a.I(f"s_sub_u32 s3, s3, {B3}")
    sdiv(a,32,3,9)
    a.I(f"""s_mul_i32 s33, s32, 9
    s_sub_u32 s33, s3, s33         ; qg
    s_lshl_b32 s34, s33, 4
    v_add_u32 v5, s34, v2          ; Q
    v_mul_u32_u24 v3, 9216, v1
    v_lshl_add_u32 v3, v5, 3, v3
    s_mul_i32 s35, s32, 36864""")
    for t in range(8):
        a.I(f"buffer_load_dwordx2 v[{8+2*t}:{9+2*t}], v3, s[24:27], s35 offen")
        if t<7: a.I("s_add_u32 s35, s35, 1152")
    a.I(f"""v_mul_u32_u24 v6, 171, v5
    v_lshrrev_b32 v6, 11, v6       ; cb
    v_mul_u32_u24 v7, 12, v6
    v_sub_u32 v7, v5, v7           ; rem
    v_mul_u32_u24 v24, 11, v7
    v_lshrrev_b32 v24, 5, v24      ; mu
    v_mul_u32_u24 v25, 3, v24
    v_sub_u32 v25, v7, v25         ; tau
    v_mul_u32_u24 v4, 393216, v6
    v_lshl_add_u32 v4, v25, 10, v4
    v_lshl_add_u32 v4, v1, 8, v4
    v_lshl_add_u32 v4, v24, 6, v4
    s_mul_i32 s35, s32, 3072
    s_add_u32 s35, s35, {WOT}
    s_waitcnt vmcnt(0)""")
    transpose8(a,8,2,40)
    for j in range(4):
        a.I(f"buffer_store_dwordx4 v[{40+4*j}:{43+4*j}], v4, s[20:23], s35 offen offset:{16*j}")
    a.I("s_endpgm")
    a.L("P_T4")
    a.I(f"""s_sub_u32 s3, s3, {B4}
    s_cmp_ge_u32 s3, 648
    s_cselect_b32 s38, 1, 0          ; inv?
    s_cselect_b32 s39, 648, 0
    s_sub_u32 s3, s3, s39            ; f""")
    sdiv(a,32,3,18)
    a.I(f"""s_mul_i32 s33, s32, 18
    s_sub_u32 s33, s3, s33           ; ks
    s_lshl_b32 s34, s33, 5
    v_lshl_add_u32 v3, v1, 3, s34
    s_mov_b32 s40, {-(-(1<<32)//576)}
    s_mov_b32 s41, 0x3ae38e39        ; 1/576
    s_cmp_eq_u32 s38, 1
    s_cbranch_scc1 P_T4i
    s_lshl_b32 s34, s32, 4
    v_add_u32 v4, s34, v2            ; c (fixed)""")
    def elem(dst, d, c, wgt):
        a.I(f"""v_cmp_lt_u32 vcc, 288, v{c}
        v_subrev_u32 v30, 288, v{c}
        v_cndmask_b32 v30, v{c}, v30, vcc
        v_mov_b32 v31, 144
        v_cndmask_b32 v31, 0, v31, vcc
        v_mad_u32_u24 v30, v30, v{d}, v31
        v_mul_hi_u32 v31, v30, s40
        v_mul_u32_u24 v31, 576, v31
        v_sub_u32 v30, v30, v31
        v_cvt_f32_u32 v30, v30
        v_mul_f32 v30, s41, v30
        v_cos_f32 v{dst}, v30""")
        if wgt:
            a.I(f"""v_cmp_eq_u32 vcc, 0, v{c}
            v_cmp_eq_u32 s[42:43], v{c}, v34
            s_or_b64 vcc, vcc, s[42:43]
            v_add_f32 v31, v{dst}, v{dst}
            v_cndmask_b32 v{dst}, v31, v{dst}, vcc""")
    for t in range(8):
        a.I(f"v_add_u32 v5, {t}, v3")
        elem(8+t,5,4,False)
    a.I(f"s_mov_b32 s35, {FIMG}\ns_branch P_T4s")
    a.L("P_T4i")
    sdiv(a,36,32,3)
    a.I(f"""s_mul_i32 s37, s36, 3
    s_sub_u32 s37, s32, s37          ; tau
    s_mul_i32 s36, s36, 48
    s_lshl_b32 s37, s37, 2
    s_add_u32 s36, s36, s37
    v_lshrrev_b32 v4, 2, v2
    v_mul_u32_u24 v4, 12, v4
    v_and_b32 v5, 3, v2
    v_add3_u32 v4, v4, v5, s36       ; d (fixed)
    v_mov_b32 v34, 288""")
    for t in range(8):
        a.I(f"v_add_u32 v5, {t}, v3")
        elem(8+t,4,5,True)
    a.I(f"s_mov_b32 s35, {FINV}")
    a.L("P_T4s")
    a.I("s_nop 1")
    for p in range(4):
        a.I(f"v_cvt_pk_bf16_f32 v{20+p}, v{8+2*p}, v{9+2*p}")
    a.I("""s_lshl_b32 s3, s3, 10
    s_add_u32 s35, s35, s3
    v_lshlrev_b32 v4, 4, v0
    buffer_store_dwordx4 v[20:23], v4, s[20:23], s35 offen
    s_endpgm""")
    a.L("P_T5")
    srd(a,24,12,2048*578)
    srd(a,44,14,2048*578)
    a.I(f"""s_lshr_b32 s32, s3, 7        ; kg
    s_lshr_b32 s33, s3, 6
    s_and_b32 s33, s33, 1          ; hf
    s_lshr_b32 s34, s3, 3
    s_and_b32 s34, s34, 7          ; q
    s_and_b32 s35, s3, 7
    s_lshl_b32 s36, s32, 6
    v_add_u32 v3, s36, v0          ; kd
    v_lshlrev_b32 v4, 1, v3
    s_lshl_b32 s36, s33, 5
    s_lshl_b32 s37, s34, 2
    s_add_u32 s36, s36, s37
    s_lshl_b32 s36, s36, 5         ; 32*(32hf+4q)
    s_lshl_b32 s37, s35, 2
    s_add_u32 s36, s36, s37        ; ks0
    s_mul_i32 s36, s36, 578""")
    for i in range(4):
        for k in range(4):
            a.I(f"""buffer_load_ushort v{8+4*k+i}, v4, s[24:27], s36 offen offset:{578*k}
            buffer_load_ushort v{24+4*k+i}, v4, s[44:47], s36 offen offset:{578*k}""")
        if i<3: a.I(f"s_add_u32 s36, s36, {32*578}")
    a.I(f"""v_lshlrev_b32 v5, 13, v3
    s_lshl_b32 s36, s34, 10
    s_lshl_b32 s37, s33, 9
    s_add_u32 s36, s36, s37
    s_lshl_b32 s37, s35, 6
    s_add_u32 s36, s36, s37
    s_add_u32 s36, s36, {WFI}
    v_cmp_gt_u32 vcc, 289, v3
    s_and_saveexec_b64 s[48:49], vcc
    s_waitcnt vmcnt(0)""")
    for r in range(16):
        a.I(f"v_lshl_or_b32 v{8+r}, v{24+r}, 16, v{8+r}")
    for k in range(4):
        a.I(f"buffer_store_dwordx4 v[{8+4*k}:{11+4*k}], v5, s[20:23], s36 offen offset:{16*k}")
    a.I("s_endpgm")
    a.L("P_T6")
    a.I(f"""s_sub_u32 s3, s3, {B6}
    v_and_b32 v3, 31, v0           ; l&31
    v_lshrrev_b32 v4, 5, v0        ; hf
    v_bfe_u32 v5, v3, 2, 1
    v_lshlrev_b32 v5, 5, v5
    v_lshrrev_b32 v6, 3, v3
    v_lshl_add_u32 v5, v6, 2, v5
    v_and_b32 v6, 3, v3
    v_add_u32 v5, v5, v6
    s_mov_b32 s41, 0x3a000000      ; 1/2048
    v_lshlrev_b32 v7, 4, v0
    s_cmp_ge_u32 s3, 54
    s_cbranch_scc1 P_end
    s_cmp_ge_u32 s3, 32
    s_cbranch_scc1 P_T6c
    s_cmp_ge_u32 s3, 16
    s_cbranch_scc1 P_T6b""")
    def cs(dst, ang, off):
        a.I(f"""v_add_u32 v30, {off}, v{ang}
        v_and_b32 v30, 0x7ff, v30
        v_cvt_f32_u32 v30, v30
        v_mul_f32 v30, s41, v30
        v_cos_f32 v{dst}, v30""")
    a.I("""s_lshl_b32 s32, s3, 1
    v_lshl_add_u32 v8, v4, 5, s32
    v_mul_u32_u24 v9, v8, v3
    v_add_u32 v10, v9, v3""")
    cs(12,9,0); cs(13,10,0); cs(14,9,1536); cs(15,10,1536)
    a.I(f"""s_lshl_b32 s3, s3, 10
    s_add_u32 s3, s3, {TW1}
    s_nop 0
    buffer_store_dwordx4 v[12:15], v7, s[20:23], s3 offen
    s_endpgm""")
    a.L("P_T6b")
    import struct
    sc=struct.unpack('<I',struct.pack('<f',1.0/(2048*576)))[0]
    a.I(f"""s_sub_u32 s3, s3, 16
    s_lshr_b32 s32, s3, 3
    s_lshl_b32 s32, s32, 4
    v_add_u32 v8, s32, v5          ; s2
    s_and_b32 s33, s3, 1
    s_lshl_b32 s33, s33, 1         ; r&3
    s_bfe_u32 s34, s3, 0x20001     ; (u>>1)&3 = r>>2
    s_lshl_b32 s34, s34, 3
    s_add_u32 s33, s33, s34
    v_lshl_add_u32 v11, v4, 2, s33 ; k1
    v_mul_u32_u24 v9, v8, v11
    v_add_u32 v10, v9, v8""")
    cs(12,9,0); cs(13,10,0); cs(14,9,1536); cs(15,10,1536)
    a.I(f"""s_mov_b32 s35, {sc:#x}
    s_nop 0
    v_mul_f32 v12, s35, v12
    v_mul_f32 v13, s35, v13
    v_mul_f32 v14, s35, v14
    v_mul_f32 v15, s35, v15
    s_lshl_b32 s3, s3, 10
    s_add_u32 s3, s3, {TW2}
    buffer_store_dwordx4 v[12:15], v7, s[20:23], s3 offen
    s_endpgm""")
    a.L("P_T6c")
    a.I(f"""s_sub_u32 s3, s3, 32
    s_cmp_ge_u32 s3, 6
    s_cbranch_scc1 P_T6d
    s_lshr_b32 s32, s3, 1
    s_mov_b32 s36, 0
    s_cmp_eq_u32 s32, 1
    s_cselect_b32 s36, 1536, s36
    s_cmp_eq_u32 s32, 2
    s_cselect_b32 s36, 512, s36
    s_and_b32 s33, s3, 1
    s_lshl_b32 s33, s33, 4
    v_lshl_add_u32 v8, v4, 2, s33     ; 16k+4hf
    v_lshlrev_b32 v9, 6, v3           ; a*64""")
    for t in range(8):
        a.I(f"""v_add_u32 v10, {(t&3)+8*(t>>2)}, v8
        v_mul_u32_u24 v10, v10, v9""")
        cs(12+t,10,"s36")
    a.I("s_branch P_T6s")
    a.L("P_T6d")
    a.I(f"""s_sub_u32 s32, s3, 6
    s_cmp_ge_u32 s32, 8
    s_cselect_b32 s36, 1536, 0
    s_bfe_u32 s33, s32, 0x10002       ; phi
    s_lshl_b32 s33, s33, 4
    v_add_u32 v9, s33, v5             ; a
    v_lshlrev_b32 v9, 5, v9           ; a*32
    s_and_b32 s34, s32, 3
    s_lshl_b32 s34, s34, 3
    v_lshl_add_u32 v8, v4, 5, s34     ; 32hf+8ks""")
    for t in range(8):
        a.I(f"""v_add_u32 v10, {t}, v8
        v_mul_u32_u24 v10, v10, v9""")
        cs(12+t,10,"s36")
    a.L("P_T6s")
    a.I("s_nop 1")
    for p in range(4):
        a.I(f"v_cvt_pk_bf16_f32 v{20+p}, v{12+2*p}, v{13+2*p}")
    a.I(f"""s_lshl_b32 s3, s3, 10
    s_add_u32 s3, s3, {CST}
    buffer_store_dwordx4 v[20:23], v7, s[20:23], s3 offen""")
    a.L("P_end")
    a.I("s_endpgm")
    return (name, f"; @launch kernel={name} grid=({PREP_WGS},1,1) block=(256,1,1) lds=0", kernel_desc(name, 88, 64))
```

```python
from common import *
XF_TH=18432+64
XF_SIZE=2*XF_TH

def xlane_sum(a, x, t, op="v_add_f32"):
    a.I(f"""{op}_dpp v{x}, v{x}, v{x} row_ror:8 row_mask:0xf bank_mask:0xf
    v_mov_b32 v{t}, v{x}
    v_permlane16_swap_b32 v{x}, v{t}
    {op} v{x}, v{x}, v{t}
    v_mov_b32 v{t}, v{x}
    v_permlane32_swap_b32 v{x}, v{t}
    {op} v{x}, v{x}, v{t}""")

def rbf(a, x):
    a.I(f"""v_cvt_pk_bf16_f32 v{x}, v{x}, v{x}
    v_and_b32 v{x}, 0xffff0000, v{x}""")

def ln_addr(a, vw, vlane, vgoff, vloff, t, ldsbase=0):
    a.I(f"""v_and_b32 v{t}, 7, v{vlane}            ; rho
    v_lshl_add_u32 v{vgoff}, {vw}, 3, v{t}
    v_mul_u32_u24 v{vgoff}, 1152, v{vgoff}
    v_lshrrev_b32 v{t+1}, 3, v{vlane}              ; c
    v_lshl_add_u32 v{vgoff}, v{t+1}, 4, v{vgoff}
    v_lshrrev_b32 v{vloff}, 2, v{t}                ; theta
    v_mul_u32_u24 v{vloff}, {XF_TH}, v{vloff}
    v_lshl_add_u32 v{vloff}, v{t+1}, 8, v{vloff}   ; c*256 = (c>>2)*1024+(c&3)*256
    v_and_b32 v{t}, 3, v{t}
    v_lshl_add_u32 v{t}, {vw}, 2, v{t}             ; n
    v_lshl_add_u32 v{vloff}, v{t}, 4, v{vloff}""")
    if ldsbase: a.I(f"v_add_u32 v{vloff}, {ldsbase}, v{vloff}")

def ln_load(a, X, vgoff, srdx, soff, flags=""):
    for j in range(9):
        a.I(f"buffer_load_dwordx4 v[{X+4*j}:{X+4*j+3}], v{vgoff}, s[{srdx}:{srdx+3}], {soff} offen offset:{128*j} {flags}")

def ln_compute(a, X, T, vloff, sA, sB):
    assert T%2==0
    a.I(f"""s_mov_b32 s{sA}, 0x3f803f80
    s_mov_b32 s{sB}, 0x3ae38e39
    v_mov_b32 v{T}, 0
    v_mov_b32 v{T+1}, 0""")
    for i in range(36):
        a.I(f"v_dot2_f32_bf16 v{T+(i&1)}, v{X+i}, s{sA}, v{T+(i&1)}")
    a.I(f"v_add_f32 v{T}, v{T}, v{T+1}")
    xlane_sum(a,T,T+1)
    a.I(f"""v_mul_f32 v{T}, s{sB}, v{T}
    v_mov_b32 v{T+2}, v{T}""")
    rbf(a,T+2)
    a.I(f"""v_mov_b32 v{T+3}, v{T+2}
    v_sub_f32 v{T}, v{T}, v{T+2}
    v_mov_b32 v{T+4}, 0
    v_mov_b32 v{T+5}, 0""")
    for i in range(36):
        u=T+6+2*(i&1)
        a.I(f"""v_lshlrev_b32 v{u}, 16, v{X+i}
        v_and_b32 v{u+1}, 0xffff0000, v{X+i}
        v_pk_add_f32 v[{u}:{u+1}], v[{u}:{u+1}], v[{T+2}:{T+3}] neg_lo:[0,1] neg_hi:[0,1]
        v_pk_fma_f32 v[{T+4}:{T+5}], v[{u}:{u+1}], v[{u}:{u+1}], v[{T+4}:{T+5}]
        v_cvt_pk_bf16_f32 v{X+i}, v{u}, v{u+1}""")
    a.I(f"v_add_f32 v{T+4}, v{T+4}, v{T+5}")
    xlane_sum(a,T+4,T+5)
    a.I(f"""v_mul_f32 v{T+4}, s{sB}, v{T+4}
    v_fma_f32 v{T+4}, -v{T}, v{T}, v{T+4}
    v_max_f32 v{T+4}, 0, v{T+4}""")
    rbf(a,T+4)
    a.I(f"v_add_f32 v{T+4}, 0x3727c5ac, v{T+4}")
    rbf(a,T+4)
    a.I(f"v_sqrt_f32 v{T+4}, v{T+4}")
    rbf(a,T+4)
    a.I(f"""v_rcp_f32 v{T+4}, v{T+4}
    s_nop 0
    v_mov_b32 v{T+5}, v{T+4}""")
    for j in range(9):
        for k in range(4):
            i=4*j+k
            u=T+6+2*(i&1)
            a.I(f"""v_lshlrev_b32 v{u}, 16, v{X+i}
            v_and_b32 v{u+1}, 0xffff0000, v{X+i}
            v_pk_mul_f32 v[{u}:{u+1}], v[{u}:{u+1}], v[{T+4}:{T+5}]
            v_cvt_pk_bf16_f32 v{X+i}, v{u}, v{u+1}""")
        a.I(f"ds_write_b128 v{vloff}, v[{X+4*j}:{X+4*j+3}] offset:{2048*j}")

def load_54(a, vl16, srdw, sb):
    a.I(f"""s_add_u32 s{sb+1}, s{sb}, 18432
    s_add_u32 s{sb+2}, s{sb}, 36864""")
    for ks in range(18):
        for tau in range(3):
            r=(ks*3+tau)*4
            a.I(f"buffer_load_dwordx4 a[{r}:{r+3}], v{vl16}, s[{srdw}:{srdw+3}], s{sb+tau} offen offset:{(ks&3)*1024} sc1")
        if ks&3==3:
            for tau in range(3): a.I(f"s_add_u32 s{sb+tau}, s{sb+tau}, 4096")

def role_d(a, P):
    a.L(P+"D")
    lane(a,0)
    sdiv(a,3,44,3)
    a.I(f"""s_mul_i32 s43, s3, 3
    s_sub_u32 s43, s44, s43              ; cg
    s_add_u32 s40, s44, 48
    v_mov_b32 v1, s5""")
    ln_addr(a,"v1",0,2,3,4)
    a.I(f"""v_lshlrev_b32 v6, 4, v0
    v_and_b32 v7, 15, v0
    v_lshrrev_b32 v8, 4, v0
    v_lshlrev_b32 v7, 12, v7
    v_lshl_add_u32 v7, v8, 4, v7""")
    wait_dbg(a,DB_TAB,NOTH,8)
    a.I(f"""s_lshl_b32 s7, s43, 2
    s_add_u32 s7, s7, s5
    s_mul_i32 s10, s7, {54*1024}
    s_add_u32 s10, s10, {FIMG}""")
    load_54(a,6,84,10)
    a.L(P+"D_loop")
    a.I(f"""s_lshl_b32 s6, s3, 6
    s_add_u32 s6, s6, {FLAGS+XFLAG}""")
    wait_flags(a,6,12,8,6,sleep=2)
    a.I(f"""s_mul_i32 s6, s3, {32*1152}
    s_add_u32 s6, s6, {XA}""")
    X=16
    ln_load(a,X,2,20,"s6","sc1")
    a.I("s_waitcnt vmcnt(0)")
    ln_compute(a,X,52,3,12,13)
    a.I("s_waitcnt lgkmcnt(0)\ns_barrier")
    ACC=64; FR=16
    def rd(ks):
        for th in range(2):
            r=FR+((ks%4)*2+th)*4
            a.I(f"ds_read_b128 v[{r}:{r+3}], v6 offset:{th*XF_TH+ks*1024}")
    for ks in range(3): rd(ks)
    for ks in range(18):
        if ks+3<18: rd(ks+3)
        a.I(f"s_waitcnt lgkmcnt({min(3,17-ks)*2})")
        for th in range(2):
            for tau in range(3):
                d=ACC+(th*3+tau)*4; r=FR+((ks%4)*2+th)*4; w=(ks*3+tau)*4
                c="0" if ks==0 else f"v[{d}:{d+3}]"
                a.I(f"v_mfma_f32_16x16x32_bf16 v[{d}:{d+3}], v[{r}:{r+3}], a[{w}:{w+3}], {c}")
    a.I(f"""s_mul_i32 s8, s7, {48*4096}
    s_lshl_b32 s9, s3, 6
    s_add_u32 s8, s8, s9
    s_add_u32 s8, s8, {ZF}""")
    for tau in range(3):
        o=16+4*tau
        for th in range(2):
            d=ACC+(th*3+tau)*4
            a.I(f"""v_cvt_pk_bf16_f32 v{o+2*th}, v{d}, v{d+1}
            v_cvt_pk_bf16_f32 v{o+2*th+1}, v{d+2}, v{d+3}""")
        a.I(f"buffer_store_dwordx4 v[{o}:{o+3}], v7, s[20:23], s8 offen sc1")
        if tau<2: a.I(f"s_add_u32 s8, s8, {16*4096}")
    a.I(f"""s_waitcnt vmcnt(0)
    s_barrier
    s_cmp_lg_u32 s5, 0
    s_cbranch_scc1 {P}D_n""")
    add_dbg(a,DB_L4,8,layer=True)
    a.L(P+"D_n")
    a.I(f"""s_add_u32 s3, s3, {ND}
    s_cmp_lt_u32 s3, 64
    s_cbranch_scc1 {P}D_loop
    s_mov_b32 s41, 1
    s_branch {P}L5""")

NFIN=53
def role_e(a, P):
    a.L(P+"Efin")
    a.I(f"""s_cmp_ge_u32 s4, {3*NFIN}
    s_cbranch_scc1 {P}end
    s_load_dwordx2 s[16:17], s[0:1], {KA['ws']}
    s_waitcnt vmcnt(0) lgkmcnt(0)
    s_barrier""")
    srd(a,84,16,WS_SIZE)
    a.I(f"""s_add_u32 s20, s84, {LOFF}
    s_addc_u32 s21, s85, 0
    s_mov_b32 s22, {WS_SIZE-LOFF}
    s_mov_b32 s95, 1
    s_mov_b32 s44, s4
    s_mov_b32 s42, 64
    s_branch {P}E_go""")
    a.L(P+"E")
    a.I(f"""s_sub_u32 s44, s44, {3*ND}
    s_mov_b32 s42, {NE}""")
    a.L(P+"E_go")
    lane(a,0)
    sdiv(a,3,44,3)
    a.I(f"""s_mul_i32 s43, s3, 3
    s_sub_u32 s43, s44, s43              ; cg
    s_mov_b32 s40, s3
    v_lshlrev_b32 v6, 4, v0
    v_lshrrev_b32 v2, 2, v0
    v_lshlrev_b32 v2, 12, v2
    v_and_b32 v3, 3, v0
    v_lshl_add_u32 v2, v3, 4, v2
    v_lshrrev_b32 v4, 4, v0
    v_bfe_u32 v5, v0, 2, 2
    v_lshl_add_u32 v5, v4, 3, v5
    v_lshlrev_b32 v5, 6, v5
    v_lshl_add_u32 v5, v3, 3, v5
    v_and_b32 v7, 15, v0
    v_mul_u32_u24 v7, 1152, v7
    v_mul_u32_u24 v8, 24, v4
    v_add_u32 v7, v7, v8""")
    wait_dbg(a,DB_TAB,NOTH,8)
    a.I(f"""s_lshl_b32 s7, s43, 2
    s_add_u32 s7, s7, s5
    s_mul_i32 s10, s7, {54*1024}
    s_add_u32 s10, s10, {FINV}""")
    load_54(a,6,84,10)
    a.L(P+"E_layer")
    a.I(f"""s_load_dwordx2 s[18:19], s[0:1], {KA['out']}
    s_add_u32 s16, s84, {LOFF+XIN}
    s_addc_u32 s17, s85, 0
    s_waitcnt lgkmcnt(0)
    s_cmp_eq_u32 s95, 0
    s_cselect_b32 s18, s16, s18
    s_cselect_b32 s19, s17, s19""")
    srd(a,80,18,XBYTES)
    wait_dbg(a,DB_L5,289,8,sleep=2,layer=True)
    a.L(P+"E_loop")
    a.I(f"""s_mul_i32 s6, s5, {9*16*4096}
    s_lshl_b32 s9, s3, 6
    s_add_u32 s6, s6, s9
    s_add_u32 s6, s6, {ZO}
    s_mul_i32 s9, s5, 9216""")
    for j in range(9):
        a.I(f"""s_mov_b32 m0, s9
        buffer_load_dwordx4 v2, s[20:23], s6 offen sc1 lds""")
        if j<8: a.I(f"s_add_u32 s6, s6, {16*4096}\ns_add_u32 s9, s9, 1024")
    a.I(f"""s_mul_i32 s10, s3, {32*1152}
    s_mul_i32 s11, s7, 96
    s_add_u32 s10, s10, s11
    s_add_u32 s11, s10, {16*1152}
    s_add_u32 s12, s10, {XA}
    s_add_u32 s13, s11, {XA}""")
    for th in range(2):
        a.I(f"""buffer_load_dwordx4 v[{48+6*th}:{51+6*th}], v7, s[20:23], s{12+th} offen sc1
        buffer_load_dwordx2 v[{52+6*th}:{53+6*th}], v7, s[20:23], s{12+th} offen offset:16 sc1""")
    a.I("s_waitcnt vmcnt(4)\ns_barrier")
    ACC=64; FR=16
    def rd(ks):
        for th in range(2):
            r=FR+((ks%4)*2+th)*4
            for rho in range(2):
                a.I(f"ds_read_b64_tr_b16 v[{r+2*rho}:{r+2*rho+1}], v5 offset:{ks*2048+rho*256+th*32}")
    for ks in range(3): rd(ks)
    for ks in range(18):
        if ks+3<18: rd(ks+3)
        a.I(f"s_waitcnt lgkmcnt({min(3,17-ks)*4})")
        for th in range(2):
            for tau in range(3):
                d=ACC+(th*3+tau)*4; r=FR+((ks%4)*2+th)*4; w=(ks*3+tau)*4
                c="0" if ks==0 else f"v[{d}:{d+3}]"
                a.I(f"v_mfma_f32_16x16x32_bf16 v[{d}:{d+3}], a[{w}:{w+3}], v[{r}:{r+3}], {c}")
    a.I("s_waitcnt vmcnt(0)")
    for th in range(2):
        for p in range(6):
            x=48+6*th+p; d=ACC+th*12+2*p
            a.I(f"""v_lshlrev_b32 v10, 16, v{x}
            v_and_b32 v11, 0xffff0000, v{x}
            v_pk_add_f32 v[10:11], v[10:11], v[{d}:{d+1}]
            v_cvt_pk_bf16_f32 v{x}, v10, v11""")
        a.I(f"""buffer_store_dwordx4 v[{48+6*th}:{51+6*th}], v7, s[80:83], s{10+th} offen sc1
        buffer_store_dwordx2 v[{52+6*th}:{53+6*th}], v7, s[80:83], s{10+th} offen offset:16 sc1""")
    a.I(f"""s_waitcnt vmcnt(0)
    s_barrier
    s_or_b32 s9, s5, s95
    s_cmp_lg_u32 s9, 0
    s_cbranch_scc1 {P}E_n
    s_lshl_b32 s6, s3, 4
    s_lshl_b32 s9, s43, 2
    s_add_u32 s6, s6, s9
    s_add_u32 s6, s6, {LOFF+FLAGS+EFLAG}""")
    post_flag(a,6,10)
    a.L(P+"E_n")
    a.I(f"""s_add_u32 s3, s3, s42
    s_cmp_lt_u32 s3, 64
    s_cbranch_scc1 {P}E_loop
    s_cmp_eq_u32 s95, 1
    s_cbranch_scc1 {P}end""")
    next_layer(a)
    a.I(f"""s_add_u32 s3, s40, {NFIN}
    s_branch {P}E_layer""")

def block_l5(a, P):
    name=P+"L5"; E=name+"_end"
    ACC=64; PRE=128; PIM=144; PNG=160; TW=176; W=0; T=40
    C32=0; S32=8; NS32=16; C64=24; S64=56
    a.L(name)
    lane(a,0)
    a.I(f"""s_lshl_b32 s2, s40, 2
    s_add_u32 s2, s2, s5
    s_waitcnt vmcnt(0) lgkmcnt(0)
    s_barrier
    s_cmp_ge_u32 s2, 289
    s_cbranch_scc1 {E}2
    s_lshl_b32 s10, s5, 13
    v_lshlrev_b32 v32, 4, v0
    v_lshrrev_b32 v33, 5, v0
    v_bfe_u32 v34, v0, 2, 2
    v_lshl_add_u32 v33, v33, 2, v34
    v_lshlrev_b32 v33, 7, v33
    v_and_b32 v34, 1, v0
    v_lshl_add_u32 v33, v34, 6, v33
    v_bfe_u32 v34, v0, 4, 1
    v_lshl_add_u32 v33, v34, 4, v33
    v_bfe_u32 v34, v0, 1, 1
    v_lshl_add_u32 v33, v34, 3, v33
    v_add_u32 v33, s10, v33
    v_add_u32 v36, s10, v32
    v_and_b32 v35, 31, v0
    v_lshlrev_b32 v35, 7, v35
    v_lshrrev_b32 v34, 5, v0
    v_lshl_add_u32 v35, v34, 6, v35
    s_lshl_b32 s12, s2, 12
    s_add_u32 s13, s12, {288*4096}
    s_cmp_eq_u32 s2, 0
    s_cselect_b32 s6, 1, 0
    s_cmp_eq_u32 s2, 288
    s_cselect_b32 s6, 1, s6""")
    wait_dbg(a,DB_TAB,NOTH,38)
    a.I(f"s_mov_b32 s8, {CST}")
    for f in range(22):
        a.I(f"buffer_load_dwordx4 a[{4*f}:{4*f+3}], v32, s[84:87], s8 offen offset:{(f&3)*1024} sc1")
        if f&3==3: a.I("s_add_u32 s8, s8, 4096")
    a.I(f"s_mov_b32 s8, {TW1}")
    for u in range(16):
        a.I(f"buffer_load_dwordx4 v[{TW+4*u}:{TW+4*u+3}], v32, s[84:87], s8 offen offset:{(u&3)*1024} sc1")
        if u&3==3: a.I("s_add_u32 s8, s8, 4096")
    for u in range(16):
        a.I(f"buffer_load_dwordx4 a[{96+4*u}:{99+4*u}], v32, s[84:87], s8 offen offset:{(u&3)*1024} sc1")
        if u&3==3: a.I("s_add_u32 s8, s8, 4096")
    a.I(f"""s_lshl_b32 s8, s2, 13
    s_add_u32 s8, s8, {WFI}""")
    for q in range(8):
        a.I(f"buffer_load_dwordx4 v[{W+4*q}:{W+4*q+3}], v32, s[84:87], s8 offen offset:{(q&3)*1024} sc1")
        if q==3: a.I("s_add_u32 s8, s8, 4096")
    wait_dbg(a,DB_L4,192,38,sleep=2,layer=True)
    a.I(f"""s_add_u32 s7, s12, {ZF}
    s_mov_b32 m0, s10
    s_nop 0""")
    for j in range(4): a.I(f"buffer_load_dwordx4 v32, s[20:23], s7 offen offset:{1024*j} sc1 lds")
    a.I(f"""s_cmp_eq_u32 s6, 1
    s_cbranch_scc1 {name}_zim
    s_add_u32 s7, s13, {ZF}
    s_add_u32 m0, s10, 4096
    s_nop 0""")
    for j in range(4): a.I(f"buffer_load_dwordx4 v32, s[20:23], s7 offen offset:{1024*j} sc1 lds")
    a.I(f"s_branch {name}_c")
    a.L(name+"_zim")
    for i in range(4): a.I(f"v_mov_b32 v{T+i}, 0")
    for j in range(4): a.I(f"ds_write_b128 v36, v[{T}:{T+3}] offset:{4096+1024*j}")
    a.L(name+"_c")
    a.I("s_waitcnt vmcnt(0) lgkmcnt(0)")
    XA_=128
    for pl in range(2):
        for th in range(2):
            for kp in range(2):
                r=XA_+((pl*2+th)*2+kp)*4
                for rho in range(2):
                    a.I(f"ds_read_b64_tr_b16 v[{r+2*rho}:{r+2*rho+1}], v33 offset:{pl*4096+kp*2048+rho*1024+th*32}")
    a.I("s_waitcnt lgkmcnt(0)")
    def mm(d, A, B, first):
        c="0" if first else f"v[{d}:{d+15}]"
        a.I(f"v_mfma_f32_32x32x16_bf16 v[{d}:{d+15}], {A}, {B}, {c}")
    RE=lambda t: ACC+16*t
    IM=lambda t: ACC+32+16*t
    xa=lambda pl,th,kp: vr(XA_+((pl*2+th)*2+kp)*4,4)
    for th in range(2):
        for kp in range(2):
            mm(RE(th), xa(0,th,kp), ar(C32+4*kp,4), kp==0)
            mm(IM(th), xa(1,th,kp), ar(C32+4*kp,4), kp==0)
        for kp in range(2):
            mm(RE(th), xa(1,th,kp), ar(S32+4*kp,4), False)
            mm(IM(th), xa(0,th,kp), ar(NS32+4*kp,4), False)
    def cmul(re, im, c, s, sign, i, outs):
        t=T+4*(i&1)
        n1="" if sign>0 else " neg_lo:[1,0,0] neg_hi:[1,0,0]"
        n2=" neg_lo:[1,0,0] neg_hi:[1,0,0]" if sign>0 else ""
        a.I(f"""v_pk_mul_f32 v[{t}:{t+1}], v[{re}:{re+1}], v[{c}:{c+1}]
        v_pk_mul_f32 v[{t+2}:{t+3}], v[{im}:{im+1}], v[{c}:{c+1}]
        v_pk_fma_f32 v[{t}:{t+1}], v[{im}:{im+1}], v[{s}:{s+1}], v[{t}:{t+1}]{n1}
        v_pk_fma_f32 v[{t+2}:{t+3}], v[{re}:{re+1}], v[{s}:{s+1}], v[{t+2}:{t+3}]{n2}""")
        for dst,which,neg in outs:
            b=t+2*which; m="-" if neg else ""
            a.I(f"v_cvt_pk_bf16_f32 v{dst}, {m}v{b}, {m}v{b+1}")
    for th in range(2):
        for p in range(8):
            u=8*th+p
            cmul(RE(th)+2*p, IM(th)+2*p, TW+4*u, TW+4*u+2, +1, u, [(PRE+u,0,False),(PIM+u,1,False),(PNG+u,0,True)])
    for ph in range(2):
        for ks in range(4):
            mm(RE(ph), ar(C64+(ph*4+ks)*4,4), vr(PRE+4*ks,4), ks==0)
            mm(IM(ph), ar(C64+(ph*4+ks)*4,4), vr(PIM+4*ks,4), ks==0)
        for ks in range(4):
            mm(RE(ph), ar(S64+(ph*4+ks)*4,4), vr(PIM+4*ks,4), False)
            for i in range(4): a.I(f"v_accvgpr_read_b32 v{TW+(ph*4+ks)*8+i}, a{96+(ph*4+ks)*8+i}")
            mm(IM(ph), ar(S64+(ph*4+ks)*4,4), vr(PNG+4*ks,4), False)
            for i in range(4,8): a.I(f"v_accvgpr_read_b32 v{TW+(ph*4+ks)*8+i}, a{96+(ph*4+ks)*8+i}")
    for ph in range(2):
        for p in range(8):
            u=8*ph+p; w=W+2*u; q=48+4*(u&1)
            a.I(f"""v_lshlrev_b32 v{q}, 16, v{w}
            v_lshlrev_b32 v{q+1}, 16, v{w+1}
            v_and_b32 v{q+2}, 0xffff0000, v{w}
            v_and_b32 v{q+3}, 0xffff0000, v{w+1}""")
            cmul(RE(ph)+2*p, IM(ph)+2*p, q, q+2, -1, u, [(PRE+u,0,False),(PIM+u,1,False),(PNG+u,1,True)])
    for th in range(2):
        for ks in range(4):
            mm(RE(th), vr(PRE+4*ks,4), ar(C64+(th*4+ks)*4,4), ks==0)
            mm(IM(th), vr(PIM+4*ks,4), ar(C64+(th*4+ks)*4,4), ks==0)
        for ks in range(4):
            mm(RE(th), vr(PNG+4*ks,4), ar(S64+(th*4+ks)*4,4), False)
            mm(IM(th), vr(PRE+4*ks,4), ar(S64+(th*4+ks)*4,4), False)
    a.I("s_waitcnt vmcnt(0)")
    for th in range(2):
        for p in range(8):
            u=8*th+p
            cmul(RE(th)+2*p, IM(th)+2*p, TW+4*u, TW+4*u+2, -1, u, [(PRE+u,0,False),(PIM+u,1,False)])
    for th in range(2):
        for rho in range(2):
            mm(RE(th), vr(PRE+8*th+4*rho,4), ar(C32+4*rho,4), rho==0)
            mm(IM(th), vr(PIM+8*th+4*rho,4), ar(C32+4*rho,4), rho==0)
        for rho in range(2):
            mm(RE(th), vr(PIM+8*th+4*rho,4), ar(NS32+4*rho,4), False)
            mm(IM(th), vr(PRE+8*th+4*rho,4), ar(S32+4*rho,4), False)
    a.I(f"""s_add_u32 s12, s12, {ZO}
    s_add_u32 s13, s13, {ZO}""")
    for i in range(16): a.I(f"v_cvt_pk_bf16_f32 v{i}, v{ACC+2*i}, v{ACC+2*i+1}")
    for i in range(4): a.I(f"buffer_store_dwordx4 v[{4*i}:{4*i+3}], v35, s[20:23], s12 offen offset:{16*i} sc1")
    a.I(f"""s_cmp_eq_u32 s6, 1
    s_cbranch_scc1 {E}""")
    for i in range(16): a.I(f"v_cvt_pk_bf16_f32 v{16+i}, v{ACC+32+2*i}, v{ACC+32+2*i+1}")
    for i in range(4): a.I(f"buffer_store_dwordx4 v[{16+4*i}:{19+4*i}], v35, s[20:23], s13 offen offset:{16*i} sc1")
    a.L(E)
    a.I("s_waitcnt vmcnt(0)")
    add_dbg(a,DB_L5,38,layer=True)
    a.L(E+"2")
    a.I(f"""s_cmp_eq_u32 s95, 1
    s_cbranch_scc1 {P}end""")
    next_layer(a)
    a.I(f"""s_nop 7
    s_barrier
    s_cmp_eq_u32 s41, 0
    s_cbranch_scc1 {P}C
    s_branch {P}D""")
```

```python
from chaindefs import *
from rawload import *

def chain_setup(a, P, dbg=False):
    def T(i):
        if dbg: a.I(f"s_memtime s[50:51]\ns_waitcnt lgkmcnt(0)\ns_sub_u32 s{96+i}, s50, s88")
    flg=FLAGS
    a.L(P+"A")
    T(0)
    a.I(f"""v_and_b32 v10, 15, v0
    v_lshrrev_b32 v11, 4, v0
    v_mov_b32 v{IDX}, 0x4444
    v_mov_b32 v12, 0xeeee
    v_and_b32 v13, 2, v0
    v_cmp_eq_u32 vcc, 2, v13
    v_cndmask_b32 v{IDX}, v{IDX}, v12, vcc
    s_lshl_b32 s8, s5, 9
    v_lshl_add_u32 v12, v10, 5, s8
    v_lshl_add_u32 v13, v11, 2, v12
    v_add_u32 v13, {TQ}, v13
    v_lshl_add_u32 v14, v11, 3, v12
    v_add_u32 v14, {TK}, v14
    v_lshl_or_b32 v{PK1}, v14, 16, v13
    v_lshlrev_b32 v13, 7, v11
    v_bfe_u32 v12, v0, 2, 1
    v_lshl_add_u32 v13, v12, 5, v13
    v_bfe_u32 v12, v0, 3, 1
    v_lshl_add_u32 v13, v12, 4, v13
    v_and_b32 v12, 1, v0
    v_lshl_add_u32 v13, v12, 3, v13
    v_add_u32 v13, {TQ}, v13
    v_lshlrev_b32 v14, 8, v11
    v_bfe_u32 v12, v0, 2, 2
    v_lshl_add_u32 v14, v12, 5, v14
    v_and_b32 v12, 3, v0
    v_lshl_add_u32 v14, v12, 3, v14
    v_add_u32 v14, {TK}, v14
    v_lshl_or_b32 v{PK2}, v14, 16, v13
    v_lshrrev_b32 v12, 1, v11
    v_lshlrev_b32 v13, 4, v12
    v_bfe_u32 v12, v0, 1, 2
    v_lshl_add_u32 v13, v12, 2, v13
    v_and_b32 v12, 1, v11
    v_lshl_add_u32 v13, v12, 1, v13
    v_and_b32 v12, 1, v0
    v_add_u32 v13, v13, v12
    v_lshl_add_u32 v13, v13, 4, s8
    v_add_u32 v13, {OL}, v13
    s_lshr_b32 s9, s4, 3
    s_mul_i32 s9, s9, 18
    s_and_b32 s10, s4, 7
    s_add_u32 s9, s9, s10
    s_lshl_b32 s10, s5, 3
    s_add_u32 s9, s9, s10                ; 18*(h>>3)+(h&7)+8w
    s_lshr_b32 s10, s4, 1
    s_mul_i32 s10, s10, 18
    s_and_b32 s11, s4, 1
    s_add_u32 s10, s10, s11
    s_add_u32 s10, s10, 16               ; 18*(h>>1)+16+(h&1)
    s_cmp_lt_u32 s5, 2
    s_cselect_b32 s40, s9, s10           ; u
    s_cselect_b32 s41, 1, 0
    s_cmp_eq_u32 s5, 2
    s_cselect_b32 s9, 1, 0
    s_cmp_lt_u32 s4, 8
    s_cselect_b32 s10, 1, 0
    s_and_b32 s9, s9, s10
    s_or_b32 s41, s41, s9
    s_min_u32 s40, s40, 71""")
    sdiv(a,42,40,18)
    a.I(f"""s_mul_i32 s9, s42, 18
    s_sub_u32 s43, s40, s9               ; lambda
    v_and_b32 v18, 7, v10
    s_cmp_ge_u32 s43, 16
    s_cbranch_scc1 {P}A_u8
    s_lshl_b32 s44, s42, 7
    s_and_b32 s9, s43, 1
    s_lshl_b32 s9, s9, 5
    s_add_u32 s44, s44, s9
    s_lshr_b32 s9, s43, 3
    s_lshl_b32 s9, s9, 6
    s_add_u32 s44, s44, s9
    v_lshl_add_u32 v14, v18, 2, s44
    s_bfe_u32 s9, s43, 0x20001
    v_mov_b32 v15, s9                    ; g_src
    s_branch {P}A_uj""")
    a.L(P+"A_u8")
    a.I(f"""s_lshl_b32 s44, s42, 4
    s_add_u32 s44, s44, 512
    v_and_b32 v12, 3, v10
    v_lshl_add_u32 v14, v12, 2, s44
    s_sub_u32 s9, s43, 16
    s_lshl_b32 s9, s9, 1
    v_lshrrev_b32 v15, 2, v18
    v_add_u32 v15, s9, v15""")
    a.L(P+"A_uj")
    a.I("""v_and_b32 v12, 2, v11
    v_add_u32 v14, v14, v12              ; c = c0 + 2*(g>>1)""")
    a.I(f"""v_lshrrev_b32 v16, 4, v14
    v_lshlrev_b32 v16, 8, v16            ; (c>>4)*256
    v_lshl_add_u32 v16, v15, 6, v16
    v_bfe_u32 v12, v14, 1, 1
    v_lshl_add_u32 v16, v12, 5, v16
    v_and_b32 v12, 1, v11
    v_lshl_add_u32 v16, v12, 4, v16
    v_bfe_u32 v12, v14, 2, 2
    v_lshl_add_u32 v16, v12, 2, v16
    v_lshl_or_b32 v{PK3}, v16, 16, v13
    v_lshrrev_b32 v12, 3, v0
    v_lshlrev_b32 v13, 12, v12
    v_and_b32 v12, 7, v0
    v_lshl_add_u32 v13, v12, 4, v13
    v_lshrrev_b32 v12, 5, v0
    v_lshlrev_b32 v14, 12, v12
    v_and_b32 v12, 31, v0
    v_lshl_add_u32 v14, v12, 2, v14
    v_mov_b32 v{PK4}, v13
    v_mov_b32 v19, v14
    ; Asel -> v[20:23]
    v_mov_b32 v12, 0x3f80
    v_mov_b32 v13, 0x3f800000
    v_and_b32 v14, 4, v10
    v_cmp_eq_u32 vcc, 4, v14
    v_cndmask_b32 v12, v12, v13, vcc
    v_and_b32 v14, 2, v10
    v_cmp_eq_u32 vcc, 0, v14
    v_cndmask_b32 v12, 0, v12, vcc
    v_lshrrev_b32 v13, 3, v10
    v_lshlrev_b32 v13, 1, v13
    v_and_b32 v14, 1, v10
    v_add_u32 v13, v13, v14
    v_cmp_eq_u32 vcc, 0, v13
    v_cndmask_b32 v20, 0, v12, vcc
    v_cmp_eq_u32 vcc, 1, v13
    v_cndmask_b32 v21, 0, v12, vcc
    v_cmp_eq_u32 vcc, 2, v13
    v_cndmask_b32 v22, 0, v12, vcc
    v_cmp_eq_u32 vcc, 3, v13
    v_cndmask_b32 v23, 0, v12, vcc
    v_lshlrev_b32 v{KVR}, 4, v0
    ds_write_b128 v{KVR}, v[20:23] offset:{SPARE}
    s_mul_i32 s9, s5, {WLW}
    s_add_u32 s45, s9, {WLB}
    v_add_u32 v{WL}, s45, v{KVR}
    s_mul_i32 s32, s5, {18*4096}
    s_lshl_b32 s9, s4, 7
    s_add_u32 s32, s32, s9
    s_add_u32 s32, s32, {PART}
    s_add_u32 s11, s32, {8*4096}
    s_add_u32 s12, s32, {16*4096}
    s_lshl_b32 s33, s40, 12
    s_add_u32 s33, s33, {PART}
    s_mov_b32 s35, {SCL}
    s_mov_b32 s48, {SCL}
    s_mov_b32 s49, {SCL}
    s_lshl_b32 s9, s4, 2
    s_add_u32 s9, s9, s5
    s_lshl_b32 s47, s9, 12
    s_add_u32 s47, s47, {WOC}
    s_lshl_b32 s54, s4, 2
    s_add_u32 s54, s54, {HINT}
    s_and_b32 s55, s4, 7
    s_lshl_b32 s55, s55, 8
    s_add_u32 s55, s55, {HINT}""")
    T(1)
    VA,VN,VO,V8,TRV,TRN,TR8,VB,TVL=8,9,12,13,14,15,16,17,18
    a.I(f"""v_lshrrev_b32 v20, 2, v0             ; a
    v_and_b32 v21, 3, v0                 ; piece / c4
    v_and_b32 v22, 3, v20
    v_lshlrev_b32 v22, 4, v22
    v_add_u32 v22, v22, v11              ; 16*(a&3)+(a>>2)
    v_lshlrev_b32 v{VA}, 13, v22
    v_lshl_add_u32 v{VA}, v21, 4, v{VA}
    v_lshlrev_b32 v{VN}, 13, v20
    v_lshl_add_u32 v{VN}, v21, 4, v{VN}""")
    def rowO(dst,x,t):
        a.I(f"""v_bfe_u32 v{t}, v{x}, 3, 1
        v_lshlrev_b32 v{dst}, 2, v{t}
        v_bfe_u32 v{t}, v{x}, 2, 1
        v_lshl_add_u32 v{dst}, v{t}, 1, v{dst}
        v_bfe_u32 v{t}, v{x}, 1, 1
        v_lshl_add_u32 v{dst}, v{t}, 3, v{dst}
        v_and_b32 v{t}, 1, v{x}
        v_add_u32 v{dst}, v{dst}, v{t}""")
    rowO(22,20,23)
    a.I(f"""v_mul_u32_u24 v{VO}, 1152, v22
    v_lshl_add_u32 v{VO}, v21, 4, v{VO}
    v_lshrrev_b32 v24, 1, v0""")
    rowO(22,24,23)
    a.I(f"""v_lshrrev_b32 v23, 5, v0
    v_lshl_add_u32 v22, v23, 4, v22
    v_mul_u32_u24 v{V8}, 1152, v22
    v_and_b32 v23, 1, v0
    v_lshl_add_u32 v{V8}, v23, 4, v{V8}
    ; 8gb+r
    v_and_b32 v22, 3, v20
    v_lshl_add_u32 v22, v11, 3, v22
    s_lshl_b32 s9, s5, 12
    s_add_u32 s9, s9, {KVL}
    v_lshlrev_b32 v23, 6, v22
    v_lshl_add_u32 v24, v21, 4, v23
    v_add_u32 v{TRV}, s9, v24
    v_add_u32 v{TVL}, s45, v24
    v_lshl_add_u32 v24, v21, 3, v23
    v_add_u32 v{TRN}, s9, v24
    v_lshlrev_b32 v23, 5, v22
    v_lshl_add_u32 v24, v21, 3, v23
    v_add_u32 v{TR8}, s9, v24
    v_add_u32 v{VB}, s9, v{KVR}
    s_lshl_b32 s30, s4, 8
    s_lshl_b32 s9, s5, 6
    s_add_u32 s30, s30, s9               ; h*256 + w*64
    s_mul_i32 s31, s4, 147456
    s_lshl_b32 s9, s5, 5
    s_add_u32 s36, s31, s9
    s_lshl_b32 s9, s5, 8
    s_add_u32 s31, s31, s9""")
    chunks=[]
    TMP=[('v',24),('v',32)]
    def off(rt,k): return (rt[0],rt[1]+k)
    for j in range(9):
        for mat in range(3):
            k=KAP[j]; u=[('p',j,2*mat),('p',j,2*mat+1)]
            c=dict(srd=SQ+4*mat, voff=[VA if k<8 else VN]*4, soff=[(30,(64*k+(4*i if k<8 else 16*i))*8192) for i in range(4)])
            if u[1] in LDSU:
                s1=LDSU.index(u[1])+1
                dst=[TMP[0] if u[0] in LDSU else regof(u[0]), TMP[1]]
                base=(s1-1)*2048
                c.update(grp=None, m0=(45,base), rd=[(off(dst[t],4*hb+2*rho),TVL,base+hb*2048+rho*256+t*8) for t in range(2) for hb in range(2) for rho in range(2)])
                c['wb']=[(off(dst[t],4*hb),WL,base+t*2048+hb*1024) for t in range(2) for hb in range(2) if u[t] in LDSU]
            else:
                dst=[regof(u[0]),regof(u[1])]
                c.update(grp=[off(dst[i>>1],4*(i&1)) for i in range(4)], rd=[(off(dst[t],4*hb+2*rho),TRV,hb*2048+rho*256+t*8) for t in range(2) for hb in range(2) for rho in range(2)])
            chunks.append(c)
    dst=[regof(('o',8,0)),regof(('o',8,1))]
    chunks.append(dict(srd=SQ+12, voff=[V8]*4, soff=[(36,32*i*1152+1024) for i in range(4)], grp=[off(dst[i>>1],4*(i&1)) for i in range(4)],
        rd=[(off(dst[kp],4*hb+2*rho),TR8,kp*2048+hb*1024+rho*128) for kp in range(2) for hb in range(2) for rho in range(2)]))
    for tp in range(4):
        for kp in range(2):
            u=[('o',2*tp,kp),('o',2*tp+1,kp)]
            dst=[('v',40),('v',48)] if u[0] in L2U else [regof(u[0]),regof(u[1])]
            chunks.append(dict(srd=SQ+12, voff=[VO]*4, soff=[(31,(64*kp+16*i)*1152+64*tp) for i in range(4)], grp=[off(dst[i>>1],4*(i&1)) for i in range(4)],
                rd=[(off(dst[t],4*hb+2*rho),TRN,hb*2048+rho*256+t*32) for t in range(2) for hb in range(2) for rho in range(2)]))
    rawload(a,chunks,VB,flags=os.environ.get("CFL",""),maxout=int(os.environ.get("CMO",56)))
    T(2)
    a.I(f"v_mov_b32 v{L16}, v{KVR}")
    for i in range(4): a.I(f"buffer_store_dwordx4 v[{40+4*i}:{43+4*i}], v{L16}, s[20:23], s47 offen offset:{1024*i}")
    wait_dbg(a,DB_INIT,NOTH,8,sleep=1)
    a.I(f"v_bfe_u32 v8, v{L16}, 2, 5")
    a.L(P+"A_bw")
    a.I(f"""global_load_dword v9, v8, s[28:29] sc1
    s_waitcnt vmcnt(0)
    v_readlane_b32 s9, v9, 0
    s_mov_b32 s10, 0
    s_cmp_ge_u32 s9, 32
    s_cbranch_scc1 {P}A_bd
    s_mov_b32 s10, 1""")
    for x in range(1,8): a.I(f"v_readlane_b32 s8, v9, {x}\ns_add_u32 s9, s9, s8")
    a.I(f"""s_cmp_ge_u32 s9, 256
    s_cbranch_scc1 {P}A_bd""")
    spin_tail(a,P+"A_bw",None,sleep=1)
    a.L(P+"A_bd")
    T(3)
    a.I(f"""s_mov_b32 s6, 0
    s_mov_b32 s36, 63
    s_mov_b32 s14, {MEMB}
    s_mov_b32 s44, 0
    s_lshl_b32 s46, s5, 11
    s_lshr_b32 s52, s5, 1
    s_lshl_b32 s52, s52, 12
    s_add_u32 s58, s52, 2048
    s_cmp_eq_u32 s5, 3
    s_cselect_b32 s52, 8192, s52
    s_cselect_b32 s58, 8192, s58
    s_cmp_eq_u32 s5, 1
    s_cselect_b32 s40, 1, 0
    s_cmp_eq_u32 s41, 0
    s_cselect_b32 s40, 2, s40""")
    a.L(P+"A_layer")
    a.I(f"""s_lshl_b32 s37, s4, 13
    s_add_u32 s37, s37, {flg}
    s_add_u32 s37, s37, s44
    s_lshl_b32 s38, s4, 21
    s_add_u32 s38, s38, s44
    s_lshl_b32 s9, s5, 10
    s_add_u32 s57, s38, s9
    s_add_u32 s57, s57, {KVM-4096}
    s_add_u32 s38, s38, s46
    s_add_u32 s39, s46, {KVL}
    v_add_u32 v{KVR}, {KVL}, v{L16}
    s_waitcnt vmcnt(0) lgkmcnt(0)
    s_barrier""")
    a.L(P+"A_f0")
    a.I(f"""buffer_load_dword v9, off, s[20:23], s37 sc1
    s_waitcnt vmcnt(0)
    v_readfirstlane_b32 s9, v9
    s_cmp_eq_u32 s9, 1
    s_cbranch_scc1 {P}A_f0d""")
    spin_tail(a,P+"A_f0",None,sleep=1)
    a.L(P+"A_f0d")
    T(4)
    a.I("s_mov_b32 m0, s39\ns_nop 0")
    for j in range(2): a.I(f"buffer_load_dwordx4 v{L16}, s[20:23], s38 offen offset:{1024*j} sc1 lds")
    a.I(f"""s_add_u32 s37, s37, 128
    s_xor_b32 s39, s39, 8192
    s_mov_b32 s56, 0
    s_mov_b32 s59, {MEMB+4*9216}
    s_add_u32 s34, s46, {MEMB+4*9216+1024}
    s_cmp_eq_u32 s10, 0
    s_cbranch_scc0 {P}S_entry
    s_branch {P}F_entry""")

from chainloop import chain_loop

def gen_mega(a, name, dbg=False):
    P="M_"
    kernel_begin(a,name)
    a.I(f"""s_cmp_ge_u32 s2, 256
    s_cbranch_scc1 {P}end
    s_load_dwordx2 s[16:17], s[0:1], {KA['ws']}
    s_load_dwordx2 s[28:29], s[0:1], {KA['dbg']}
    s_load_dwordx2 s[18:19], s[0:1], {KA['x']}
    s_getreg_b32 s3, hwreg(HW_REG_XCC_ID, 0, 4)
    v_lshrrev_b32 v1, 6, v0
    v_and_b32 v0, 63, v0
    v_readfirstlane_b32 s5, v1
    s_mov_b32 s94, {BUDGET}
    s_mov_b32 s90, 0
    s_mov_b32 s91, 0
    s_mov_b32 s92, 0
    s_mov_b32 s93, 0""")
    if dbg: a.I("s_memtime s[88:89]")
    a.I("s_waitcnt lgkmcnt(0)")
    srd(a,20,16,WS_SIZE)
    srd(a,84,16,WS_SIZE)
    a.I("s_mov_b32 s95, 0")
    srd(a,24,18,XBYTES)
    weight_srds(a)
    a.I(f"""v_mov_b32 v4, {SPARE}
    s_cmp_lg_u32 s5, 0
    s_cbranch_scc1 {P}el_done
    s_and_b32 s3, s3, 7
    s_lshl_b32 s6, s3, 2
    v_mov_b32 v2, s6
    v_mov_b32 v3, 1
    s_mov_b64 exec, 1
    global_atomic_add v5, v2, v3, s[28:29] sc0
    s_waitcnt vmcnt(0)
    s_mov_b64 exec, -1
    v_readfirstlane_b32 s7, v5
    s_lshl_b32 s4, s3, 5
    s_add_u32 s4, s4, s7
    s_cmp_lt_u32 s7, 32
    s_cbranch_scc1 {P}el_pub
    v_mov_b32 v2, 32
    s_mov_b64 exec, 1
    global_atomic_add v5, v2, v3, s[28:29] sc0
    s_waitcnt vmcnt(0)
    s_mov_b64 exec, -1
    v_readfirstlane_b32 s7, v5
    v_and_b32 v2, 7, v0
    v_lshlrev_b32 v2, 2, v2""")
    a.L(P+"el_w")
    a.I(f"""global_load_dword v5, v2, s[28:29] sc1
    s_waitcnt vmcnt(0)
    s_mov_b32 s8, 0""")
    for x in range(8):
        a.I(f"v_readlane_b32 s{40+x}, v5, {x}\ns_add_u32 s8, s8, s{40+x}")
    a.I(f"""s_cmp_ge_u32 s8, 256
    s_cbranch_scc1 {P}el_s""")
    spin_tail(a,P+"el_w",None,sleep=2)
    a.L(P+"el_s")
    a.I("s_mov_b32 s4, 255")
    for x in range(8):
        a.I(f"""s_min_u32 s9, s{40+x}, 32
        s_sub_u32 s10, 32, s9
        s_add_u32 s11, s9, s7
        s_add_u32 s11, s11, {32*x}
        s_cmp_lt_u32 s7, s10
        s_cselect_b32 s4, s11, s4
        s_cselect_b32 s7, 0x10000, s7
        s_sub_u32 s7, s7, s10""")
    a.L(P+"el_pub")
    a.I(f"""v_mov_b32 v5, s4
    ds_write_b32 v4, v5
    s_waitcnt lgkmcnt(0)""")
    a.L(P+"el_done")
    a.I(f"""s_barrier
    ds_read_b32 v5, v4
    s_waitcnt lgkmcnt(0)
    v_readfirstlane_b32 s4, v5
    s_barrier
    s_cmp_lt_u32 s4, 32
    s_cbranch_scc1 {P}A
    s_cmp_lt_u32 s4, 160
    s_cbranch_scc1 {P}B
    s_sub_u32 s44, s4, 208
    s_cmp_ge_u32 s4, 224
    s_cbranch_scc1 {P}O
    s_and_b32 s8, s4, 31
    s_cmp_lt_u32 s8, 24
    s_cbranch_scc1 {P}C
    s_sub_u32 s44, s8, 24
    s_cmp_ge_u32 s4, 192
    s_cselect_b32 s9, 8, 0
    s_add_u32 s44, s44, s9
    s_branch {P}O""")
    a.L(P+"end")
    a.I("s_endpgm")
    import prep, bstage
    chain_setup(a,P,dbg)
    chain_loop(a,P+"F","",dbg)
    chain_loop(a,P+"S","sc1",False)
    role_b(a,P)
    role_c(a,P)
    prep.others(a,P)
    bstage.role_d(a,P)
    bstage.role_e(a,P)
    bstage.block_l5(a,P)
    return (name, f"; @launch grid=(256,1,1) block=(256,1,1) lds={LDS_LA}", kernel_desc(name, 512, 102, accum=256))
```

```python
from la import *
MEML=0; TQ=9216; TK=11264; OL=13312; SPARE=15360; KVL=16384; WLB=32768; WLW=32768
PSLOT=72*4096
HINT=MEMB+0x10000
SCR=MEMB+0x20000
L16=0; IDX=1; KVR=2; WL=3; PK1=4; PK2=5; PK3=6; PK4=7
WIN=8; AQ=24; AK=32; AV=40; STG=48
W=lambda i: WIN+4*i
KAP=[0,2,4,6,8,1,3,5,7]
TORD=[8,0,1,2,3,4,5,6,7]
def units():
    U=[('p',j,nm) for j in range(5) for nm in (0,2,4,1,3,5)]
    U+=[('p',j,nm) for j,nm in ((5,0),(6,0),(5,1),(7,0),(6,1),(7,1),(5,2),(8,0),(8,1),(5,3),(6,2),(7,2),(6,3),(7,3),(8,2),(8,3))]
    D=[('p',j,nm) for j in range(5,9) for nm in (4,5)]
    O=[('o',t,kp) for t in TORD for kp in range(2)]
    return U,D,O
U1,UD,UO=units()
NL=15
LIDX=[5,8,11,14,17,20,23,26,29,31,34,36,39,41,43]
LDSU=[U1[i] for i in LIDX]
L2U=[('o',4,0),('o',5,0)]
REGU=[u for u in U1+UD+UO if u not in LDSU and u not in L2U]
assert len(REGU)==55
def regof(u):
    i=REGU.index(u)
    return ('a',8*i) if i<32 else ('v',72+8*(i-32))
def rtxt(u,half=None):
    f,b=regof(u)
    if half is None: return f"{f}[{b}:{b+7}]"
    return f"{f}[{b+4*half}:{b+4*half+3}]"
```

```python
from chaindefs import *
import os
G=lambda n,d: int(os.environ.get(n,d))
D_LATE=G("DLATE",18)
D_E0=G("DE0",0)
D_NR=G("DNR",16)
U_LL=G("ULL",2)
U_LC=G("ULC",18)
HCHK=G("HCHK",10)
HPOLL=[int(x) for x in os.environ.get("HPOLL","0,2,6,8").split(",")]
U_R=G("UR",7)
UBB=G("UBB",7)
G2=G("G2",1)
R2=G("R2",1)
D_E1=G("DE1",3)
D_G=G("DG",6)

def chain_loop(a, P, st, dbg):
    def E(i):
        if dbg and 100 in dbg: a.I(f"s_memtime s[{60+2*i}:{61+2*i}]")
    cnt=lambda r: a.I(f"s_add_u32 s{r}, s{r}, 1") if dbg else None
    q=LQ(a)
    BUF=[1,0,1,0,1,0,1,0]+[(j+1)%3 if False else None for j in range(8,NL)]
    BUF=[1,0,1,0,1,2,0,1,2,0,1,2,0,1,2]
    BUF=[j%3 for j in range(NL)]
    NXT={}
    for j in range(NL):
        n=[k for k in range(j+1,NL) if BUF[k]==BUF[j]]
        if n: NXT[j]=n[0]
    def stg_read(j):
        b=STG+8*BUF[j]
        q.op(f"ds_read_b128 v[{b}:{b+3}], v{WL} offset:{(j+1)*2048}",('w',j))
        q.op(f"ds_read_b128 v[{b+4}:{b+7}], v{WL} offset:{(j+1)*2048+1024}",('w',j))
    def z2(r): return f"v_mov_b64 v[{r}:{r+1}], 0"
    def pace(n,r):
        for i in range(n): a.I(f"v_mov_b32 v{r}, 0\ns_nop 2")
    PB=W(3); LP=W(1)
    out=[]
    a.L(P+"_entry")
    if dbg:
        a.I("s_memtime s[18:19]\ns_waitcnt lgkmcnt(0)\ns_mov_b32 s69, s18")
        if 100 not in dbg:
            for i in range(12): a.I(f"s_mov_b32 s{70+i}, 0")
    a.I(f"""s_lshl_b32 s42, s5, 1
    s_lshl_b32 s42, 3, s42
    s_mov_b32 s43, 0
    s_branch {P}_ent""")
    a.L(P+"_top")
    E(14)
    a.I("s_barrier")
    E(0)
    q=LQ(a)
    accof=lambda nm: AQ+4*nm
    KX={0:STG+0, 1:STG+8, 2:STG+12, 3:STG+16, 4:STG+20}
    SM=STG+4
    def kx_read(f,dst): q.op(f"ds_read_b128 v[{dst}:{dst+3}], v{KVR} offset:{f*1024}",('kx',f))
    def a_read(j): q.op(f"ds_read_b128 {vr(W(j%4),4)}, v{L16} offset:{MEML+1024*KAP[j]}",('a',j))
    vm=[]
    def vop(t,tag): a.I(t); vm.append(tag)
    def vwait(tag):
        idx=max(i for i,t in enumerate(vm) if t==tag)
        a.I(f"s_waitcnt vmcnt({len(vm)-1-idx})")
    late=f"buffer_load_dwordx4 v{L16}, s[20:23], s34 offen sc1 lds"
    rback=f"ds_read_b128 {vr(LP,4)}, v{PK4} offset:{MEML+1024}"
    def chk3():
        a.I(f"s_or_b64 vcc, vcc, s[8:9]\ns_cbranch_scc1 {P}_lr")
        a.L(f"{P}_ld")
        def ool():
            r=LP
            a.L(f"{P}_lr")
            a.I(f"""v_cmp_eq_u32 vcc, -1, v{r}
            v_cmp_eq_u32 s[8:9], -1, v{r+1}
            s_or_b64 vcc, vcc, s[8:9]
            v_cmp_eq_u32 s[8:9], -1, v{r+2}
            s_or_b64 vcc, vcc, s[8:9]
            v_cmp_eq_u32 s[8:9], -1, v{r+3}
            s_or_b64 vcc, vcc, s[8:9]
            s_cbranch_scc0 {P}_ld""")
            cnt(90)
            a.I(f"""s_sub_u32 s94, s94, 1
            s_cbranch_scc1 {P}_lx
            s_add_u32 m0, s46, {MEML+1024}
            s_nop 0
            {late}
            s_waitcnt vmcnt(0)
            {rback}
            s_waitcnt lgkmcnt(0)
            s_branch {P}_lr""")
            a.L(f"{P}_lx")
            a.I(f"s_mov_b32 s94, 0\ns_branch {P}_ld")
        out.append(ool)
    att={}
    def add(i,*x): att.setdefault(i,[]).extend(x)
    c=U_LC
    add(U_LL, lambda: vop(late,'late'))
    add(U_R+4, lambda: vop(f"buffer_store_dwordx4 {vr(PB,4)}, v{L16}, s[20:23], s57 offen sc1",'pub'))
    add(U_R+5, lambda: a_read(3), "s_add_u32 s57, s57, 4096")
    add(5, lambda: a_read(4))
    add(c-1, f"v_add_u32 v{PK4}, s46, v{L16}")
    add(c, lambda: vwait('late'), lambda: q.op(rback,'rb'))
    add(c+4, lambda: q.wait('rb'), f"v_cmp_u_f32 vcc, v{LP}, v{LP+1}")
    add(c+5, f"v_cmp_u_f32 s[8:9], v{LP+2}, v{LP+3}")
    add(c+6, chk3, "s_barrier", lambda: a_read(5))
    r=U_R
    add(r, "s_mov_b32 m0, s45", "s_add_u32 s53, s38, 8192", lambda: vop(f"buffer_load_dwordx4 v{L16}, s[20:23], s53 offen sc1 lds",'V'))
    add(r+2, lambda: vop(f"buffer_load_dwordx4 v{L16}, s[20:23], s53 offen offset:1024 sc1 lds",'V'), "s_add_u32 s38, s38, 16384")
    add(r+3, "s_cmp_eq_u32 s56, 1", f"s_cbranch_scc0 {P}_fw", lambda: a.L(P+"_fd"), "s_mov_b32 m0, s39")
    add(r+7, lambda: vop(f"buffer_load_dwordx4 v{L16}, s[20:23], s38 offen sc1 lds",'K'))
    add(r+9, lambda: vop(f"buffer_load_dwordx4 v{L16}, s[20:23], s38 offen offset:1024 sc1 lds",'K'))
    add(c+7, lambda: a_read(6), lambda: a_read(7))
    add(29, lambda: a_read(8))
    add(35, "s_add_u32 s37, s37, 128", "s_xor_b32 s39, s39, 8192")
    add(37, "s_and_b32 s7, s6, 1", "s_mov_b32 s13, s14")
    add(38, "s_add_u32 s59, s6, 1", "s_and_b32 s59, s59, 3")
    add(40, f"v_add_f32 v{AQ}, v{AQ}, v{AQ+2}")
    add(41, f"v_add_f32 v{AQ+1}, v{AQ+1}, v{AQ+3}")
    add(42, "s_mul_i32 s59, s59, 9216", f"v_add_f32 v{AQ+4}, v{AQ+4}, v{AQ+6}")
    add(43, f"v_add_f32 v{AQ+5}, v{AQ+5}, v{AQ+7}")
    add(44, f"s_add_u32 s59, s59, {MEMB}", f"v_cvt_pk_bf16_f32 v{AQ}, v{AQ}, v{AQ+1}")
    add(45, "s_mov_b32 s14, s59", f"v_cvt_pk_bf16_f32 v{AQ+1}, v{AQ+4}, v{AQ+5}", f"v_and_b32 v{SM}, 0xffff, v{PK1}")
    for j in range(3): a_read(j)
    stg_read(0)
    a.I(f"s_add_u32 m0, s46, {MEML+1024}")
    add(0, lambda: stg_read(1))
    add(6, lambda: a.I(f"s_waitcnt vmcnt({len(vm)})"), lambda: stg_read(2))
    def order(xs):
        return xs
    for i,u in enumerate(U1):
        _,j,nm=u
        q.wait(('a',j))
        if u in LDSU:
            jj=LDSU.index(u)
            q.wait(('w',jj))
            b=STG+8*BUF[jj]; B=f"v[{b}:{b+7}]"
        else: B=rtxt(u)
        a.I(f"v_smfmac_f32_16x16x64_bf16 {vr(accof(nm),4)}, {vr(W(j%4),4)}, {B}, v{IDX}")
        if i==0: E(1)
        if i==29: E(2)
        if i==45: E(3)
        if u in LDSU:
            if jj in NXT: stg_read(NXT[jj])
            elif jj==12: kx_read(0,KX[0])
            elif jj==13: kx_read(1,KX[1]); kx_read(2,KX[2])
            elif jj==14: kx_read(3,KX[3]); kx_read(4,KX[4])
        xs=att.get(i,[])
        isv=lambda x: isinstance(x,tuple) or (isinstance(x,str) and x.startswith('v_'))
        def em(x):
            if isinstance(x,tuple): x[1]()
            elif callable(x): x()
            else: a.I(x)
        for x in xs:
            if not isv(x): em(x)
        if i+1<len(U1):
            tg=[('a',U1[i+1][1])]
            if U1[i+1] in LDSU: tg.append(('w',LDSU.index(U1[i+1])))
            q.wait(*tg)
        for x in xs:
            if isv(x): em(x)
    def dv(i):
        _,j,nm=UD[i]
        a.I(f"v_smfmac_f32_16x16x64_bf16 {vr(accof(nm),4)}, {vr(W(j%4),4)}, {rtxt(UD[i])}, v{IDX}")
    q.op(f"ds_write2_b32 v{SM}, v{AQ}, v{AQ+1} offset0:0 offset1:4",'tq')
    dv(0)
    a.I(f"""s_add_u32 s34, s46, s59
    v_lshrrev_b32 v{SM+1}, 16, v{PK1}
    v_add_f32 v{AK}, v{AK}, v{AK+2}
    v_add_f32 v{AK+1}, v{AK+1}, v{AK+3}
    v_cvt_pk_bf16_f32 v{AK}, v{AK}, v{AK+1}
    v_add_f32 v{AK+4}, v{AK+4}, v{AK+6}
    v_add_f32 v{AK+5}, v{AK+5}, v{AK+7}
    v_cvt_pk_bf16_f32 v{AK+1}, v{AK+4}, v{AK+5}""")
    q.op(f"ds_write_b64 v{SM+1}, v[{AK}:{AK+1}]",'tk')
    dv(1)
    a.I(f"s_add_u32 s34, s34, 1024\nv_and_b32 v{SM+2}, 0xffff, v{PK2}")
    dv(2)
    a.I(f"v_lshrrev_b32 v{SM+3}, 16, v{PK2}")
    dv(3)
    a.I(z2(SM))
    q.all()
    E(4)
    a.I("s_barrier\ns_mov_b32 s56, s41")
    E(5)
    QF=AQ; KM0=W(1); KM1=W(2); S1=W(3); S2=W(0)
    def qf(ks):
        for rho in range(2):
            q.op(f"ds_read_b64_tr_b16 v[{QF+4*ks+2*rho}:{QF+4*ks+2*rho+1}], v{SM+2} offset:{ks*512+rho*64}",('qf',ks))
    def km(sg_):
        for rho in range(2):
            d=(KM0,KM1)[sg_]+2*rho
            q.op(f"ds_read_b64_tr_b16 v[{d}:{d+1}], v{SM+3} offset:{sg_*1024+rho*128}",('km',sg_))
    qf(0); qf(1)
    dv(4); qf(2)
    dv(5); qf(3)
    dv(6); km(0)
    dv(7); km(1)
    a.I(z2(SM+2))
    def sx(f):
        tk=f>>2; ks=f&3; Sx=(S1,S2)[tk]
        q.wait(('qf',ks),('kx',f))
        c="0" if ks==0 else vr(Sx,4)
        a.I(f"v_mfma_f32_16x16x32_bf16 {vr(Sx,4)}, {vr(KX[f],4)}, {vr(QF+4*ks,4)}, {c}")
    VF=STG+16; VM=AV; ON=AV+4; T=STG+2
    sx(0); KX[5]=KX[0]; kx_read(5,KX[5])
    sx(1); KX[6]=KX[1]; kx_read(6,KX[6])
    a.I(f"v_add_f32 v{AV}, v{AV}, v{AV+2}")
    sx(2); KX[7]=KX[2]; kx_read(7,KX[7])
    a.I(f"v_add_f32 v{AV+1}, v{AV+1}, v{AV+3}")
    sx(3)
    a.I(f"v_add_f32 v{AV+4}, v{AV+4}, v{AV+6}\nv_add_f32 v{AV+5}, v{AV+5}, v{AV+7}")
    sx(4)
    a.I(f"v_cvt_pk_bf16_f32 v{AV}, v{AV}, v{AV+1}")
    q.wait(('km',1))
    a.I(f"v_smfmac_f32_16x16x64_bf16 {vr(SM,4)}, {vr(KM0,4)}, {vr(QF,8)}, v{IDX}")
    a.I(f"v_cvt_pk_bf16_f32 v{AV+1}, v{AV+4}, v{AV+5}")
    a.I(f"v_smfmac_f32_16x16x64_bf16 {vr(SM,4)}, {vr(KM1,4)}, {vr(QF+8,8)}, v{IDX}")
    sx(5)
    a.I(f"v_max3_f32 v{T}, v{S1}, v{S1+1}, v{S1+2}")
    sx(6)
    a.I(f"""v_add_f32 v{SM}, v{SM}, v{SM+2}
    v_add_f32 v{SM+1}, v{SM+1}, v{SM+3}""")
    sx(7)
    E(6)
    a.I(f"""s_cmp_eq_u32 s6, s36
    v_max3_f32 v{T}, v{T}, v{S1+3}, v{SM}
    v_max_f32 v{T}, v{T}, v{SM+1}
    s_cbranch_scc1 {P}_fin""")
    vop(f"buffer_load_dwordx4 v[{AQ}:{AQ+3}], v{L16}, s[20:23], s47 offen",'l2')
    a.I(f"""v_mov_b32 v{VM+2}, v{VM+1}
    v_mov_b32 v{VM+3}, 0
    {z2(SM+2)}
    v_mov_b32 v{ON}, 0x3f803f80""")
    E(7)
    a.I(f"""v_max3_f32 v{T}, v{T}, v{S2}, v{S2+1}
    v_max3_f32 v{T}, v{T}, v{S2+2}, v{S2+3}
    v_mov_b32 v{T+1}, v{T}""")
    vop(f"buffer_load_dwordx4 v[{AQ+4}:{AQ+7}], v{L16}, s[20:23], s47 offen offset:1024",'l2')
    a.I(f"""v_mov_b32 v{ON+1}, v{ON}
    v_permlane16_swap_b32 v{T}, v{T+1}
    v_max_f32 v{T}, v{T}, v{T+1}
    v_mov_b32 v{T+1}, v{T}""")
    vop(f"buffer_load_dwordx4 v[{AK}:{AK+3}], v{L16}, s[20:23], s47 offen offset:2048",'l2')
    a.I(f"""v_mov_b64 v[{ON+2}:{ON+3}], v[{ON}:{ON+1}]
    v_permlane32_swap_b32 v{T}, v{T+1}
    v_max_f32 v{T}, v{T}, v{T+1}
    v_mul_f32 v{T}, s35, v{T}""")
    for r in (S1,S1+2,S2,S2+2,SM):
        a.I(f"v_pk_fma_f32 v[{r}:{r+1}], v[{r}:{r+1}], s[48:49], v[{T}:{T+1}] op_sel_hi:[1,1,0] neg_lo:[0,0,1] neg_hi:[0,0,1]")
    vwait('V')
    q.op(f"ds_read_b128 v[{VF}:{VF+3}], v{WL}",'vf')
    q.op(f"ds_read_b128 v[{VF+4}:{VF+7}], v{WL} offset:1024",'vf')
    q.op(f"ds_write_b64 v{WL}, v[{VM}:{VM+1}]",'vmw')
    for r in (S1,S1+1,S1+2,S1+3,S2,S2+1,S2+2,S2+3): a.I(f"v_exp_f32 v{r}, v{r}")
    a.I(f"""v_cvt_pk_bf16_f32 v{S1}, v{S1}, v{S1+1}
    v_cvt_pk_bf16_f32 v{S1+1}, v{S1+2}, v{S1+3}
    v_cvt_pk_bf16_f32 v{S1+2}, v{S2}, v{S2+1}
    v_cvt_pk_bf16_f32 v{S1+3}, v{S2+2}, v{S2+3}
    v_exp_f32 v{SM}, v{SM}""")
    q.wait('vf')
    E(8)
    O0=W(1); O1=W(2); SUM=S2; Px=S1
    L2R=[AQ,AK]
    ACC={8:W(0), 0:W(2), 1:STG+4, 2:STG+8, 3:W(3), 4:AV, 5:AV+4, 6:STG+16, 7:STG+20}
    OA=[W(1),STG+0]; AD=STG+12
    a.I(f"""v_mfma_f32_16x16x32_bf16 {vr(O0,4)}, {vr(VF,4)}, {vr(Px,4)}, 0
    v_exp_f32 v{SM+1}, v{SM+1}
    v_mfma_f32_16x16x32_bf16 {vr(O1,4)}, {vr(VF+4,4)}, {vr(Px,4)}, 0
    v_cvt_pk_bf16_f32 v{SM}, v{SM}, v{SM+1}
    v_mov_b32 v{SM+1}, 0
    v_mfma_f32_16x16x32_bf16 {vr(SUM,4)}, {vr(ON,4)}, {vr(Px,4)}, 0""")
    vop(f"buffer_load_dwordx4 v[{AK+4}:{AK+7}], v{L16}, s[20:23], s47 offen offset:3072",'l2')
    a.I(f"""v_and_b32 v{STG}, 0xffff, v{PK3}
    v_mfma_f32_16x16x32_bf16 {vr(SUM,4)}, {vr(ON,4)}, {vr(SM,4)}, {vr(SUM,4)}
    s_add_u32 s6, s6, 1
    v_lshlrev_b32 v{AD+2}, 4, v{L16}
    v_mov_b32 v{AD+3}, s6
    v_mfma_f32_16x16x32_bf16 {vr(O0,4)}, {vr(VM,4)}, {vr(SM,4)}, {vr(O0,4)}
    {z2(STG+8)}
    {z2(STG+10)}
    v_mfma_f32_16x16x32_bf16 {vr(O1,4)}, {vr(VM+2,4)}, {vr(SM,4)}, {vr(O1,4)}
    {z2(W(3))}
    v_rcp_f32 v{SUM}, v{SUM}
    {z2(W(3)+2)}
    {z2(STG+16)}
    v_mul_f32 v{O0}, v{O0}, v{SUM}
    v_mul_f32 v{O0+1}, v{O0+1}, v{SUM}
    v_mul_f32 v{O0+2}, v{O0+2}, v{SUM}
    v_mul_f32 v{O0+3}, v{O0+3}, v{SUM}
    v_pk_mul_f32 v[{O1}:{O1+1}], v[{O1}:{O1+1}], v[{SUM}:{SUM+1}] op_sel_hi:[1,0]
    v_pk_mul_f32 v[{O1+2}:{O1+3}], v[{O1+2}:{O1+3}], v[{SUM}:{SUM+1}] op_sel_hi:[1,0]
    v_cvt_pk_bf16_f32 v{O0}, v{O0}, v{O0+1}
    v_cvt_pk_bf16_f32 v{O0+1}, v{O0+2}, v{O0+3}
    v_cvt_pk_bf16_f32 v{O0+2}, v{O1}, v{O1+1}
    v_cvt_pk_bf16_f32 v{O0+3}, v{O1+2}, v{O1+3}""")
    q.op(f"ds_write_b128 v{STG}, {vr(O0,4)}",'ow')
    a.I("s_mov_b64 exec, s[42:43]")
    vop(f"buffer_store_dword v{AD+3}, v{AD+2}, s[20:23], s54 offen {st}",'hp')
    a.I("s_mov_b64 exec, -1")
    for r in (W(0),W(0)+2,W(2),W(2)+2,STG+4,STG+6,AV,AV+2,AV+4,AV+6): a.I(z2(r))
    a.I(f"""v_bfe_u32 v{AD+1}, v{L16}, 2, 7
    v_lshrrev_b32 v{PK4}, 7, v{L16}
    v_and_b32 v{AD}, 0x70, v{L16}
    v_lshl_add_u32 v{PK4}, v{PK4}, 12, v{AD}""")
    q.all()
    E(9)
    a.I("s_barrier")
    E(10)
    q.op(f"ds_read_b128 {vr(OA[0],4)}, v{L16} offset:{OL}",'oa0')
    q.op(f"ds_read_b128 {vr(OA[1],4)}, v{L16} offset:{OL+1024}",'oa1')
    def post(t):
        d=ACC[t]; o=d if t==8 else ACC[(t//4)*4]+(t%4)
        return [f"v_add_f32 v{d}, v{d}, v{d+2}", f"v_add_f32 v{d+1}, v{d+1}, v{d+3}", f"v_cvt_pk_bf16_f32 v{o}, v{d}, v{d+1}"]
    AS=ACC[1]; RD=ACC[2]; C7=AD
    RA=[AQ,AQ+4,AK,AK+4]
    RB=[W(0),W(1),W(2),STG+16]
    def p7_issue(x="",RR=RA):
        for j in range(4):
            a.I(f"buffer_load_dwordx4 {vr(RR[j],4)}, v{L16}, s[20:23], s33 offen offset:{1024*j} sc1{x}")
    a.I(f"{z2(STG+18)}\n{z2(STG+20)}\nv_lshrrev_b32 v{AD+2}, 9, v{L16}")
    for i,u in enumerate(UO):
        _,t,kp=u; n=i>>1
        if i==0: q.wait('oa0')
        if i==1: q.wait('oa1')
        if u==L2U[0]: vwait('l2')
        B=vr(L2R[L2U.index(u)],8) if u in L2U else rtxt(u)
        a.I(f"v_smfmac_f32_16x16x64_bf16 {vr(ACC[t],4)}, {vr(OA[kp],4)}, {B}, v{IDX}")
        if i in HPOLL: vop(f"buffer_load_dword v{AD}, v{AD+1}, s[20:23], s55 offen sc1 ; nowarn",'poll')
        if i==0: E(11); a.I(z2(STG+22))
        if i==1: a.I(f"v_lshl_add_u32 v{AD+2}, v{AD+2}, 12, v{AD+1}")
        if i==2: a.I(f"v_xor_b32 v{KVR}, 8192, v{KVR}")
        if i==9: a.I(f"ds_read_b128 {vr(AS,4)}, v{L16} offset:{SPARE}")
        if i==HCHK+1:
            a.I(f"s_cbranch_vccnz {P}_hw")
            a.L(P+"_hd")
        if i==15: a.I("s_cmp_eq_u32 s40, 0")
        if kp==1 and n>=1:
            p=post(TORD[n-1]); a.I(p[0]); a.I(p[1])
        if kp==0 and n>=2:
            a.I(post(TORD[n-2])[2])
            if TORD[n-2] in (8,0,4): a.I(f"v_bfi_b32 v{ACC[TORD[n-2]]}, 1, s7, v{ACC[TORD[n-2]]}")
        if i==HCHK: a.I(f"v_cmp_ne_u32 vcc, s6, v{AD} ; nowarn")
        if i==4: vop(f"buffer_store_dword v{ACC[8]}, v{AD+2}, s[20:23], s12 offen {st}",'st8')
        if i==12: vop(f"buffer_store_dwordx4 {vr(ACC[0],4)}, v{PK4}, s[20:23], s32 offen {st}",'stA')
    a.I(post(6)[2])
    a.I(f"v_lshrrev_b32 v{AD+2}, 16, v{PK3}\nv_mov_b32 v{AD+3}, -1")
    for x in post(7): a.I(x)
    a.I(f"buffer_store_dwordx4 {vr(ACC[4],4)}, v{PK4}, s[20:23], s11 offen {st}")
    E(12)
    def fetch_pub():
        a.I(f"""s_waitcnt lgkmcnt(0)
        v_lshrrev_b32 v{STG}, 16, v{PK1}
        ds_read_b64 v[{PB}:{PB+1}], v{STG}
        ds_read_b64 v[{PB+2}:{PB+3}], v{WL}
        s_load_dword s41, s[16:17], s37 offset:128 glc""")
        for r in range(AV,AV+8,2): a.I(z2(r))
    def zero_qk():
        for r in range(AQ,AQ+16,2): a.I(z2(r))
    def p7_check(base,RR=RA):
        for j in range(4):
            c="0" if j==0 else vr(RD,4); r=RR[j]
            a.I(f"s_waitcnt vmcnt({base+3-j})")
            if j==0: a.I(f"v_xor_b32 v{C7}, s7, v{r} ; nowarn")
            else: a.I(f"v_bitop3_b32 v{C7}, v{C7}, v{r}, s7 bitop3:0xf6 ; nowarn")
            a.I(f"v_mfma_f32_16x16x32_bf16 {vr(RD,4)}, {vr(AS,4)}, {vr(r,4)}, {c} ; nowarn")
        a.I(f"v_and_b32 v{C7}, 1, v{C7}\nv_cmp_ne_u32 vcc, 0, v{C7}")
    def p7_fin():
        a.I(f"""v_add_f32_dpp v{RD}, v{RD}, v{RD} row_ror:8 row_mask:0xf bank_mask:0xf
        v_add_f32_dpp v{RD+1}, v{RD+1}, v{RD+1} row_ror:8 row_mask:0xf bank_mask:0xf
        v_cvt_pk_bf16_f32 v{RD+2}, v{RD}, v{RD+1}
        buffer_store_dword v{RD+2}, v{AD+2}, s[20:23], s59 offen {st}""")
    repo=f"buffer_store_dword v{AD+3}, v{AD+2}, s[20:23], s13 offen {st}"
    def reduce(tag, two, mid, ctr):
        p7_issue()
        mid()
        if two: p7_issue("",RB)
        a.L(f"{P}_r{tag}")
        p7_check(4 if two else 0)
        a.I(f"s_cbranch_vccnz {P}_rr{tag}")
        a.L(f"{P}_rd{tag}")
        p7_fin()
        def ool():
            a.L(f"{P}_rr{tag}")
            cnt(ctr)
            a.I(f"""s_sub_u32 s94, s94, 1
            s_cbranch_scc1 {P}_rx{tag}
            s_mov_b64 exec, vcc""")
            p7_issue()
            a.I("s_mov_b64 exec, -1")
            if two:
                p7_check(4,RB)
                a.I(f"s_nop 5\ns_cbranch_vccz {P}_rd{tag}")
                cnt(ctr)
                a.I("s_mov_b64 exec, vcc")
                p7_issue("",RB)
                a.I("s_mov_b64 exec, -1")
            a.I(f"s_branch {P}_r{tag}")
            a.L(f"{P}_rx{tag}")
            a.I(f"s_mov_b32 s94, 0\ns_nop 7\ns_branch {P}_rd{tag}")
        out.append(ool)
    a.I(f"s_cbranch_scc0 {P}_ne")
    pace(D_E0,RD)
    reduce("e", R2, lambda: (fetch_pub(), pace(D_E1,RD)), 92)
    E(13)
    a.I(f"s_barrier\n{repo}\ns_branch {P}_g")
    a.L(P+"_ne")
    fetch_pub()
    pace(D_NR,RD)
    a.I(f"""s_cmp_eq_u32 s40, 1
    s_barrier
    s_cbranch_scc0 {P}_g0""")
    reduce("l", 0, lambda: pace(8,RD), 92)
    E(13)
    a.I(repo)
    zero_qk()
    a.I(f"s_branch {P}_top")
    a.L(P+"_ent")
    fetch_pub()
    a.I(f"""s_cmp_eq_u32 s5, 1
    s_cbranch_scc0 {P}_g""")
    zero_qk()
    a.I(f"s_branch {P}_top")
    a.L(P+"_g0")
    E(13)
    a.L(P+"_g")
    GA=STG+1; GB=STG+2; CK=STG+3
    G0=STG+16; G1=STG+20
    def g_issue(x=""):
        a.I(f"""buffer_load_dwordx4 {vr(G0,4)}, v{GA}, s[20:23], s59 offen sc1{x}
        buffer_load_dwordx4 {vr(G1,4)}, v{GB}, s[20:23], s59 offen sc1{x}""")
    a.I(f"""v_add_u32 v{GA}, s52, v{L16}
    v_add_u32 v{GB}, s58, v{L16}""")
    pace(D_G,CK)
    g_issue()
    a.I("s_waitcnt vmcnt(4)")
    zero_qk()
    for k in range(G2-1):
        g_issue(" ; nowarn"); pace(3,CK)
    a.L(P+"_ga")
    if G2: g_issue(" ; nowarn")
    a.I(f"""s_waitcnt vmcnt({2*G2+1})
    v_max3_u32 v{CK}, v{G0}, v{G0+1}, v{G0+2} ; nowarn
    v_max_u32 v{CK}, v{CK}, v{G0+3} ; nowarn
    ds_write_b128 v{GA}, {vr(G0,4)} offset:{MEML} ; nowarn
    s_waitcnt vmcnt({2*G2})
    v_max3_u32 v{CK}, v{CK}, v{G1}, v{G1+1} ; nowarn
    v_max3_u32 v{CK}, v{CK}, v{G1+2}, v{G1+3} ; nowarn
    ds_write_b128 v{GB}, {vr(G1,4)} offset:{MEML} ; nowarn
    v_cmpx_eq_u32 vcc, -1, v{CK}""")
    cnt(93)
    a.I(f"s_cbranch_execz {P}_gd")
    if not G2: g_issue(" ; nowarn")
    a.I(f"""s_sub_u32 s94, s94, 1
    s_cbranch_scc0 {P}_ga
    s_mov_b32 s94, 0""")
    a.L(P+"_gd")
    a.I(f"""s_mov_b64 exec, -1
    s_waitcnt lgkmcnt(0)
    s_branch {P}_top""")
    for f in out: f()
    a.L(P+"_hw")
    cnt(91)
    a.I(f"""buffer_load_dword v{AD}, v{AD+1}, s[20:23], s55 offen sc1 ; nowarn
    v_cmp_ne_u32 vcc, s6, v{AD} ; nowarn
    s_cbranch_vccz {P}_hd
    s_sub_u32 s94, s94, 1
    s_cbranch_scc0 {P}_hw
    s_mov_b32 s94, 0
    s_branch {P}_hd""")
    a.L(P+"_fw")
    a.I(f"""s_cmp_ge_u32 s6, s36
    s_cbranch_scc1 {P}_fd""")
    a.L(P+"_fw2")
    a.I(f"""buffer_load_dword v{L16}, off, s[20:23], s37 sc1
    s_waitcnt vmcnt(0)
    v_readfirstlane_b32 s56, v{L16}
    v_mbcnt_lo_u32_b32 v{L16}, -1, 0
    v_mbcnt_hi_u32_b32 v{L16}, -1, v{L16}
    v_lshlrev_b32 v{L16}, 4, v{L16}
    s_cmp_eq_u32 s56, 1
    s_cbranch_scc1 {P}_fd""")
    spin_tail(a,P+"_fw2",P+"_fd",sleep=1)
    a.L(P+"_fin")
    a.I(f"""v_lshrrev_b32 v{AQ+4}, 16, v{PK1}
    ds_read_b64 v[{AQ}:{AQ+1}], v{AQ+4}
    v_mov_b64 v[{AQ+2}:{AQ+3}], v[{VM}:{VM+1}]
    s_waitcnt lgkmcnt(0)
    buffer_store_dwordx4 {vr(AQ,4)}, v{L16}, s[20:23], s57 offen sc1""")
    a.I(f"""s_cmp_lg_u32 s44, 0
    s_cbranch_scc1 M_Efin""")
    if dbg and 100 in dbg:
        a.I(f"""s_waitcnt lgkmcnt(0)
        s_lshl_b32 s9, s4, 2
        s_add_u32 s9, s9, s5
        s_lshl_b32 s9, s9, 7
        s_add_u32 s9, s9, {DBGW}
        s_nop 7
        v_mov_b32 v48, 0""")
        for i in range(16): a.I(f"v_mov_b32 v{8+i}, s{60+2*i}")
        a.I("s_mov_b64 exec, 1")
        for i in range(4): a.I(f"buffer_store_dwordx4 v[{8+4*i}:{11+4*i}], v48, s[20:23], s9 offen offset:{16*i}")
    elif dbg:
        a.I(f"""s_memtime s[62:63]
        s_waitcnt lgkmcnt(0)
        s_lshl_b32 s9, s4, 2
        s_add_u32 s9, s9, s5
        s_lshl_b32 s9, s9, 7
        s_add_u32 s9, s9, {DBGW}
        s_nop 7
        v_mov_b32 v8, s88
        v_mov_b32 v9, s18
        v_mov_b32 v10, s62
        v_mov_b32 v11, s91
        v_mov_b32 v12, s92
        v_mov_b32 v13, s93
        v_mov_b32 v14, s90
        v_mov_b32 v15, s60
        v_mov_b32 v48, 0""")
        for i in range(12): a.I(f"v_mov_b32 v{16+i}, s{96+i if i<5 else 70+i}")
        a.I("s_mov_b64 exec, 1")
        for i in range(5): a.I(f"buffer_store_dwordx4 v[{8+4*i}:{11+4*i}], v48, s[20:23], s9 offen offset:{16*i}")
    a.I(f"""s_mov_b64 exec, -1
    s_mov_b32 s14, s13
    s_add_u32 s36, s36, 63
    s_mov_b32 s44, {LOFF}
    s_branch M_A_layer""")
```

```python
from asmb import *
LOFF=0x6000000
KV=0x0
KVM=KV+0x100000+4096
OBUF=0x4000000; XA=0x5000000; ZF=0x5300000; ZO=0x5600000; FLAGS=0x5900000; XIN=0x5C00000
OFLAG=0x40000; XFLAG=0x42000; EFLAG=0x43000; FLAGB=0x44000
SH=0xC000000
FIMG=SH; FINV=SH+0x100000; WFI=SH+0x200000
TW1=SH+0x500000; TW2=TW1+0x4000; CST=TW1+0x8000
PART=SH+0x600000; MEMB=SH+0x700000; WOC=SH+0x800000
DBGW=0xF000000
WS_SIZE=0x10000000
XBYTES=2048*576*2
KA=dict(x=0,mem0=8,Wq=16,Wk=24,Wv=32,Wo=40,seg=48,bx=56,wr=64,wi=72,out=80,dbg=88,ws=96)

def kernel_begin(a, name):
    a.raw(f".text\n.globl {name}\n.p2align 8\n.type {name},@function\n{name}:")

def kernel_desc(name, vgpr, sgpr=96, accum=None):
    if accum is None: accum=(vgpr+3)//4*4
    return f""".section .rodata,"a"
.p2align 6
.amdhsa_kernel {name}
  .amdhsa_next_free_vgpr {vgpr}
  .amdhsa_next_free_sgpr {sgpr}
  .amdhsa_accum_offset {accum}
  .amdhsa_group_segment_fixed_size 0
  .amdhsa_kernarg_size 104
  .amdhsa_user_sgpr_count 2
  .amdhsa_user_sgpr_kernarg_segment_ptr 1
  .amdhsa_system_sgpr_workgroup_id_x 1
.end_amdhsa_kernel"""

def srd(a, d, ptr, size):
    a.I(f"""s_mov_b32 s{d}, s{ptr}
    s_and_b32 s{d+1}, s{ptr+1}, 0xffff
    s_mov_b32 s{d+2}, {size}
    s_mov_b32 s{d+3}, 0x00020000""")

def sdiv(a, q, x, d, tmp=None, maxx=1<<16):
    M=-(-(1<<32)//d)
    assert maxx*d <= (1<<32)
    a.I(f"s_mul_hi_u32 s{q}, s{x}, {M}")

DB_OVF=8; DB_INIT=10; DB_TAB=11; DB_L4=16; DB_L5=32
NB=4; NG=4; ND=9; NE=7; NOTH=48
def spin_tail(a, loop, out, sleep=0):
    if sleep: a.I(f"s_sleep {sleep}")
    a.I(f"""s_sub_u32 s94, s94, 1
    s_cbranch_scc0 {loop}
    s_mov_b32 s94, 0""")
    if out: a.I(f"s_branch {out}")
def wait_dbg(a, word, target, v, sleep=4, layer=False):
    l=a.lab("wd")
    if layer: a.I(f"s_lshl_b32 s9, s95, 2\ns_add_u32 s9, s9, {4*word}\nv_mov_b32 v{v}, s9")
    else: a.I(f"v_mov_b32 v{v}, {4*word}")
    a.L(l)
    a.I(f"""global_load_dword v{v+1}, v{v}, s[28:29] sc1
    s_waitcnt vmcnt(0)
    v_readfirstlane_b32 s9, v{v+1}
    s_cmp_ge_u32 s9, {target}
    s_cbranch_scc1 {l}d""")
    spin_tail(a,l,None,sleep)
    a.L(l+"d")
def add_dbg(a, word, v, layer=False):
    if layer: a.I(f"s_lshl_b32 s9, s95, 2\ns_add_u32 s9, s9, {4*word}\nv_mov_b32 v{v}, s9")
    else: a.I(f"v_mov_b32 v{v}, {4*word}")
    a.I(f"""v_mov_b32 v{v+1}, 1
    s_mov_b64 exec, 1
    global_atomic_add v{v}, v{v+1}, s[28:29]
    s_mov_b64 exec, -1""")
def wait_flags(a, soff, n, v, vl16, sleep=4):
    l=a.lab("wf")
    a.I(f"""v_lshrrev_b32 v{v}, 2, v{vl16}
    v_min_u32 v{v}, {4*(n-1)}, v{v}""")
    a.L(l)
    a.I(f"""buffer_load_dword v{v+1}, v{v}, s[20:23], s{soff} offen sc1
    s_waitcnt vmcnt(0)
    v_cmp_ne_u32 vcc, 1, v{v+1}
    s_cbranch_vccz {l}d""")
    spin_tail(a,l,None,sleep)
    a.L(l+"d")
def post_flag(a, soff, v):
    a.I(f"""v_mov_b32 v{v}, 1
    s_mov_b64 exec, 1
    buffer_store_dword v{v}, off, s[20:23], s{soff} sc1
    s_mov_b64 exec, -1""")
def next_layer(a):
    a.I(f"""s_add_u32 s95, s95, 1
    s_add_u32 s20, s20, {LOFF}
    s_addc_u32 s21, s21, 0
    s_mov_b32 s22, {WS_SIZE-LOFF}
    s_add_u32 s24, s20, {XIN}
    s_addc_u32 s25, s21, 0""")
def lane(a, v):
    a.I(f"v_mbcnt_lo_u32_b32 v{v}, -1, 0\nv_mbcnt_hi_u32_b32 v{v}, -1, v{v}")
```

```python
from common import *
from bstage import ln_addr, ln_load, ln_compute, XF_TH, XF_SIZE
import struct
from rawload import *
def f2u(x): return struct.unpack('<I',struct.pack('<f',x))[0]
SCL=f2u(128**-0.5*1.4426950408889634)
LDS_LA=163840
BUDGET=400000
import os
BST=os.environ.get('BST','sc1')
BRB=os.environ.get('BRB','')

class LQ:
    def __init__(self,a): self.a=a; self.q=[]; self.done=0
    def op(self,text,tag=None):
        self.a.I(text); self.q.append(tag)
    def wait(self,*tags):
        idx=max(max(i for i,t in enumerate(self.q) if t==tag) for tag in tags)
        if idx<self.done: return
        n=len(self.q)-1-idx
        assert n<=15, n
        self.a.I(f"s_waitcnt lgkmcnt({n})"); self.done=idx+1
    def all(self):
        self.a.I("s_waitcnt lgkmcnt(0)"); self.done=len(self.q)

def softmax(a, S1, S2, Sm, T, sC, fill=None):
    f=fill or (lambda k: None)
    a.I(f"""v_max3_f32 v{T}, v{S1}, v{S1+1}, v{S1+2}
    v_pk_add_f32 v[{Sm}:{Sm+1}], v[{Sm}:{Sm+1}], v[{Sm+2}:{Sm+3}]
    v_max3_f32 v{T}, v{T}, v{S1+3}, v{Sm}
    v_max3_f32 v{T+1}, v{S2}, v{S2+1}, v{S2+2}
    v_max3_f32 v{T}, v{T}, v{Sm+1}, v{S2+3}
    v_max_f32 v{T}, v{T}, v{T+1}
    v_mov_b32 v{T+1}, v{T}""")
    a.I(f"v_mov_b32 v{Sm+2}, 0\nv_mov_b32 v{Sm+3}, 0")
    f(0)
    a.I(f"""v_permlane16_swap_b32 v{T}, v{T+1}
    v_max_f32 v{T}, v{T}, v{T+1}
    v_mov_b32 v{T+1}, v{T}""")
    f(1)
    a.I(f"""v_permlane32_swap_b32 v{T}, v{T+1}
    v_max_f32 v{T}, v{T}, v{T+1}
    v_mul_f32 v{T}, s{sC}, v{T}""")
    regs=[S1,S1+1,S1+2,S1+3,S2,S2+1,S2+2,S2+3,Sm,Sm+1]
    for r in regs: a.I(f"v_fma_f32 v{r}, v{r}, s{sC}, -v{T}")
    for r in regs: a.I(f"v_exp_f32 v{r}, v{r}")
    a.I(f"""v_cvt_pk_bf16_f32 v{S1}, v{S1}, v{S1+1}
    v_cvt_pk_bf16_f32 v{S1+1}, v{S1+2}, v{S1+3}
    v_cvt_pk_bf16_f32 v{S1+2}, v{S2}, v{S2+1}
    v_cvt_pk_bf16_f32 v{S1+3}, v{S2+2}, v{S2+3}
    v_cvt_pk_bf16_f32 v{Sm}, v{Sm}, v{Sm+1}
    v_mov_b32 v{Sm+1}, 0""")

def pv(a, Px, Pm, VF, VM, ONES, O0, O1, SUM, OUT):
    a.I(f"""v_mfma_f32_16x16x32_bf16 v[{SUM}:{SUM+3}], v[{ONES}:{ONES+3}], v[{Px}:{Px+3}], 0
    v_mfma_f32_16x16x32_bf16 v[{SUM}:{SUM+3}], v[{ONES}:{ONES+3}], v[{Pm}:{Pm+3}], v[{SUM}:{SUM+3}]
    v_mfma_f32_16x16x32_bf16 v[{O0}:{O0+3}], v[{VF}:{VF+3}], v[{Px}:{Px+3}], 0
    v_mfma_f32_16x16x32_bf16 v[{O1}:{O1+3}], v[{VF+4}:{VF+7}], v[{Px}:{Px+3}], 0
    v_mfma_f32_16x16x32_bf16 v[{O0}:{O0+3}], v[{VM}:{VM+3}], v[{Pm}:{Pm+3}], v[{O0}:{O0+3}]
    v_mfma_f32_16x16x32_bf16 v[{O1}:{O1+3}], v[{VM+2}:{VM+5}], v[{Pm}:{Pm+3}], v[{O1}:{O1+3}]
    v_rcp_f32 v{SUM}, v{SUM}
    v_rcp_f32 v{SUM+1}, v{SUM+1}
    v_pk_mul_f32 v[{O0}:{O0+1}], v[{O0}:{O0+1}], v[{SUM}:{SUM+1}]
    v_pk_mul_f32 v[{O0+2}:{O0+3}], v[{O0+2}:{O0+3}], v[{SUM}:{SUM+1}]
    v_pk_mul_f32 v[{O1}:{O1+1}], v[{O1}:{O1+1}], v[{SUM}:{SUM+1}]
    v_pk_mul_f32 v[{O1+2}:{O1+3}], v[{O1+2}:{O1+3}], v[{SUM}:{SUM+1}]
    v_cvt_pk_bf16_f32 v{OUT}, v{O0}, v{O0+1}
    v_cvt_pk_bf16_f32 v{OUT+1}, v{O0+2}, v{O0+3}
    v_cvt_pk_bf16_f32 v{OUT+2}, v{O1}, v{O1+1}
    v_cvt_pk_bf16_f32 v{OUT+3}, v{O1+2}, v{O1+3}""")

def stamp(a, P, i, on):
    if on: a.I(f"""s_memtime s[66:67]
    s_waitcnt lgkmcnt(0)
    s_sub_u32 s68, s66, s69
    s_add_u32 s{70+i}, s{70+i}, s68
    s_mov_b32 s69, s66""")

def role_b(a, P):
    flg=FLAGS
    L16=0; GO=1; LO=2; DEL=3; IDX=4
    QS=XF_SIZE+64-(XF_SIZE%64); QS=40960
    BTK=38912
    def wreg(ti,ks):
        f=ks*6+ti
        return ar(4*f,4) if f<64 else vr(80+4*(f-64),4)
    a.L(P+"B")
    a.I(f"""s_sub_u32 s8, s4, 32""")
    sdiv(a,6,8,NB)
    a.I(f"""s_mul_i32 s7, s6, {NB}
    s_sub_u32 s7, s8, s7
    v_mov_b32 v10, s5""")
    ln_addr(a,"v10",0,GO,LO,12)
    a.I(f"""v_and_b32 v10, 15, v0
    v_lshrrev_b32 v11, 2, v10
    v_lshlrev_b32 v11, 3, v11
    v_and_b32 v12, 3, v10
    v_add_u32 v11, v11, v12
    v_lshrrev_b32 v12, 4, v0
    v_lshlrev_b32 v12, 3, v12
    v_sub_u32 v{DEL}, v11, v12
    v_mov_b32 v{IDX}, 0x4444
    v_mov_b32 v11, 0xeeee
    v_and_b32 v12, 2, v0
    v_cmp_eq_u32 vcc, 2, v12
    v_cndmask_b32 v{IDX}, v{IDX}, v11, vcc
    v_lshlrev_b32 v{L16}, 4, v0""")
    def wt(ti,ks):
        f=ks*6+ti
        return ('a',4*f) if f<64 else ('v',80+4*(f-64))
    a.I(f"""v_lshrrev_b32 v20, 6, v{L16}          ; a
    v_bfe_u32 v21, v{L16}, 4, 2            ; piece
    v_lshlrev_b32 v8, 13, v20
    v_lshl_add_u32 v8, v21, 4, v8
    v_and_b32 v22, 3, v20
    v_lshrrev_b32 v23, 8, v{L16}
    v_lshl_add_u32 v22, v23, 3, v22
    v_lshlrev_b32 v22, 6, v22
    v_lshl_add_u32 v22, v21, 4, v22
    s_lshl_b32 s9, s5, 12
    v_add_u32 v9, s9, v22
    v_add_u32 v10, s9, v{L16}
    s_lshl_b32 s30, s6, 8
    s_lshl_b32 s9, s5, 6
    s_add_u32 s30, s30, s9""")
    chunks=[]
    for k in range(9):
        for mat in range(3):
            g=[wt(2*mat+t,2*k+hb) for t in range(2) for hb in range(2)]
            chunks.append(dict(srd=SQ+4*mat, voff=[8]*4, soff=[(30,(64*k+16*i)*8192) for i in range(4)], grp=g,
                rd=[((g[2*t+hb][0],g[2*t+hb][1]+2*rho),9,hb*2048+rho*256+t*8) for t in range(2) for hb in range(2) for rho in range(2)]))
    rawload(a,chunks,10,flags="")
    a.I("s_barrier")
    wait_dbg(a,DB_INIT,NOTH,8)
    a.L(P+"B_layer")
    a.I(f"""s_mov_b32 s10, s7            ; s_q
    s_mov_b32 s11, -1                    ; s_a
    s_mov_b32 s12, {QS}
    s_mov_b32 s13, {QS+24576}
    s_mov_b32 s14, {SCL}
    s_waitcnt vmcnt(0)""")
    a.L(P+"B_loop")
    a.I(f"""s_cmp_ge_u32 s10, 64
    s_cbranch_scc1 {P}B_attn""")
    X=8; T=44
    a.I(f"""s_cmp_eq_u32 s95, 0
    s_cbranch_scc1 {P}B_x
    s_lshl_b32 s15, s10, 4
    s_add_u32 s15, s15, {FLAGS+EFLAG}""")
    wait_flags(a,15,3,8,L16,sleep=2)
    a.L(P+"B_x")
    a.I(f"s_mul_i32 s15, s10, {32*1152}")
    ln_load(a,X,GO,24,"s15","sc1")
    a.I(f"""s_lshl_b32 s16, s6, 21
    s_lshl_b32 s17, s10, 12
    s_add_u32 s17, s17, s16
    s_lshl_b32 s18, s5, 10
    s_add_u32 s17, s17, s18
    s_add_u32 s17, s17, {KVM}
    v_mov_b32 v44, -1
    v_mov_b32 v45, -1
    v_mov_b32 v46, -1
    v_mov_b32 v47, -1
    buffer_store_dwordx4 v[44:47], v{L16}, s[20:23], s17 offen sc1
    s_waitcnt vmcnt(1)""")
    ln_compute(a,X,T,LO,36,37)
    a.I("s_waitcnt lgkmcnt(0)\ns_barrier")
    ACC=32; FR=8
    def rd(ks):
        for th in range(2):
            r=FR+((ks%3)*2+th)*4
            a.I(f"ds_read_b128 v[{r}:{r+3}], v{L16} offset:{th*XF_TH+ks*1024}")
    rd(0); rd(1)
    acc=lambda ti,th: ACC+(ti*2+th)*4
    for ks in range(18):
        if ks+2<18: rd(ks+2)
        a.I(f"s_waitcnt lgkmcnt({min(2,17-ks)*2})")
        for ti in range(6):
            for th in range(2):
                d=acc(ti,th); r=vr(FR+((ks%3)*2+th)*4,4)
                c="0" if ks==0 else vr(d,4)
                if ti<4: a.I(f"v_mfma_f32_16x16x32_bf16 {vr(d,4)}, {wreg(ti,ks)}, {r}, {c}")
                else:    a.I(f"v_mfma_f32_16x16x32_bf16 {vr(d,4)}, {r}, {wreg(ti,ks)}, {c}")
    a.I(f"""s_lshl_b32 s17, s10, 14
    s_add_u32 s17, s17, s16
    s_add_u32 s17, s17, {KV}
    s_add_u32 s18, s18, s17              ; + w*1024  (K)
    s_lshl_b32 s19, s5, 11
    s_add_u32 s19, s19, s17
    s_add_u32 s19, s19, 8192             ; V + w*2048
    s_lshl_b32 s38, s5, 10
    s_add_u32 s38, s38, s12
    v_add_u32 v5, s38, v{L16}
    s_lshl_b32 s38, s5, 11
    s_add_u32 s38, s38, s12
    v_add_u32 v6, s38, v{L16}
    s_add_u32 s39, s18, 4096""")
    for m in range(2):
        for th in range(2):
            o=8+(m*2+th)*4; d0=acc(2*m,th); d1=acc(2*m+1,th)
            a.I(f"""v_cvt_pk_bf16_f32 v{o}, v{d0}, v{d0+1}
            v_cvt_pk_bf16_f32 v{o+1}, v{d1}, v{d1+1}
            v_cvt_pk_bf16_f32 v{o+2}, v{d0+2}, v{d0+3}
            v_cvt_pk_bf16_f32 v{o+3}, v{d1+2}, v{d1+3}
            ds_write_b128 v5, v[{o}:{o+3}] offset:{m*8192+th*4096}""")
            if m==1: a.I(f"buffer_store_dwordx4 v[{o}:{o+3}], v{L16}, s[20:23], s{18 if th==0 else 39} offen sc1")
    for tau in range(2):
        o=24+tau*4; d0=acc(4+tau,0); d1=acc(4+tau,1)
        a.I(f"""v_cvt_pk_bf16_f32 v{o}, v{d0}, v{d0+1}
        v_cvt_pk_bf16_f32 v{o+1}, v{d0+2}, v{d0+3}
        v_cvt_pk_bf16_f32 v{o+2}, v{d1}, v{d1+1}
        v_cvt_pk_bf16_f32 v{o+3}, v{d1+2}, v{d1+3}
        ds_write_b128 v6, v[{o}:{o+3}] offset:{16384+tau*1024}
        buffer_store_dwordx4 v[{o}:{o+3}], v{L16}, s[20:23], s19 offen offset:{tau*1024} {BST}""")
    if BRB:
        a.I(f"""s_waitcnt vmcnt(0)
        buffer_load_dwordx4 v[8:11], v{L16}, s[20:23], s19 offen {BRB}
        buffer_load_dwordx4 v[12:15], v{L16}, s[20:23], s19 offen offset:1024 {BRB}""")
    a.I(f"""s_waitcnt vmcnt(0) lgkmcnt(0)
    s_barrier
    s_cmp_lg_u32 s5, 0
    s_cbranch_scc1 {P}B_attn
    s_lshl_b32 s17, s6, 6
    s_add_u32 s17, s17, s10
    s_lshl_b32 s17, s17, 7
    s_add_u32 s17, s17, {flg}
    v_mov_b32 v8, 1
    s_mov_b64 exec, 1
    buffer_store_dword v8, v{L16}, s[20:23], s17 offen sc1
    s_mov_b64 exec, -1""")
    a.L(P+"B_attn")
    a.I(f"""s_cmp_lt_i32 s11, 0
    s_cbranch_scc1 {P}B_next
    s_lshl_b32 s16, s11, 5
    s_add_u32 s16, s16, s6
    s_lshl_b32 s17, s6, 21
    s_lshl_b32 s18, s11, 12
    s_add_u32 s17, s17, s18
    s_add_u32 s17, s17, {KVM}
    s_lshl_b32 s18, s5, 10
    s_add_u32 s18, s18, s17
    v_add_u32 v6, s13, v{L16}
    s_lshl_b32 s38, s5, 11
    v_add_u32 v7, s38, v6""")
    KM=8; VM=16; VF=20; QF=28; KF=44; S1=60; S2=64; Sm=68; ON=72; T=78; O0=44; O1=48
    a.I(f"""ds_read_b128 v[{VF}:{VF+3}], v7 offset:16384
    ds_read_b128 v[{VF+4}:{VF+7}], v7 offset:17408""")
    for i in range(4): a.I(f"v_mov_b32 v{ON+i}, 0x3f803f80")
    a.L(P+"B_poll")
    a.I(f"""buffer_load_dwordx4 v[{KM}:{KM+3}], v{L16}, s[20:23], s18 offen sc1
    s_waitcnt vmcnt(0)
    v_max3_u32 v{T}, v{KM}, v{KM+1}, v{KM+2}
    v_max_u32 v{T}, v{T}, v{KM+3}
    v_cmp_eq_u32 vcc, -1, v{T}
    s_cbranch_vccz {P}B_go""")
    spin_tail(a,P+"B_poll",None,sleep=6)
    a.L(P+"B_go")
    a.I(f"""s_lshl_b32 s38, s5, 9
    ; TKw = (16w+n)*32+g*8
    v_and_b32 v{T}, 0xf0, v{L16}
    v_lshl_add_u32 v{T}, v{T}, 1, s38
    v_lshrrev_b32 v{T+1}, 8, v{L16}
    v_lshl_add_u32 v{T}, v{T+1}, 3, v{T}
    ds_write_b64 v{T}, v[{KM}:{KM+1}] offset:{BTK}
    v_mov_b64 v[{VM}:{VM+1}], v[{KM+2}:{KM+3}]
    v_and_b32 v{T}, 0x300, v{L16}
    v_bfe_u32 v{T+1}, v{L16}, 4, 4
    v_lshl_add_u32 v{T}, v{T+1}, 3, v{T}
    s_waitcnt lgkmcnt(0)
    s_barrier""")
    for sg_ in range(2):
        for rho in range(2):
            a.I(f"ds_read_b64_tr_b16 v[{KM+4*sg_+2*rho}:{KM+4*sg_+2*rho+1}], v{T} offset:{BTK+sg_*1024+rho*128}")
    a.I(f"""s_lshl_b32 s17, s16, 13
    s_lshl_b32 s18, s5, 11
    s_add_u32 s17, s17, s18
    s_add_u32 s17, s17, {OBUF}
    v_mov_b32 v76, 0xff800000
    v_mov_b32 v{VM+2}, v{VM+1}
    v_mov_b32 v{VM+3}, 0""")
    for tq in range(2):
        for ks in range(4): a.I(f"ds_read_b128 v[{QF+4*ks}:{QF+4*ks+3}], v6 offset:{tq*4096+ks*1024}")
        for i in range(4): a.I(f"v_mov_b32 v{Sm+i}, 0")
        for tk in range(2):
            S=(S1,S2)[tk]
            for ks in range(4): a.I(f"ds_read_b128 v[{KF+4*ks}:{KF+4*ks+3}], v6 offset:{8192+tk*4096+ks*1024}")
            a.I("s_waitcnt lgkmcnt(0)")
            for ks in range(4):
                c="0" if ks==0 else vr(S,4)
                a.I(f"v_mfma_f32_16x16x32_bf16 {vr(S,4)}, {vr(KF+4*ks,4)}, {vr(QF+4*ks,4)}, {c}")
            a.I("s_nop 3")
        for sg_ in range(2):
            a.I(f"v_smfmac_f32_16x16x64_bf16 {vr(Sm,4)}, {vr(KM+4*sg_,4)}, {vr(QF+8*sg_,8)}, v{IDX}")
        for tk in range(2):
            S=(S1,S2)[tk]
            for r in range(4):
                a.I(f"""v_cmp_le_i32 vcc, {r+4*(tk-tq)}, v{DEL}
                v_cndmask_b32 v{S+r}, v76, v{S+r}, vcc""")
        softmax(a,S1,S2,Sm,T,14)
        pv(a,S1,Sm,VF,VM,ON,O0,O1,S2,52+4*tq)
        a.I(f"buffer_store_dwordx4 v[{52+4*tq}:{55+4*tq}], v{L16}, s[20:23], s17 offen offset:{tq*1024} sc1")
        if tq==0: a.I("s_nop 1")
    a.I(f"""s_waitcnt vmcnt(0)
    s_barrier
    s_cmp_lg_u32 s5, 0
    s_cbranch_scc1 {P}B_next
    s_lshl_b32 s17, s16, 2
    s_add_u32 s17, s17, {flg+OFLAG}
    v_mov_b32 v8, 1
    s_mov_b64 exec, 1
    buffer_store_dword v8, v{L16}, s[20:23], s17 offen sc1
    s_mov_b64 exec, -1""")
    a.L(P+"B_next")
    a.I(f"""s_mov_b32 s11, s10
    s_add_u32 s10, s10, {NB}
    s_mov_b32 s38, s12
    s_mov_b32 s12, s13
    s_mov_b32 s13, s38
    s_cmp_lt_u32 s11, 64
    s_cbranch_scc1 {P}B_loop
    s_cmp_eq_u32 s95, 1
    s_cbranch_scc1 {P}Efin""")
    next_layer(a)
    a.I(f"s_branch {P}B_layer")

def role_c(a, P):
    flg=FLAGS+OFLAG; xdst=XA
    L16=0
    def wreg(kl,tau):
        f=kl*3+tau
        return ar(4*f,4) if f<64 else vr(128+4*(f-64),4)
    a.L(P+"C")
    lane(a,0)
    a.I(f"""s_and_b32 s8, s4, 31
    s_sub_u32 s9, s4, 160
    s_lshr_b32 s9, s9, 5
    s_lshl_b32 s6, s9, 1
    s_mul_i32 s40, s9, 24
    s_add_u32 s40, s40, s8
    s_cmp_ge_u32 s8, 12
    s_cselect_b32 s9, 1, 0
    s_add_u32 s6, s6, s9
    s_mul_i32 s9, s9, 12
    s_sub_u32 s7, s8, s9                 ; cb
    v_and_b32 v1, 7, v0
    v_lshlrev_b32 v1, 2, v1
    v_and_b32 v10, 15, v0
    v_lshrrev_b32 v11, 2, v10
    v_lshlrev_b32 v11, 3, v11
    v_and_b32 v12, 3, v10
    v_add_u32 v11, v11, v12
    v_mul_u32_u24 v2, 1152, v11
    v_lshrrev_b32 v12, 4, v0
    v_mul_u32_u24 v12, 24, v12
    v_add_u32 v2, v2, v12
    v_lshlrev_b32 v{L16}, 4, v0
    s_mul_i32 s9, s5, 6144
    v_add_u32 v3, s9, v{L16}
    s_mul_i32 s9, s5, 3072
    v_add_u32 v4, s9, v{L16}
    s_mul_i32 s30, s5, {1024*1152}
    s_mul_i32 s9, s7, 96
    s_add_u32 s30, s30, s9
    s_lshl_b32 s9, s5, 12
    v_add_u32 v9, s9, v{L16}
    v_bfe_u32 v20, v{L16}, 6, 2
    v_lshrrev_b32 v21, 8, v{L16}
    v_lshl_add_u32 v20, v21, 3, v20
    v_mul_u32_u24 v20, 96, v20
    v_bfe_u32 v21, v{L16}, 4, 2
    v_mul_u32_u24 v21, 24, v21
    v_add3_u32 v8, v20, v21, s9
    v_lshrrev_b32 v20, 4, v{L16}""")
    for i in range(3):
        a.I(f"""v_add_u32 v21, {64*i}, v20
        v_mul_u32_u24 v22, 171, v21
        v_lshrrev_b32 v22, 10, v22
        v_mul_u32_u24 v23, 6, v22
        v_sub_u32 v23, v21, v23
        v_mul_u32_u24 v22, 1152, v22
        v_lshl_add_u32 v{5+i}, v23, 4, v22""")
    def wt(kl,tau):
        f=kl*3+tau
        return ('a',4*f) if f<64 else ('v',128+4*(f-64))
    chunks=[]
    for kl in range(32):
        g=[wt(kl,t) for t in range(3)]
        chunks.append(dict(srd=SQ+12, voff=[5,6,7], soff=[(30,32*kl*1152)]*3, grp=g,
            rd=[((g[t][0],g[t][1]+2*rho),8,rho*384+t*8) for t in range(3) for rho in range(2)]))
    rawload(a,chunks,9,flags="")
    a.I("s_barrier")
    wait_dbg(a,DB_INIT,NOTH,8)
    a.L(P+"C_loop")
    a.I(f"""s_lshl_b32 s10, s6, 5
    s_lshl_b32 s11, s5, 3
    s_add_u32 s10, s10, s11              ; s*32+8w
    s_lshl_b32 s11, s10, 2
    s_add_u32 s11, s11, {flg}
    s_lshl_b32 s12, s10, 13
    s_add_u32 s12, s12, {OBUF}
    s_mul_i32 s13, s6, {32*1152}
    s_mul_i32 s14, s7, 96
    s_add_u32 s13, s13, s14
    s_mul_i32 s14, s5, {4*1152}
    s_add_u32 s13, s13, s14
    """)
    a.L(P+"C_poll")
    a.I(f"""buffer_load_dword v5, v1, s[20:23], s11 offen sc1
    s_waitcnt vmcnt(0)
    v_cmp_ne_u32 vcc, 1, v5
    s_cbranch_vccz {P}C_go""")
    spin_tail(a,P+"C_poll",None,sleep=4)
    a.L(P+"C_go")
    a.I("""buffer_load_dwordx4 v[8:11], v2, s[24:27], s13 offen sc1
    buffer_load_dwordx2 v[12:13], v2, s[24:27], s13 offen offset:16 sc1""")
    ACC=16; FB=40; NR=22
    def ld(f):
        r=FB+4*(f%NR)
        a.I(f"buffer_load_dwordx4 v[{r}:{r+3}], v{L16}, s[20:23], s12 offen offset:{(f&3)*1024} sc1")
        if f&3==3: a.I("s_add_u32 s12, s12, 4096")
    for f in range(NR): ld(f)
    for kl in range(32):
        issued=min(64,NR+2*kl)
        a.I(f"s_waitcnt vmcnt({issued-2*kl-2})")
        for th in range(2):
            r=FB+4*((2*kl+th)%NR)
            for tau in range(3):
                d=ACC+(th*3+tau)*4
                c="0" if kl==0 else vr(d,4)
                a.I(f"v_mfma_f32_16x16x32_bf16 {vr(d,4)}, {wreg(kl,tau)}, {vr(r,4)}, {c}")
        for f in (NR+2*kl,NR+2*kl+1):
            if f<64: ld(f)
    for i in range(6): a.I(f"ds_write_b128 v3, {vr(ACC+4*i,4)} offset:{1024*i}")
    a.I(f"""s_waitcnt lgkmcnt(0)
    s_barrier
    s_cmp_ge_u32 s5, 2
    s_cbranch_scc1 {P}C_next""")
    for w in range(4):
        for tau in range(3):
            a.I(f"ds_read_b128 {vr(FB+(w*3+tau)*4,4)}, v4 offset:{w*6144+tau*1024}")
    a.I("s_waitcnt lgkmcnt(0)")
    for p in range(6):
        x=8+p; d=FB+2*p
        a.I(f"""v_pk_add_f32 v[{d}:{d+1}], v[{d}:{d+1}], v[{d+12}:{d+13}]
        v_pk_add_f32 v[{d+24}:{d+25}], v[{d+24}:{d+25}], v[{d+36}:{d+37}]
        v_lshlrev_b32 v14, 16, v{x}
        v_and_b32 v15, 0xffff0000, v{x}
        v_pk_add_f32 v[{d}:{d+1}], v[{d}:{d+1}], v[{d+24}:{d+25}]
        v_pk_add_f32 v[14:15], v[14:15], v[{d}:{d+1}]
        v_cvt_pk_bf16_f32 v{x}, v14, v15""")
    a.I(f"""s_add_u32 s13, s13, {xdst}
    buffer_store_dwordx4 v[8:11], v2, s[20:23], s13 offen sc1
    buffer_store_dwordx2 v[12:13], v2, s[20:23], s13 offen offset:16 sc1
    s_waitcnt vmcnt(0)""")
    a.L(P+"C_next")
    a.I(f"""s_barrier
    s_cmp_lg_u32 s5, 0
    s_cbranch_scc1 {P}C_nf
    s_lshl_b32 s11, s6, 6
    s_lshl_b32 s12, s7, 2
    s_add_u32 s11, s11, s12
    s_add_u32 s11, s11, {FLAGS+XFLAG}""")
    post_flag(a,11,14)
    a.L(P+"C_nf")
    a.I(f"""s_add_u32 s6, s6, {NG}
    s_cmp_lt_u32 s6, 64
    s_cbranch_scc1 {P}C_loop
    s_mov_b32 s41, 0
    s_branch {P}L5""")
```

```python
from common import *
N5=640; N4=1296; N6=56
B5=0; B4=B5+N5; B6=B4+N4; NT=B6+N6

def others(a, P):
    a.L(P+"O")
    a.I(f"""s_lshl_b32 s45, s44, 2
    s_add_u32 s45, s45, s5               ; ow 0..191
    v_lshrrev_b32 v1, 4, v0
    v_and_b32 v2, 15, v0
    v_lshlrev_b32 v3, 4, v0
    v_mov_b32 v4, 0
    v_mov_b32 v5, 0
    v_mov_b32 v6, 0
    v_mov_b32 v7, 0
    v_mov_b32 v8, -1
    v_mov_b32 v9, -1
    v_mov_b32 v10, -1
    v_mov_b32 v11, -1""")
    def fill(base,n,reg):
        l=a.lab("fl")
        a.I("s_mov_b32 s3, s45")
        a.L(l)
        a.I(f"""s_cmp_ge_u32 s3, {n}
        s_cbranch_scc1 {l}d
        s_lshl_b32 s6, s3, 10
        s_add_u32 s6, s6, {base}
        buffer_store_dwordx4 v[{reg}:{reg+3}], v3, s[20:23], s6 offen sc1
        s_add_u32 s3, s3, 192
        s_branch {l}""")
        a.L(l+"d")
    fill(FLAGS,FLAGB//1024,4); fill(PART,288,8); fill(MEMB,36,8); fill(MEMB+0x10000,2,4); fill(LOFF+FLAGS,FLAGB//1024,4)
    a.I(f"""s_cmp_lg_u32 s45, 100
    s_cbranch_scc1 {P}O_nm
    s_load_dwordx2 s[8:9], s[0:1], {KA['mem0']}
    v_lshrrev_b32 v12, 2, v2
    v_lshlrev_b32 v12, 1, v12
    v_and_b32 v13, 1, v0
    v_add_u32 v12, v12, v13
    v_mul_u32_u24 v17, 1152, v12
    v_bfe_u32 v12, v0, 1, 1
    v_lshl_add_u32 v18, v12, 6, v17
    v_lshl_add_u32 v18, v1, 3, v18
    v_lshl_add_u32 v17, v1, 5, v17
    v_lshl_add_u32 v17, v12, 2, v17
    s_mov_b32 s30, 0x05040100
    s_mov_b32 s31, 0x07060302
    s_waitcnt lgkmcnt(0)""")
    srd(a,80,8,9216)
    for k in range(8):
        a.I(f"""buffer_load_dwordx2 v[{24+4*k}:{25+4*k}], v18, s[80:83], 0 offen offset:{128*k}
        buffer_load_dwordx2 v[{26+4*k}:{27+4*k}], v18, s[80:83], 0 offen offset:{128*k+32}""")
    for j in range(4): a.I(f"buffer_load_dword v{56+j}, v17, s[80:83], 0 offen offset:{1024+8*j}")
    a.I(f"s_mov_b32 s9, {MEMB+4*9216}\ns_waitcnt vmcnt(0)")
    for k in range(8):
        b=24+4*k
        a.I(f"""v_perm_b32 v60, v{b+2}, v{b}, s30
        v_perm_b32 v61, v{b+2}, v{b}, s31
        v_perm_b32 v62, v{b+3}, v{b+1}, s30
        v_perm_b32 v63, v{b+3}, v{b+1}, s31
        buffer_store_dwordx4 v[60:63], v3, s[20:23], s9 offen sc1
        s_add_u32 s9, s9, 1024""")
    a.I(f"buffer_store_dwordx4 v[56:59], v3, s[20:23], s9 offen sc1")
    a.L(P+"O_nm")
    a.I(f"""s_load_dwordx4 s[12:15], s[0:1], {KA['wr']}
    s_waitcnt vmcnt(0) lgkmcnt(0)
    s_barrier
    s_cmp_lg_u32 s5, 0
    s_cbranch_scc1 {P}O_t""")
    add_dbg(a,DB_INIT,12)
    a.L(P+"O_t")
    srd(a,24,12,2048*578)
    srd(a,80,14,2048*578)
    a.I(f"s_sub_u32 s46, s45, 192")
    a.L("P_end")
    a.I(f"""s_mov_b64 exec, -1
    s_add_u32 s46, s46, 192
    s_mov_b32 s3, s46
    s_cmp_lt_u32 s3, {B4}
    s_cbranch_scc1 P_T5
    s_cmp_lt_u32 s3, {B6}
    s_cbranch_scc1 P_T4
    s_cmp_lt_u32 s3, {NT}
    s_cbranch_scc1 P_T6
    s_waitcnt vmcnt(0)
    s_barrier
    s_cmp_lg_u32 s5, 0
    s_cbranch_scc1 {P}O_d""")
    add_dbg(a,DB_TAB,12)
    a.L(P+"O_d")
    a.I(f"""s_cmp_lt_u32 s44, {3*ND}
    s_cbranch_scc1 {P}D
    s_branch {P}E""")
    a.L("P_T4")
    a.I(f"""s_sub_u32 s3, s3, {B4}
    s_cmp_ge_u32 s3, 648
    s_cselect_b32 s38, 1, 0          ; inv?
    s_cselect_b32 s39, 648, 0
    s_sub_u32 s3, s3, s39            ; f""")
    sdiv(a,32,3,18)
    a.I(f"""s_mul_i32 s33, s32, 18
    s_sub_u32 s33, s3, s33           ; ks
    s_lshl_b32 s34, s33, 5
    v_lshl_add_u32 v3, v1, 3, s34
    s_mov_b32 s40, {-(-(1<<32)//576)}
    s_mov_b32 s41, 0x3ae38e39        ; 1/576
    s_cmp_eq_u32 s38, 1
    s_cbranch_scc1 P_T4i
    s_lshl_b32 s34, s32, 4
    v_add_u32 v4, s34, v2            ; c (fixed)""")
    def elem(dst, d, c, wgt):
        a.I(f"""v_cmp_lt_u32 vcc, 288, v{c}
        v_subrev_u32 v30, 288, v{c}
        v_cndmask_b32 v30, v{c}, v30, vcc
        v_mov_b32 v31, 144
        v_cndmask_b32 v31, 0, v31, vcc
        v_mad_u32_u24 v30, v30, v{d}, v31
        v_mul_hi_u32 v31, v30, s40
        v_mul_u32_u24 v31, 576, v31
        v_sub_u32 v30, v30, v31
        v_cvt_f32_u32 v30, v30
        v_mul_f32 v30, s41, v30
        v_cos_f32 v{dst}, v30""")
        if wgt:
            a.I(f"""v_cmp_eq_u32 vcc, 0, v{c}
            v_cmp_eq_u32 s[42:43], v{c}, v34
            s_or_b64 vcc, vcc, s[42:43]
            v_add_f32 v31, v{dst}, v{dst}
            v_cndmask_b32 v{dst}, v31, v{dst}, vcc""")
    for t in range(8):
        a.I(f"v_add_u32 v5, {t}, v3")
        elem(8+t,5,4,False)
    a.I(f"s_mov_b32 s35, {FIMG}\ns_branch P_T4s")
    a.L("P_T4i")
    sdiv(a,36,32,3)
    a.I(f"""s_mul_i32 s37, s36, 3
    s_sub_u32 s37, s32, s37          ; tau
    s_mul_i32 s36, s36, 48
    s_lshl_b32 s37, s37, 2
    s_add_u32 s36, s36, s37
    v_lshrrev_b32 v4, 2, v2
    v_mul_u32_u24 v4, 12, v4
    v_and_b32 v5, 3, v2
    v_add3_u32 v4, v4, v5, s36       ; d (fixed)
    v_mov_b32 v34, 288""")
    for t in range(8):
        a.I(f"v_add_u32 v5, {t}, v3")
        elem(8+t,4,5,True)
    a.I(f"s_mov_b32 s35, {FINV}")
    a.L("P_T4s")
    a.I("s_nop 1")
    for p in range(4):
        a.I(f"v_cvt_pk_bf16_f32 v{20+p}, v{8+2*p}, v{9+2*p}")
    a.I("""s_lshl_b32 s3, s3, 10
    s_add_u32 s35, s35, s3
    v_lshlrev_b32 v4, 4, v0
    buffer_store_dwordx4 v[20:23], v4, s[20:23], s35 offen sc1
    s_branch P_end""")
    a.L("P_T5")
    a.I(f"""s_lshr_b32 s32, s3, 7        ; kg
    s_lshr_b32 s33, s3, 6
    s_and_b32 s33, s33, 1          ; hf
    s_lshr_b32 s34, s3, 3
    s_and_b32 s34, s34, 7          ; q
    s_and_b32 s35, s3, 7
    s_lshl_b32 s36, s32, 6
    v_add_u32 v3, s36, v0          ; kd
    v_lshlrev_b32 v4, 1, v3
    s_lshl_b32 s36, s33, 5
    s_lshl_b32 s37, s34, 2
    s_add_u32 s36, s36, s37
    s_lshl_b32 s36, s36, 5         ; 32*(32hf+4q)
    s_lshl_b32 s37, s35, 2
    s_add_u32 s36, s36, s37        ; ks0
    s_mul_i32 s36, s36, 578""")
    for i in range(4):
        for k in range(4):
            a.I(f"""buffer_load_ushort v{8+4*k+i}, v4, s[24:27], s36 offen offset:{578*k}
            buffer_load_ushort v{24+4*k+i}, v4, s[80:83], s36 offen offset:{578*k}""")
        if i<3: a.I(f"s_add_u32 s36, s36, {32*578}")
    a.I(f"""v_lshlrev_b32 v5, 13, v3
    s_lshl_b32 s36, s34, 10
    s_lshl_b32 s37, s33, 9
    s_add_u32 s36, s36, s37
    s_lshl_b32 s37, s35, 6
    s_add_u32 s36, s36, s37
    s_add_u32 s36, s36, {WFI}
    v_cmp_gt_u32 vcc, 289, v3
    s_and_saveexec_b64 s[48:49], vcc
    s_waitcnt vmcnt(0)""")
    for r in range(16):
        a.I(f"v_lshl_or_b32 v{8+r}, v{24+r}, 16, v{8+r}")
    for k in range(4):
        a.I(f"buffer_store_dwordx4 v[{8+4*k}:{11+4*k}], v5, s[20:23], s36 offen offset:{16*k} sc1")
    a.I("s_branch P_end")
    a.L("P_T6")
    a.I(f"""s_sub_u32 s3, s3, {B6}
    v_and_b32 v3, 31, v0           ; l&31
    v_lshrrev_b32 v4, 5, v0        ; hf
    v_bfe_u32 v5, v3, 2, 1
    v_lshlrev_b32 v5, 5, v5
    v_lshrrev_b32 v6, 3, v3
    v_lshl_add_u32 v5, v6, 2, v5
    v_and_b32 v6, 3, v3
    v_add_u32 v5, v5, v6
    s_mov_b32 s41, 0x3a000000      ; 1/2048
    v_lshlrev_b32 v7, 4, v0
    s_cmp_ge_u32 s3, 54
    s_cbranch_scc1 P_end
    s_cmp_ge_u32 s3, 32
    s_cbranch_scc1 P_T6c
    s_cmp_ge_u32 s3, 16
    s_cbranch_scc1 P_T6b""")
    def cs(dst, ang, off):
        a.I(f"""v_add_u32 v30, {off}, v{ang}
        v_and_b32 v30, 0x7ff, v30
        v_cvt_f32_u32 v30, v30
        v_mul_f32 v30, s41, v30
        v_cos_f32 v{dst}, v30""")
    a.I("""s_lshl_b32 s32, s3, 1
    v_lshl_add_u32 v8, v4, 5, s32
    v_mul_u32_u24 v9, v8, v3
    v_add_u32 v10, v9, v3""")
    cs(12,9,0); cs(13,10,0); cs(14,9,1536); cs(15,10,1536)
    a.I(f"""s_lshl_b32 s3, s3, 10
    s_add_u32 s3, s3, {TW1}
    s_nop 0
    buffer_store_dwordx4 v[12:15], v7, s[20:23], s3 offen sc1
    s_branch P_end""")
    a.L("P_T6b")
    import struct
    sc=struct.unpack('<I',struct.pack('<f',1.0/(2048*576)))[0]
    a.I(f"""s_sub_u32 s3, s3, 16
    s_lshr_b32 s32, s3, 3
    s_lshl_b32 s32, s32, 4
    v_add_u32 v8, s32, v5          ; s2
    s_and_b32 s33, s3, 1
    s_lshl_b32 s33, s33, 1         ; r&3
    s_bfe_u32 s34, s3, 0x20001     ; (u>>1)&3 = r>>2
    s_lshl_b32 s34, s34, 3
    s_add_u32 s33, s33, s34
    v_lshl_add_u32 v11, v4, 2, s33 ; k1
    v_mul_u32_u24 v9, v8, v11
    v_add_u32 v10, v9, v8""")
    cs(12,9,0); cs(13,10,0); cs(14,9,1536); cs(15,10,1536)
    a.I(f"""s_mov_b32 s35, {sc:#x}
    s_nop 0
    v_mul_f32 v12, s35, v12
    v_mul_f32 v13, s35, v13
    v_mul_f32 v14, s35, v14
    v_mul_f32 v15, s35, v15
    s_lshl_b32 s3, s3, 10
    s_add_u32 s3, s3, {TW2}
    buffer_store_dwordx4 v[12:15], v7, s[20:23], s3 offen sc1
    s_branch P_end""")
    a.L("P_T6c")
    a.I(f"""s_sub_u32 s3, s3, 32
    s_cmp_ge_u32 s3, 6
    s_cbranch_scc1 P_T6d
    s_lshr_b32 s32, s3, 1
    s_mov_b32 s36, 0
    s_cmp_eq_u32 s32, 1
    s_cselect_b32 s36, 1536, s36
    s_cmp_eq_u32 s32, 2
    s_cselect_b32 s36, 512, s36
    s_and_b32 s33, s3, 1
    s_lshl_b32 s33, s33, 4
    v_lshl_add_u32 v8, v4, 2, s33     ; 16k+4hf
    v_lshlrev_b32 v9, 6, v3           ; a*64""")
    for t in range(8):
        a.I(f"""v_add_u32 v10, {(t&3)+8*(t>>2)}, v8
        v_mul_u32_u24 v10, v10, v9""")
        cs(12+t,10,"s36")
    a.I("s_branch P_T6s")
    a.L("P_T6d")
    a.I(f"""s_sub_u32 s32, s3, 6
    s_cmp_ge_u32 s32, 8
    s_cselect_b32 s36, 1536, 0
    s_bfe_u32 s33, s32, 0x10002       ; phi
    s_lshl_b32 s33, s33, 4
    v_add_u32 v9, s33, v5             ; a
    v_lshlrev_b32 v9, 5, v9           ; a*32
    s_and_b32 s34, s32, 3
    s_lshl_b32 s34, s34, 3
    v_lshl_add_u32 v8, v4, 5, s34     ; 32hf+8ks""")
    for t in range(8):
        a.I(f"""v_add_u32 v10, {t}, v8
        v_mul_u32_u24 v10, v10, v9""")
        cs(12+t,10,"s36")
    a.L("P_T6s")
    a.I("s_nop 1")
    for p in range(4):
        a.I(f"v_cvt_pk_bf16_f32 v{20+p}, v{12+2*p}, v{13+2*p}")
    a.I(f"""s_lshl_b32 s3, s3, 10
    s_add_u32 s3, s3, {CST}
    buffer_store_dwordx4 v[20:23], v7, s[20:23], s3 offen sc1""")
    a.I("s_branch P_end")
```

```python
from common import *
SQ=64
def weight_srds(a):
    for i,p in enumerate((8,10,12,14)): srd(a,SQ+4*i,p,576*8192)

def sub(rt,k,n):
    f,b=rt
    return f"{f}[{b+k}:{b+k+n-1}]"

def rawload(a, chunks, vB, maxout=56, flags="nt", between=None):
    issued=0; ends=[]
    nxt=0
    def issue(c):
        nonlocal issued
        for i in range(len(c['voff'])):
            sg_,k=c['soff'][i]
            a.I(f"s_add_u32 s9, s{sg_}, {k}")
            if c['grp'] is None:
                a.I(f"""s_add_u32 m0, s{c['m0'][0]}, {c['m0'][1]+1024*i}
                s_nop 0
                buffer_load_dwordx4 v{c['voff'][i]}, s[{c['srd']}:{c['srd']+3}], s9 offen {flags} lds""")
            else:
                a.I(f"buffer_load_dwordx4 {sub(c['grp'][i],0,4)}, v{c['voff'][i]}, s[{c['srd']}:{c['srd']+3}], s9 offen {flags}")
            issued+=1
        ends.append(issued)
    done=0
    for ci,c in enumerate(chunks):
        while nxt<len(chunks) and issued+len(chunks[nxt]['voff'])-done<=maxout:
            issue(chunks[nxt]); nxt+=1
        a.I(f"s_waitcnt vmcnt({issued-ends[ci]})")
        done=ends[ci]
        if c['grp'] is not None:
            for i,g in enumerate(c['grp']):
                a.I(f"ds_write_b128 v{vB}, {sub(g,0,4)} offset:{1024*i}")
        for d,ad,o in c['rd']:
            a.I(f"ds_read_b64_tr_b16 {sub(d,0,2)}, v{ad} offset:{o} ; nowarn")
        if c.get('wb'):
            a.I("s_waitcnt lgkmcnt(0)")
            for g,ad,o in c['wb']:
                a.I(f"ds_write_b128 v{ad}, {sub(g,0,4)} offset:{o}")
    a.I("s_waitcnt lgkmcnt(0)")
```

```python
import sys
from build import *
import chain
dbg = set(int(x) for x in sys.argv[2].split(',')) if len(sys.argv)>2 else False
N="interleave_layers__memory_aug_recurrent_mem_tr__spectral_gfnet__prompt_kernel"
build([lambda a: chain.gen_mega(a,N,dbg)],[N],sys.argv[1])
```

```python
from common import *
NFIN=53
XF_TH=18432+64
XF_SIZE=2*XF_TH

def xlane_sum(a, x, t, op="v_add_f32"):
    a.I(f"""{op}_dpp v{x}, v{x}, v{x} row_ror:8 row_mask:0xf bank_mask:0xf
    v_mov_b32 v{t}, v{x}
    v_permlane16_swap_b32 v{x}, v{t}
    {op} v{x}, v{x}, v{t}
    v_mov_b32 v{t}, v{x}
    v_permlane32_swap_b32 v{x}, v{t}
    {op} v{x}, v{x}, v{t}""")

def rbf(a, x):
    a.I(f"""v_cvt_pk_bf16_f32 v{x}, v{x}, v{x}
    v_and_b32 v{x}, 0xffff0000, v{x}""")

def ln_addr(a, vw, vlane, vgoff, vloff, t, ldsbase=0):
    a.I(f"""v_and_b32 v{t}, 7, v{vlane}            ; rho
    v_lshl_add_u32 v{vgoff}, {vw}, 3, v{t}
    v_mul_u32_u24 v{vgoff}, 1152, v{vgoff}
    v_lshrrev_b32 v{t+1}, 3, v{vlane}              ; c
    v_lshl_add_u32 v{vgoff}, v{t+1}, 4, v{vgoff}
    v_lshrrev_b32 v{vloff}, 2, v{t}                ; theta
    v_mul_u32_u24 v{vloff}, {XF_TH}, v{vloff}
    v_lshl_add_u32 v{vloff}, v{t+1}, 8, v{vloff}   ; c*256 = (c>>2)*1024+(c&3)*256
    v_and_b32 v{t}, 3, v{t}
    v_lshl_add_u32 v{t}, {vw}, 2, v{t}             ; n
    v_lshl_add_u32 v{vloff}, v{t}, 4, v{vloff}""")
    if ldsbase: a.I(f"v_add_u32 v{vloff}, {ldsbase}, v{vloff}")

def ln_load(a, X, vgoff, srdx, soff, flags=""):
    for j in range(9):
        a.I(f"buffer_load_dwordx4 v[{X+4*j}:{X+4*j+3}], v{vgoff}, s[{srdx}:{srdx+3}], {soff} offen offset:{128*j} {flags}")

def ln_compute(a, X, T, vloff, sA, sB):
    assert T%2==0
    a.I(f"""s_mov_b32 s{sA}, 0x3f803f80
    s_mov_b32 s{sB}, 0x3ae38e39
    v_mov_b32 v{T}, 0
    v_mov_b32 v{T+1}, 0""")
    for i in range(36):
        a.I(f"v_dot2_f32_bf16 v{T+(i&1)}, v{X+i}, s{sA}, v{T+(i&1)}")
    a.I(f"v_add_f32 v{T}, v{T}, v{T+1}")
    xlane_sum(a,T,T+1)
    a.I(f"""v_mul_f32 v{T}, s{sB}, v{T}
    v_mov_b32 v{T+2}, v{T}""")
    rbf(a,T+2)
    a.I(f"""v_mov_b32 v{T+3}, v{T+2}
    v_sub_f32 v{T}, v{T}, v{T+2}
    v_mov_b32 v{T+4}, 0
    v_mov_b32 v{T+5}, 0""")
    for i in range(36):
        u=T+6+2*(i&1)
        a.I(f"""v_lshlrev_b32 v{u}, 16, v{X+i}
        v_and_b32 v{u+1}, 0xffff0000, v{X+i}
        v_pk_add_f32 v[{u}:{u+1}], v[{u}:{u+1}], v[{T+2}:{T+3}] neg_lo:[0,1] neg_hi:[0,1]
        v_pk_fma_f32 v[{T+4}:{T+5}], v[{u}:{u+1}], v[{u}:{u+1}], v[{T+4}:{T+5}]
        v_cvt_pk_bf16_f32 v{X+i}, v{u}, v{u+1}""")
    a.I(f"v_add_f32 v{T+4}, v{T+4}, v{T+5}")
    xlane_sum(a,T+4,T+5)
    a.I(f"""v_mul_f32 v{T+4}, s{sB}, v{T+4}
    v_fma_f32 v{T+4}, -v{T}, v{T}, v{T+4}
    v_max_f32 v{T+4}, 0, v{T+4}""")
    rbf(a,T+4)
    a.I(f"v_add_f32 v{T+4}, 0x3727c5ac, v{T+4}")
    rbf(a,T+4)
    a.I(f"v_sqrt_f32 v{T+4}, v{T+4}")
    rbf(a,T+4)
    a.I(f"""v_rcp_f32 v{T+4}, v{T+4}
    s_nop 0
    v_mov_b32 v{T+5}, v{T+4}""")
    for j in range(9):
        for k in range(4):
            i=4*j+k
            u=T+6+2*(i&1)
            a.I(f"""v_lshlrev_b32 v{u}, 16, v{X+i}
            v_and_b32 v{u+1}, 0xffff0000, v{X+i}
            v_pk_mul_f32 v[{u}:{u+1}], v[{u}:{u+1}], v[{T+4}:{T+5}]
            v_cvt_pk_bf16_f32 v{X+i}, v{u}, v{u+1}""")
        a.I(f"ds_write_b128 v{vloff}, v[{X+4*j}:{X+4*j+3}] offset:{2048*j}")

def load_54(a, vl16, srdw, sb):
    a.I(f"""s_add_u32 s{sb+1}, s{sb}, 18432
    s_add_u32 s{sb+2}, s{sb}, 36864""")
    for ks in range(18):
        for tau in range(3):
            r=(ks*3+tau)*4
            a.I(f"buffer_load_dwordx4 a[{r}:{r+3}], v{vl16}, s[{srdw}:{srdw+3}], s{sb+tau} offen offset:{(ks&3)*1024} sc1")
        if ks&3==3:
            for tau in range(3): a.I(f"s_add_u32 s{sb+tau}, s{sb+tau}, 4096")

def role_d(a, P):
    a.L(P+"D")
    lane(a,0)
    sdiv(a,3,44,3)
    a.I(f"""s_mul_i32 s43, s3, 3
    s_sub_u32 s43, s44, s43              ; cg
    v_mov_b32 v1, s5""")
    ln_addr(a,"v1",0,2,3,4)
    a.I(f"""v_lshlrev_b32 v6, 4, v0
    v_bfe_u32 v7, v0, 1, 3
    v_lshlrev_b32 v7, 13, v7
    v_and_b32 v8, 1, v0
    v_lshl_add_u32 v7, v8, 6, v7
    v_lshrrev_b32 v8, 4, v0
    v_lshl_add_u32 v7, v8, 4, v7
    s_mov_b32 s40, s3""")
    wait_dbg(a,DB_TAB,NOTH,8)
    a.I(f"""s_lshl_b32 s7, s43, 2
    s_add_u32 s7, s7, s5
    s_mul_i32 s10, s7, {54*1024}
    s_add_u32 s10, s10, {FIMG}""")
    load_54(a,6,84,10)
    a.L(P+"D_loop")
    a.I(f"""s_lshl_b32 s6, s3, 6
    s_add_u32 s6, s6, {FLAGS+XFLAG}""")
    wait_flags(a,6,12,8,6,sleep=2)
    rt(a,4,8)
    a.I(f"""s_mul_i32 s6, s3, {32*1152}
    s_add_u32 s6, s6, {XA}""")
    X=16
    ln_load(a,X,2,20,"s6","sc1")
    a.I("s_waitcnt vmcnt(0)")
    ln_compute(a,X,52,3,12,13)
    a.I("s_waitcnt lgkmcnt(0)\ns_barrier")
    ACC=64; FR=16
    def rd(ks):
        for th in range(2):
            r=FR+((ks%4)*2+th)*4
            a.I(f"ds_read_b128 v[{r}:{r+3}], v6 offset:{th*XF_TH+ks*1024}")
    for ks in range(3): rd(ks)
    for ks in range(18):
        if ks+3<18: rd(ks+3)
        a.I(f"s_waitcnt lgkmcnt({min(3,17-ks)*2})")
        for th in range(2):
            for tau in range(3):
                d=ACC+(th*3+tau)*4; r=FR+((ks%4)*2+th)*4; w=(ks*3+tau)*4
                c="0" if ks==0 else f"v[{d}:{d+3}]"
                a.I(f"v_mfma_f32_16x16x32_bf16 v[{d}:{d+3}], v[{r}:{r+3}], a[{w}:{w+3}], {c}")
    a.I(f"""s_mul_i32 s8, s7, {48*4096}
    s_lshl_b32 s9, s3, 7
    s_add_u32 s8, s8, s9
    s_add_u32 s8, s8, {ZF}""")
    for tau in range(3):
        o=16+4*tau
        for th in range(2):
            d=ACC+(th*3+tau)*4
            a.I(f"""v_cvt_pk_bf16_f32 v{o+2*th}, v{d}, v{d+1}
            v_cvt_pk_bf16_f32 v{o+2*th+1}, v{d+2}, v{d+3}""")
        a.I(f"buffer_store_dwordx4 v[{o}:{o+3}], v7, s[20:23], s8 offen sc1")
        if tau<2: a.I(f"s_add_u32 s8, s8, {16*4096}")
    a.I(f"""s_barrier
    s_add_u32 s3, s3, {ND}
    s_cmp_lt_u32 s3, 64
    s_cbranch_scc1 {P}D_loop
    s_waitcnt vmcnt(0)
    s_barrier
    s_cmp_lg_u32 s5, 0
    s_cbranch_scc1 {P}D_n
    s_lshl_b32 s6, s44, 2
    s_add_u32 s6, s6, {FLAGS+DFLAG}""")
    post_flag(a,6,8)
    a.L(P+"D_n")
    rt(a,5,8)
    a.I(f"""s_cmp_eq_u32 s95, 1
    s_cbranch_scc1 {P}D_e""")
    next_layer(a)
    a.I(f"""s_mov_b32 s3, s40
    s_branch {P}D_loop""")
    a.L(P+"D_e")
    a.I(f"""s_add_u32 s44, s44, {3*(NFIN+NE)}
    s_mov_b32 s42, {NE+ND}
    s_branch {P}E_go""")

def role_e(a, P):
    a.L(P+"Efin")
    a.I(f"""s_cmp_ge_u32 s4, {3*NFIN}
    s_cbranch_scc1 {P}end
    s_load_dwordx2 s[16:17], s[0:1], {KA['ws']}
    s_waitcnt vmcnt(0) lgkmcnt(0)
    s_barrier""")
    srd(a,84,16,WS_SIZE)
    a.I(f"""s_add_u32 s20, s84, {LOFF}
    s_addc_u32 s21, s85, 0
    s_mov_b32 s22, {WS_SIZE-LOFF}
    s_mov_b32 s95, 1
    s_mov_b32 s44, s4
    s_mov_b32 s42, 64
    s_branch {P}E_go""")
    a.L(P+"E")
    a.I(f"""s_sub_u32 s44, s44, {3*ND}
    s_mov_b32 s42, {NE}""")
    a.L(P+"E_go")
    lane(a,0)
    sdiv(a,3,44,3)
    a.I(f"""s_mul_i32 s43, s3, 3
    s_sub_u32 s43, s44, s43              ; cg
    s_mov_b32 s40, s3
    v_lshlrev_b32 v6, 4, v0
    v_lshrrev_b32 v2, 3, v0
    v_lshlrev_b32 v2, 13, v2
    v_and_b32 v3, 7, v0
    v_lshl_add_u32 v2, v3, 4, v2
    v_and_b32 v3, 3, v0
    v_lshrrev_b32 v4, 4, v0
    v_bfe_u32 v5, v0, 2, 2
    v_lshl_add_u32 v5, v4, 3, v5
    v_lshlrev_b32 v5, 6, v5
    v_lshl_add_u32 v5, v3, 3, v5
    v_and_b32 v7, 15, v0
    v_mul_u32_u24 v7, 1152, v7
    v_mul_u32_u24 v8, 24, v4
    v_add_u32 v7, v7, v8""")
    wait_dbg(a,DB_TAB,NOTH,8)
    a.I(f"""s_lshl_b32 s7, s43, 2
    s_add_u32 s7, s7, s5
    s_mul_i32 s10, s7, {54*1024}
    s_add_u32 s10, s10, {FINV}""")
    load_54(a,6,84,10)
    a.L(P+"E_layer")
    a.I(f"""s_load_dwordx2 s[18:19], s[0:1], {KA['out']}
    s_add_u32 s16, s84, {LOFF+XIN}
    s_addc_u32 s17, s85, 0
    s_waitcnt lgkmcnt(0)
    s_cmp_eq_u32 s95, 0
    s_cselect_b32 s18, s16, s18
    s_cselect_b32 s19, s17, s19""")
    srd(a,80,18,XBYTES)
    rt(a,9,8)
    a.I(f"s_mov_b32 s6, {FLAGS+FFLAG}")
    wait_flags(a,6,73,8,6,sleep=1,sh=5)
    rt(a,10,8)
    a.L(P+"E_loop")
    a.I(f"""s_mul_i32 s6, s5, {9*16*4096}
    s_lshl_b32 s9, s3, 7
    s_add_u32 s6, s6, s9
    s_add_u32 s6, s6, {ZO}
    s_mul_i32 s9, s5, 9216""")
    for j in range(9):
        a.I(f"""s_mov_b32 m0, s9
        buffer_load_dwordx4 v2, s[20:23], s6 offen sc1 lds""")
        if j<8: a.I(f"s_add_u32 s6, s6, {16*4096}\ns_add_u32 s9, s9, 1024")
    a.I(f"""s_mul_i32 s10, s3, {32*1152}
    s_mul_i32 s11, s7, 96
    s_add_u32 s10, s10, s11
    s_add_u32 s11, s10, {16*1152}
    s_add_u32 s12, s10, {XA}
    s_add_u32 s13, s11, {XA}""")
    for th in range(2):
        a.I(f"""buffer_load_dwordx4 v[{48+6*th}:{51+6*th}], v7, s[20:23], s{12+th} offen sc1
        buffer_load_dwordx2 v[{52+6*th}:{53+6*th}], v7, s[20:23], s{12+th} offen offset:16 sc1""")
    a.I("s_waitcnt vmcnt(4)\ns_barrier")
    ACC=64; FR=16
    def rd(ks):
        for th in range(2):
            r=FR+((ks%4)*2+th)*4
            for rho in range(2):
                a.I(f"ds_read_b64_tr_b16 v[{r+2*rho}:{r+2*rho+1}], v5 offset:{ks*2048+rho*256+th*32}")
    for ks in range(3): rd(ks)
    for ks in range(18):
        if ks+3<18: rd(ks+3)
        a.I(f"s_waitcnt lgkmcnt({min(3,17-ks)*4})")
        for th in range(2):
            for tau in range(3):
                d=ACC+(th*3+tau)*4; r=FR+((ks%4)*2+th)*4; w=(ks*3+tau)*4
                c="0" if ks==0 else f"v[{d}:{d+3}]"
                a.I(f"v_mfma_f32_16x16x32_bf16 v[{d}:{d+3}], a[{w}:{w+3}], v[{r}:{r+3}], {c}")
    a.I("s_waitcnt vmcnt(0)")
    for th in range(2):
        for p in range(6):
            x=48+6*th+p; d=ACC+th*12+2*p
            a.I(f"""v_lshlrev_b32 v10, 16, v{x}
            v_and_b32 v11, 0xffff0000, v{x}
            v_pk_add_f32 v[10:11], v[10:11], v[{d}:{d+1}]
            v_cvt_pk_bf16_f32 v{x}, v10, v11""")
        a.I(f"""buffer_store_dwordx4 v[{48+6*th}:{51+6*th}], v7, s[80:83], s{10+th} offen sc1
        buffer_store_dwordx2 v[{52+6*th}:{53+6*th}], v7, s[80:83], s{10+th} offen offset:16 sc1""")
    a.I(f"""s_waitcnt vmcnt(0)
    s_barrier
    s_or_b32 s9, s5, s95
    s_cmp_lg_u32 s9, 0
    s_cbranch_scc1 {P}E_n
    s_lshl_b32 s6, s3, 4
    s_lshl_b32 s9, s43, 2
    s_add_u32 s6, s6, s9
    s_add_u32 s6, s6, {LOFF+FLAGS+EFLAG}""")
    post_flag(a,6,10)
    a.L(P+"E_n")
    if RT:
        a.I(f"s_cmp_lg_u32 s3, s40\ns_cbranch_scc1 {P}E_n2"); rt(a,11,8); a.L(P+"E_n2")
    rt(a,12,8)
    a.I(f"""s_add_u32 s3, s3, s42
    s_cmp_lt_u32 s3, 64
    s_cbranch_scc1 {P}E_loop
    s_cmp_eq_u32 s95, 1
    s_cbranch_scc1 {P}end""")
    next_layer(a)
    a.I(f"""s_add_u32 s3, s40, {NFIN}
    s_mov_b32 s42, {NE+ND}
    s_branch {P}E_layer""")

def block_l5(a, P):
    name=P+"L5"; E=name+"_end"
    ACC=64; PRE=128; PIM=144; PNG=160; TW=176; W=0; T=40
    C32=0; S32=8; NS32=16; C64=24; S64=56
    a.L(name)
    lane(a,0)
    a.I(f"""s_lshl_b32 s2, s40, 2
    s_add_u32 s2, s2, s5
    s_waitcnt vmcnt(0) lgkmcnt(0)
    s_barrier
    s_cmp_ge_u32 s2, 289
    s_cbranch_scc1 {E}2
    s_lshl_b32 s10, s5, 13
    v_lshlrev_b32 v32, 4, v0
    v_lshrrev_b32 v33, 5, v0
    v_bfe_u32 v34, v0, 2, 2
    v_lshl_add_u32 v33, v33, 2, v34
    v_lshlrev_b32 v33, 8, v33
    v_and_b32 v34, 1, v0
    v_lshl_add_u32 v33, v34, 7, v33
    v_bfe_u32 v34, v0, 4, 1
    v_lshl_add_u32 v33, v34, 4, v33
    v_bfe_u32 v34, v0, 1, 1
    v_lshl_add_u32 v33, v34, 3, v33
    s_mov_b32 s14, -1
    s_cmp_eq_u32 s2, 0
    s_cselect_b32 s6, 1, 0
    s_cselect_b32 s14, 0x0f0f0f0f, s14
    s_cmp_eq_u32 s2, 288
    s_cselect_b32 s6, 1, s6
    s_cselect_b32 s14, 0xf0f0f0f0, s14
    s_cselect_b32 s12, 0, s2
    s_cselect_b32 s13, 64, 0
    s_mov_b32 s15, s14
    s_lshl_b32 s12, s12, 13
    s_add_u32 s11, s10, s13
    v_add_u32 v33, s11, v33
    v_and_b32 v35, 31, v0
    v_lshlrev_b32 v35, 8, v35
    v_lshrrev_b32 v34, 5, v0
    v_lshl_add_u32 v35, v34, 7, v35
    v_and_b32 v34, 7, v0
    v_lshl_add_u32 v35, v34, 4, v35
    v_xor_b32 v35, s13, v35
    v_add_u32 v35, s10, v35
    v_lshrrev_b32 v34, 4, v0
    v_lshlrev_b32 v34, 4, v34
    v_xor_b32 v36, v32, v34
    v_add_u32 v36, s10, v36
    v_xor_b32 v37, 64, v36""")
    wait_dbg(a,DB_TAB,NOTH,38)
    a.I(f"s_mov_b32 s8, {CST}")
    for f in range(22):
        a.I(f"buffer_load_dwordx4 a[{4*f}:{4*f+3}], v32, s[84:87], s8 offen offset:{(f&3)*1024} sc1")
        if f&3==3: a.I("s_add_u32 s8, s8, 4096")
    a.I(f"s_mov_b32 s8, {TW1}")
    for u in range(16):
        a.I(f"buffer_load_dwordx4 v[{TW+4*u}:{TW+4*u+3}], v32, s[84:87], s8 offen offset:{(u&3)*1024} sc1")
        if u&3==3: a.I("s_add_u32 s8, s8, 4096")
    for u in range(16):
        a.I(f"buffer_load_dwordx4 a[{96+4*u}:{99+4*u}], v32, s[84:87], s8 offen offset:{(u&3)*1024} sc1")
        if u&3==3: a.I("s_add_u32 s8, s8, 4096")
    a.I(f"""s_lshl_b32 s8, s2, 13
    s_add_u32 s8, s8, {WFI}""")
    for q in range(8):
        a.I(f"buffer_load_dwordx4 v[{W+4*q}:{W+4*q+3}], v32, s[84:87], s8 offen offset:{(q&3)*1024} sc1")
        if q==3: a.I("s_add_u32 s8, s8, 4096")
    rt(a,6,38)
    a.I(f"s_mov_b32 s7, {FLAGS+DFLAG}")
    wait_flags(a,7,3*ND,38,32,sleep=1)
    rt(a,7,38)
    a.I(f"""s_add_u32 s7, s12, {ZF}
    s_mov_b32 m0, s10
    s_nop 0""")
    for j in range(4): a.I(f"buffer_load_dwordx4 v32, s[20:23], s7 offen offset:{1024*j} sc1 lds")
    a.I(f"""s_add_u32 s7, s7, 4096
    s_add_u32 m0, s10, 4096
    s_nop 0""")
    for j in range(4): a.I(f"buffer_load_dwordx4 v32, s[20:23], s7 offen offset:{1024*j} sc1 lds")
    a.I("s_waitcnt vmcnt(0)")
    XA_=128
    for pl in range(2):
        for th in range(2):
            for kp in range(2):
                r=XA_+((pl*2+th)*2+kp)*4
                for rho in range(2):
                    a.I(f"ds_read_b64_tr_b16 v[{r+2*rho}:{r+2*rho+1}], v33 offset:{pl*64+kp*4096+rho*2048+th*32}")
    a.I(f"""s_waitcnt lgkmcnt(0)
    s_cmp_eq_u32 s6, 0
    s_cbranch_scc1 {name}_c""")
    for i in range(16): a.I(f"v_mov_b32 v{XA_+16+i}, 0")
    a.I("s_nop 1")
    a.L(name+"_c")
    def mm(d, A, B, first):
        c="0" if first else f"v[{d}:{d+15}]"
        a.I(f"v_mfma_f32_32x32x16_bf16 v[{d}:{d+15}], {A}, {B}, {c}")
    RE=lambda t: ACC+16*t
    IM=lambda t: ACC+32+16*t
    xa=lambda pl,th,kp: vr(XA_+((pl*2+th)*2+kp)*4,4)
    for th in range(2):
        for kp in range(2):
            mm(RE(th), xa(0,th,kp), ar(C32+4*kp,4), kp==0)
            mm(IM(th), xa(1,th,kp), ar(C32+4*kp,4), kp==0)
        for kp in range(2):
            mm(RE(th), xa(1,th,kp), ar(S32+4*kp,4), False)
            mm(IM(th), xa(0,th,kp), ar(NS32+4*kp,4), False)
    def cmul(re, im, c, s, sign, i, outs):
        t=T+4*(i&1)
        n1="" if sign>0 else " neg_lo:[1,0,0] neg_hi:[1,0,0]"
        n2=" neg_lo:[1,0,0] neg_hi:[1,0,0]" if sign>0 else ""
        a.I(f"""v_pk_mul_f32 v[{t}:{t+1}], v[{re}:{re+1}], v[{c}:{c+1}]
        v_pk_mul_f32 v[{t+2}:{t+3}], v[{im}:{im+1}], v[{c}:{c+1}]
        v_pk_fma_f32 v[{t}:{t+1}], v[{im}:{im+1}], v[{s}:{s+1}], v[{t}:{t+1}]{n1}
        v_pk_fma_f32 v[{t+2}:{t+3}], v[{re}:{re+1}], v[{s}:{s+1}], v[{t+2}:{t+3}]{n2}""")
        for dst,which,neg in outs:
            b=t+2*which; m="-" if neg else ""
            a.I(f"v_cvt_pk_bf16_f32 v{dst}, {m}v{b}, {m}v{b+1}")
    for th in range(2):
        for p in range(8):
            u=8*th+p
            cmul(RE(th)+2*p, IM(th)+2*p, TW+4*u, TW+4*u+2, +1, u, [(PRE+u,0,False),(PIM+u,1,False),(PNG+u,0,True)])
    for ph in range(2):
        for ks in range(4):
            mm(RE(ph), ar(C64+(ph*4+ks)*4,4), vr(PRE+4*ks,4), ks==0)
            mm(IM(ph), ar(C64+(ph*4+ks)*4,4), vr(PIM+4*ks,4), ks==0)
        for ks in range(4):
            mm(RE(ph), ar(S64+(ph*4+ks)*4,4), vr(PIM+4*ks,4), False)
            for i in range(4): a.I(f"v_accvgpr_read_b32 v{TW+(ph*4+ks)*8+i}, a{96+(ph*4+ks)*8+i}")
            mm(IM(ph), ar(S64+(ph*4+ks)*4,4), vr(PNG+4*ks,4), False)
            for i in range(4,8): a.I(f"v_accvgpr_read_b32 v{TW+(ph*4+ks)*8+i}, a{96+(ph*4+ks)*8+i}")
    for ph in range(2):
        for p in range(8):
            u=8*ph+p; w=W+2*u; q=48+4*(u&1)
            a.I(f"""v_lshlrev_b32 v{q}, 16, v{w}
            v_lshlrev_b32 v{q+1}, 16, v{w+1}
            v_and_b32 v{q+2}, 0xffff0000, v{w}
            v_and_b32 v{q+3}, 0xffff0000, v{w+1}""")
            cmul(RE(ph)+2*p, IM(ph)+2*p, q, q+2, -1, u, [(PRE+u,0,False),(PIM+u,1,False),(PNG+u,1,True)])
    for th in range(2):
        for ks in range(4):
            mm(RE(th), vr(PRE+4*ks,4), ar(C64+(th*4+ks)*4,4), ks==0)
            mm(IM(th), vr(PIM+4*ks,4), ar(C64+(th*4+ks)*4,4), ks==0)
        for ks in range(4):
            mm(RE(th), vr(PNG+4*ks,4), ar(S64+(th*4+ks)*4,4), False)
            mm(IM(th), vr(PRE+4*ks,4), ar(S64+(th*4+ks)*4,4), False)
    a.I("s_waitcnt vmcnt(0)")
    for th in range(2):
        for p in range(8):
            u=8*th+p
            cmul(RE(th)+2*p, IM(th)+2*p, TW+4*u, TW+4*u+2, -1, u, [(PRE+u,0,False),(PIM+u,1,False)])
    for th in range(2):
        for rho in range(2):
            mm(RE(th), vr(PRE+8*th+4*rho,4), ar(C32+4*rho,4), rho==0)
            mm(IM(th), vr(PIM+8*th+4*rho,4), ar(C32+4*rho,4), rho==0)
        for rho in range(2):
            mm(RE(th), vr(PIM+8*th+4*rho,4), ar(NS32+4*rho,4), False)
            mm(IM(th), vr(PRE+8*th+4*rho,4), ar(S32+4*rho,4), False)
    a.I(f"s_add_u32 s12, s12, {ZO}")
    for k in range(8):
        for i in range(4): a.I(f"v_cvt_pk_bf16_f32 v{4*k+i}, v{ACC+8*k+2*i}, v{ACC+8*k+2*i+1}")
        a.I(f"v_xor_b32 v38, {16*k}, v35\nds_write_b128 v38, v[{4*k}:{4*k+3}]")
    for k in range(8): a.I(f"ds_read_b128 v[{4*k}:{4*k+3}], v{36+(k&1)} offset:{1024*k}")
    a.I("s_mov_b64 exec, s[14:15]")
    for k in range(8):
        a.I(f"s_waitcnt lgkmcnt({7-k})\nbuffer_store_dwordx4 v[{4*k}:{4*k+3}], v32, s[20:23], s12 offen offset:{1024*(k&3)} sc1")
        if k==3: a.I("s_add_u32 s12, s12, 4096")
    a.I("s_mov_b64 exec, -1\ns_waitcnt vmcnt(0)")
    a.L(E+"2")
    a.I(f"""s_barrier
    s_cmp_lg_u32 s5, 0
    s_cbranch_scc1 {E}
    s_lshl_b32 s7, s40, 5
    s_add_u32 s7, s7, {FLAGS+FFLAG}""")
    post_flag(a,7,38)
    a.L(E)
    rt(a,8,38)
    a.I(f"""s_cmp_eq_u32 s95, 1
    s_cbranch_scc1 {P}end""")
    next_layer(a)
    a.I(f"""s_cmp_eq_u32 s41, 0
    s_cbranch_scc1 {P}C
    s_branch {P}L5""")
```

```python
from chaindefs import *
from rawload import *

def chain_setup(a, P, dbg=False):
    def T(i):
        if dbg: a.I(f"s_memtime s[50:51]\ns_waitcnt lgkmcnt(0)\ns_sub_u32 s{96+i}, s50, s88")
    flg=FLAGS
    a.L(P+"A")
    T(0)
    a.I(f"""v_and_b32 v10, 15, v0
    v_lshrrev_b32 v11, 4, v0
    v_mov_b32 v{IDX}, 0x4444
    v_mov_b32 v12, 0xeeee
    v_and_b32 v13, 2, v0
    v_cmp_eq_u32 vcc, 2, v13
    v_cndmask_b32 v{IDX}, v{IDX}, v12, vcc
    s_lshl_b32 s8, s5, 9
    v_lshl_add_u32 v12, v10, 5, s8
    v_lshl_add_u32 v13, v11, 2, v12
    v_add_u32 v13, {TQ}, v13
    v_lshl_add_u32 v14, v11, 3, v12
    v_add_u32 v14, {TK}, v14
    v_lshl_or_b32 v{PK1}, v14, 16, v13
    v_lshlrev_b32 v13, 7, v11
    v_bfe_u32 v12, v0, 2, 1
    v_lshl_add_u32 v13, v12, 5, v13
    v_bfe_u32 v12, v0, 3, 1
    v_lshl_add_u32 v13, v12, 4, v13
    v_and_b32 v12, 1, v0
    v_lshl_add_u32 v13, v12, 3, v13
    v_add_u32 v13, {TQ}, v13
    v_lshlrev_b32 v14, 8, v11
    v_bfe_u32 v12, v0, 2, 2
    v_lshl_add_u32 v14, v12, 5, v14
    v_and_b32 v12, 3, v0
    v_lshl_add_u32 v14, v12, 3, v14
    v_add_u32 v14, {TK}, v14
    v_lshl_or_b32 v{PK2}, v14, 16, v13
    v_lshrrev_b32 v12, 1, v11
    v_lshlrev_b32 v13, 4, v12
    v_bfe_u32 v12, v0, 1, 2
    v_lshl_add_u32 v13, v12, 2, v13
    v_and_b32 v12, 1, v11
    v_lshl_add_u32 v13, v12, 1, v13
    v_and_b32 v12, 1, v0
    v_add_u32 v13, v13, v12
    v_lshl_add_u32 v13, v13, 4, s8
    v_add_u32 v13, {OL}, v13
    s_lshr_b32 s9, s4, 3
    s_mul_i32 s9, s9, 18
    s_and_b32 s10, s4, 7
    s_add_u32 s9, s9, s10
    s_lshl_b32 s10, s5, 3
    s_add_u32 s9, s9, s10                ; 18*(h>>3)+(h&7)+8w
    s_lshr_b32 s10, s4, 1
    s_mul_i32 s10, s10, 18
    s_and_b32 s11, s4, 1
    s_add_u32 s10, s10, s11
    s_add_u32 s10, s10, 16               ; 18*(h>>1)+16+(h&1)
    s_cmp_lt_u32 s5, 2
    s_cselect_b32 s40, s9, s10           ; u
    s_cselect_b32 s41, 1, 0
    s_cmp_eq_u32 s5, 2
    s_cselect_b32 s9, 1, 0
    s_cmp_lt_u32 s4, 8
    s_cselect_b32 s10, 1, 0
    s_and_b32 s9, s9, s10
    s_or_b32 s41, s41, s9
    s_min_u32 s40, s40, 71""")
    sdiv(a,42,40,18)
    a.I(f"""s_mul_i32 s9, s42, 18
    s_sub_u32 s43, s40, s9               ; lambda
    v_and_b32 v18, 7, v10
    s_cmp_ge_u32 s43, 16
    s_cbranch_scc1 {P}A_u8
    s_lshl_b32 s44, s42, 7
    s_and_b32 s9, s43, 1
    s_lshl_b32 s9, s9, 5
    s_add_u32 s44, s44, s9
    s_lshr_b32 s9, s43, 3
    s_lshl_b32 s9, s9, 6
    s_add_u32 s44, s44, s9
    v_lshl_add_u32 v14, v18, 2, s44
    s_bfe_u32 s9, s43, 0x20001
    v_mov_b32 v15, s9                    ; g_src
    s_branch {P}A_uj""")
    a.L(P+"A_u8")
    a.I(f"""s_lshl_b32 s44, s42, 4
    s_add_u32 s44, s44, 512
    v_and_b32 v12, 3, v10
    v_lshl_add_u32 v14, v12, 2, s44
    s_sub_u32 s9, s43, 16
    s_lshl_b32 s9, s9, 1
    v_lshrrev_b32 v15, 2, v18
    v_add_u32 v15, s9, v15""")
    a.L(P+"A_uj")
    a.I("""v_and_b32 v12, 2, v11
    v_add_u32 v14, v14, v12              ; c = c0 + 2*(g>>1)""")
    a.I(f"""v_lshrrev_b32 v16, 4, v14
    v_lshlrev_b32 v16, 8, v16            ; (c>>4)*256
    v_lshl_add_u32 v16, v15, 6, v16
    v_bfe_u32 v12, v14, 1, 1
    v_lshl_add_u32 v16, v12, 5, v16
    v_and_b32 v12, 1, v11
    v_lshl_add_u32 v16, v12, 4, v16
    v_bfe_u32 v12, v14, 2, 2
    v_lshl_add_u32 v16, v12, 2, v16
    v_lshl_or_b32 v{PK3}, v16, 16, v13
    v_lshrrev_b32 v12, 3, v0
    v_lshlrev_b32 v13, 12, v12
    v_and_b32 v12, 7, v0
    v_lshl_add_u32 v13, v12, 4, v13
    v_lshrrev_b32 v12, 5, v0
    v_lshlrev_b32 v14, 12, v12
    v_and_b32 v12, 31, v0
    v_lshl_add_u32 v14, v12, 2, v14
    v_mov_b32 v{PK4}, v13
    v_mov_b32 v19, v14
    ; Asel -> v[20:23]
    v_mov_b32 v12, 0x3f80
    v_mov_b32 v13, 0x3f800000
    v_and_b32 v14, 4, v10
    v_cmp_eq_u32 vcc, 4, v14
    v_cndmask_b32 v12, v12, v13, vcc
    v_and_b32 v14, 2, v10
    v_cmp_eq_u32 vcc, 0, v14
    v_cndmask_b32 v12, 0, v12, vcc
    v_lshrrev_b32 v13, 3, v10
    v_lshlrev_b32 v13, 1, v13
    v_and_b32 v14, 1, v10
    v_add_u32 v13, v13, v14
    v_cmp_eq_u32 vcc, 0, v13
    v_cndmask_b32 v20, 0, v12, vcc
    v_cmp_eq_u32 vcc, 1, v13
    v_cndmask_b32 v21, 0, v12, vcc
    v_cmp_eq_u32 vcc, 2, v13
    v_cndmask_b32 v22, 0, v12, vcc
    v_cmp_eq_u32 vcc, 3, v13
    v_cndmask_b32 v23, 0, v12, vcc
    v_lshlrev_b32 v{KVR}, 4, v0
    ds_write_b128 v{KVR}, v[20:23] offset:{SPARE}
    s_mul_i32 s9, s5, {WLW}
    s_add_u32 s45, s9, {WLB}
    v_add_u32 v{WL}, s45, v{KVR}
    s_mul_i32 s32, s5, {18*4096}
    s_lshl_b32 s9, s4, 7
    s_add_u32 s32, s32, s9
    s_add_u32 s32, s32, {PART}
    s_add_u32 s11, s32, {8*4096}
    s_add_u32 s12, s32, {16*4096}
    s_lshl_b32 s33, s40, 12
    s_add_u32 s33, s33, {PART}
    s_mov_b32 s35, {SCL}
    s_mov_b32 s48, {SCL}
    s_mov_b32 s49, {SCL}
    s_lshl_b32 s9, s4, 2
    s_add_u32 s9, s9, s5
    s_lshl_b32 s47, s9, 12
    s_add_u32 s47, s47, {WOC}
    s_lshl_b32 s54, s4, 2
    s_add_u32 s54, s54, {HINT}
    s_and_b32 s55, s4, 7
    s_lshl_b32 s55, s55, 8
    s_add_u32 s55, s55, {HINT}""")
    T(1)
    VA,VN,VO,V8,TRV,TRN,TR8,VB,TVL=8,9,12,13,14,15,16,17,18
    a.I(f"""v_lshrrev_b32 v20, 2, v0             ; a
    v_and_b32 v21, 3, v0                 ; piece / c4
    v_and_b32 v22, 3, v20
    v_lshlrev_b32 v22, 4, v22
    v_add_u32 v22, v22, v11              ; 16*(a&3)+(a>>2)
    v_lshlrev_b32 v{VA}, 13, v22
    v_lshl_add_u32 v{VA}, v21, 4, v{VA}
    v_lshlrev_b32 v{VN}, 13, v20
    v_lshl_add_u32 v{VN}, v21, 4, v{VN}""")
    def rowO(dst,x,t):
        a.I(f"""v_bfe_u32 v{t}, v{x}, 3, 1
        v_lshlrev_b32 v{dst}, 2, v{t}
        v_bfe_u32 v{t}, v{x}, 2, 1
        v_lshl_add_u32 v{dst}, v{t}, 1, v{dst}
        v_bfe_u32 v{t}, v{x}, 1, 1
        v_lshl_add_u32 v{dst}, v{t}, 3, v{dst}
        v_and_b32 v{t}, 1, v{x}
        v_add_u32 v{dst}, v{dst}, v{t}""")
    rowO(22,20,23)
    a.I(f"""v_mul_u32_u24 v{VO}, 1152, v22
    v_lshl_add_u32 v{VO}, v21, 4, v{VO}
    v_lshrrev_b32 v24, 1, v0""")
    rowO(22,24,23)
    a.I(f"""v_lshrrev_b32 v23, 5, v0
    v_lshl_add_u32 v22, v23, 4, v22
    v_mul_u32_u24 v{V8}, 1152, v22
    v_and_b32 v23, 1, v0
    v_lshl_add_u32 v{V8}, v23, 4, v{V8}
    ; 8gb+r
    v_and_b32 v22, 3, v20
    v_lshl_add_u32 v22, v11, 3, v22
    s_lshl_b32 s9, s5, 12
    s_add_u32 s9, s9, {KVL}
    v_lshlrev_b32 v23, 6, v22
    v_lshl_add_u32 v24, v21, 4, v23
    v_add_u32 v{TRV}, s9, v24
    v_add_u32 v{TVL}, s45, v24
    v_lshl_add_u32 v24, v21, 3, v23
    v_add_u32 v{TRN}, s9, v24
    v_lshlrev_b32 v23, 5, v22
    v_lshl_add_u32 v24, v21, 3, v23
    v_add_u32 v{TR8}, s9, v24
    v_add_u32 v{VB}, s9, v{KVR}
    s_lshl_b32 s30, s4, 8
    s_lshl_b32 s9, s5, 6
    s_add_u32 s30, s30, s9               ; h*256 + w*64
    s_mul_i32 s31, s4, 147456
    s_lshl_b32 s9, s5, 5
    s_add_u32 s36, s31, s9
    s_lshl_b32 s9, s5, 8
    s_add_u32 s31, s31, s9""")
    chunks=[]
    TMP=[('v',24),('v',32)]
    def off(rt,k): return (rt[0],rt[1]+k)
    for j in range(9):
        for mat in range(3):
            k=KAP[j]; u=[('p',j,2*mat),('p',j,2*mat+1)]
            c=dict(srd=SQ+4*mat, voff=[VA if k<8 else VN]*4, soff=[(30,(64*k+(4*i if k<8 else 16*i))*8192) for i in range(4)])
            if u[1] in LDSU:
                s1=LDSU.index(u[1])+1
                dst=[TMP[0] if u[0] in LDSU else regof(u[0]), TMP[1]]
                base=(s1-1)*2048
                c.update(grp=None, m0=(45,base), rd=[(off(dst[t],4*hb+2*rho),TVL,base+hb*2048+rho*256+t*8) for t in range(2) for hb in range(2) for rho in range(2)])
                c['wb']=[(off(dst[t],4*hb),WL,base+t*2048+hb*1024) for t in range(2) for hb in range(2) if u[t] in LDSU]
            else:
                dst=[regof(u[0]),regof(u[1])]
                c.update(grp=[off(dst[i>>1],4*(i&1)) for i in range(4)], rd=[(off(dst[t],4*hb+2*rho),TRV,hb*2048+rho*256+t*8) for t in range(2) for hb in range(2) for rho in range(2)])
            chunks.append(c)
    dst=[regof(('o',8,0)),regof(('o',8,1))]
    chunks.append(dict(srd=SQ+12, voff=[V8]*4, soff=[(36,32*i*1152+1024) for i in range(4)], grp=[off(dst[i>>1],4*(i&1)) for i in range(4)],
        rd=[(off(dst[kp],4*hb+2*rho),TR8,kp*2048+hb*1024+rho*128) for kp in range(2) for hb in range(2) for rho in range(2)]))
    for tp in range(4):
        for kp in range(2):
            u=[('o',2*tp,kp),('o',2*tp+1,kp)]
            dst=[('v',40),('v',48)] if u[0] in L2U else [regof(u[0]),regof(u[1])]
            chunks.append(dict(srd=SQ+12, voff=[VO]*4, soff=[(31,(64*kp+16*i)*1152+64*tp) for i in range(4)], grp=[off(dst[i>>1],4*(i&1)) for i in range(4)],
                rd=[(off(dst[t],4*hb+2*rho),TRN,hb*2048+rho*256+t*32) for t in range(2) for hb in range(2) for rho in range(2)]))
    rawload(a,chunks,VB,flags=os.environ.get("CFL",""),maxout=int(os.environ.get("CMO",56)))
    T(2)
    a.I(f"v_mov_b32 v{L16}, v{KVR}")
    for i in range(4): a.I(f"buffer_store_dwordx4 v[{40+4*i}:{43+4*i}], v{L16}, s[20:23], s47 offen offset:{1024*i}")
    wait_dbg(a,DB_INIT,NOTH,8,sleep=1)
    a.I(f"v_bfe_u32 v8, v{L16}, 2, 5")
    a.L(P+"A_bw")
    a.I(f"""global_load_dword v9, v8, s[28:29] sc1
    s_waitcnt vmcnt(0)
    v_readlane_b32 s9, v9, 0
    s_mov_b32 s10, 0
    s_cmp_ge_u32 s9, 32
    s_cbranch_scc1 {P}A_bd
    s_mov_b32 s10, 1""")
    for x in range(1,8): a.I(f"v_readlane_b32 s8, v9, {x}\ns_add_u32 s9, s9, s8")
    a.I(f"""s_cmp_ge_u32 s9, 256
    s_cbranch_scc1 {P}A_bd""")
    spin_tail(a,P+"A_bw",None,sleep=1)
    a.L(P+"A_bd")
    T(3)
    a.I(f"""s_mov_b32 s6, 0
    s_mov_b32 s36, 63
    s_mov_b32 s14, {MEMB}
    s_mov_b32 s44, 0
    s_lshl_b32 s46, s5, 11
    s_lshr_b32 s52, s5, 1
    s_lshl_b32 s52, s52, 12
    s_add_u32 s58, s52, 2048
    s_cmp_eq_u32 s5, 3
    s_cselect_b32 s52, 8192, s52
    s_cselect_b32 s58, 8192, s58
    s_cmp_eq_u32 s5, 1
    s_cselect_b32 s40, 1, 0
    s_cmp_eq_u32 s41, 0
    s_cselect_b32 s40, 2, s40""")
    a.L(P+"A_layer")
    a.I(f"""s_lshl_b32 s37, s4, 13
    s_add_u32 s37, s37, {flg}
    s_add_u32 s37, s37, s44
    s_lshl_b32 s38, s4, 21
    s_add_u32 s38, s38, s44
    s_lshl_b32 s9, s5, 10
    s_add_u32 s57, s38, s9
    s_add_u32 s57, s57, {KVM-4096}
    s_add_u32 s38, s38, s46
    s_add_u32 s39, s46, {KVL}
    v_add_u32 v{KVR}, {KVL}, v{L16}
    s_waitcnt vmcnt(0) lgkmcnt(0)
    s_barrier""")
    rt(a,1,9)
    a.L(P+"A_f0")
    a.I(f"""buffer_load_dword v9, off, s[20:23], s37 sc1
    s_waitcnt vmcnt(0)
    v_readfirstlane_b32 s9, v9
    s_cmp_eq_u32 s9, 1
    s_cbranch_scc1 {P}A_f0d""")
    spin_tail(a,P+"A_f0",None,sleep=1)
    a.L(P+"A_f0d")
    T(4)
    rt(a,2,9)
    a.I("s_mov_b32 m0, s39\ns_nop 0")
    for j in range(2): a.I(f"buffer_load_dwordx4 v{L16}, s[20:23], s38 offen offset:{1024*j} sc1 lds")
    a.I(f"""s_add_u32 s37, s37, 128
    s_xor_b32 s39, s39, 8192
    s_add_u32 s53, s38, 8192
    s_add_u32 s38, s38, 16384
    s_mov_b32 s56, 0
    s_mov_b32 s59, {MEMB+4*9216}
    s_add_u32 s34, s46, {MEMB+4*9216+1024}
    s_cmp_eq_u32 s10, 0
    s_cbranch_scc0 {P}S_entry
    s_branch {P}F_entry""")

from chainloop import chain_loop

def gen_mega(a, name, dbg=False):
    P="M_"
    kernel_begin(a,name)
    a.I(f"""s_cmp_ge_u32 s2, 256
    s_cbranch_scc1 {P}end
    s_load_dwordx2 s[16:17], s[0:1], {KA['ws']}
    s_load_dwordx2 s[28:29], s[0:1], {KA['dbg']}
    s_load_dwordx2 s[18:19], s[0:1], {KA['x']}
    s_getreg_b32 s3, hwreg(HW_REG_XCC_ID, 0, 4)
    v_lshrrev_b32 v1, 6, v0
    v_and_b32 v0, 63, v0
    v_readfirstlane_b32 s5, v1
    s_mov_b32 s94, {BUDGET}
    s_mov_b32 s90, 0
    s_mov_b32 s91, 0
    s_mov_b32 s92, 0
    s_mov_b32 s93, 0""")
    if dbg: a.I("s_memtime s[88:89]")
    a.I("s_waitcnt lgkmcnt(0)")
    srd(a,20,16,WS_SIZE)
    srd(a,84,16,WS_SIZE)
    a.I("s_mov_b32 s95, 0")
    srd(a,24,18,XBYTES)
    weight_srds(a)
    def prefetch():
        a.I(f"""s_lshl_b32 s8, s2, 2
        s_add_u32 s8, s8, s5
        s_lshl_b32 s8, s8, 10
        v_lshlrev_b32 v1, 4, v0""")
        n=0
        for t in range(5):
            for m in range(4):
                a.I(f"buffer_load_dwordx4 v[64:67], v1, s[{SQ+4*m}:{SQ+4*m+3}], s8 offen ; nowarn"); n+=1
            a.I(f"s_add_u32 s8, s8, {1024*1024}")
    a.I(f"""v_mov_b32 v4, {SPARE}
    s_cmp_lg_u32 s5, 0
    s_cbranch_scc1 {P}el_pf
    s_and_b32 s3, s3, 7
    s_lshl_b32 s6, s3, 2
    v_mov_b32 v2, s6
    v_mov_b32 v3, 1
    s_mov_b64 exec, 1
    global_atomic_add v5, v2, v3, s[28:29] sc0
    s_mov_b64 exec, -1""")
    prefetch()
    a.I(f"""s_waitcnt vmcnt(20)
    v_readfirstlane_b32 s7, v5
    s_lshl_b32 s4, s3, 5
    s_add_u32 s4, s4, s7
    s_cmp_lt_u32 s7, 32
    s_cbranch_scc1 {P}el_pub
    v_mov_b32 v2, 32
    s_mov_b64 exec, 1
    global_atomic_add v5, v2, v3, s[28:29] sc0
    s_waitcnt vmcnt(0)
    s_mov_b64 exec, -1
    v_readfirstlane_b32 s7, v5
    v_and_b32 v2, 7, v0
    v_lshlrev_b32 v2, 2, v2""")
    a.L(P+"el_w")
    a.I(f"""global_load_dword v5, v2, s[28:29] sc1
    s_waitcnt vmcnt(0)
    s_mov_b32 s8, 0""")
    for x in range(8):
        a.I(f"v_readlane_b32 s{40+x}, v5, {x}\ns_add_u32 s8, s8, s{40+x}")
    a.I(f"""s_cmp_ge_u32 s8, 256
    s_cbranch_scc1 {P}el_s""")
    spin_tail(a,P+"el_w",None,sleep=2)
    a.L(P+"el_s")
    a.I("s_mov_b32 s4, 255")
    for x in range(8):
        a.I(f"""s_min_u32 s9, s{40+x}, 32
        s_sub_u32 s10, 32, s9
        s_add_u32 s11, s9, s7
        s_add_u32 s11, s11, {32*x}
        s_cmp_lt_u32 s7, s10
        s_cselect_b32 s4, s11, s4
        s_cselect_b32 s7, 0x10000, s7
        s_sub_u32 s7, s7, s10""")
    a.L(P+"el_pub")
    a.I(f"""v_mov_b32 v5, s4
    ds_write_b32 v4, v5
    s_waitcnt lgkmcnt(0)
    s_branch {P}el_done""")
    a.L(P+"el_pf")
    prefetch()
    a.L(P+"el_done")
    a.I(f"""s_barrier
    ds_read_b32 v5, v4
    s_waitcnt lgkmcnt(0)
    v_readfirstlane_b32 s4, v5
    s_barrier""")
    rt(a,0,5)
    a.I(f"""s_cmp_lt_u32 s4, 32
    s_cbranch_scc1 {P}A
    s_cmp_lt_u32 s4, 160
    s_cbranch_scc1 {P}B""")
    a.I(f"""s_sub_u32 s44, s4, 208
    s_cmp_ge_u32 s4, 224
    s_cbranch_scc1 {P}O
    s_and_b32 s8, s4, 31
    s_cmp_lt_u32 s8, 24
    s_cbranch_scc1 {P}C
    s_sub_u32 s44, s8, 24
    s_cmp_ge_u32 s4, 192
    s_cselect_b32 s9, 8, 0
    s_add_u32 s44, s44, s9
    s_branch {P}O""")
    a.L(P+"end")
    a.I("s_endpgm")
    import prep, bstage
    chain_setup(a,P,dbg)
    chain_loop(a,P+"F","",dbg)
    chain_loop(a,P+"S","sc1",False)
    role_b(a,P)
    role_c(a,P)
    prep.others(a,P)
    bstage.role_d(a,P)
    bstage.role_e(a,P)
    bstage.block_l5(a,P)
    return (name, f"; @launch grid=(256,1,1) block=(256,1,1) lds={LDS_LA}", kernel_desc(name, 512, 102, accum=256))
```

```python
from chaindefs import *
import os
G=lambda n,d: int(os.environ.get(n,d))
D_LATE=G("DLATE",18)
D_E0=G("DE0",2)
D_NR=G("DNR",8)
U_LL=G("ULL",2)
U_LC=G("ULC",18)
HCHK=G("HCHK",11)
HPOLL=[int(x) for x in os.environ.get("HPOLL","0,1,2,3,6,8,10").split(",")]
U_R=G("UR",7)
UBB=G("UBB",7)
HINT_ON=G("HINT",0)
SBD=G("SBD",2)
G2=G("G2",1)
R2=G("R2",1)
D_E1=G("DE1",3)
D_G=G("DG",6)

def chain_loop(a, P, st, dbg):
    def E(i):
        if dbg and 100 in dbg: a.I(f"s_memtime s[{60+2*i}:{61+2*i}]")
    cnt=lambda r: a.I(f"s_add_u32 s{r}, s{r}, 1") if dbg else None
    q=LQ(a)
    BUF=[1,0,1,0,1,0,1,0]+[(j+1)%3 if False else None for j in range(8,NL)]
    BUF=[1,0,1,0,1,2,0,1,2,0,1,2,0,1,2]
    BUF=[j%3 for j in range(NL)]
    NXT={}
    for j in range(NL):
        n=[k for k in range(j+1,NL) if BUF[k]==BUF[j]]
        if n: NXT[j]=n[0]
    def stg_read(j):
        b=STG+8*BUF[j]
        q.op(f"ds_read_b128 v[{b}:{b+3}], v{WL} offset:{(j+1)*2048}",('w',j))
        q.op(f"ds_read_b128 v[{b+4}:{b+7}], v{WL} offset:{(j+1)*2048+1024}",('w',j))
    def z2(r): return f"v_mov_b64 v[{r}:{r+1}], 0"
    def pace(n,r):
        for i in range(n): a.I(f"v_mov_b32 v{r}, 0\ns_nop 2" if not os.environ.get("NOPACE") else "s_nop 3")
    PB=W(3); LP=W(1)
    out=[]
    a.L(P+"_entry")
    if dbg:
        a.I("s_memtime s[18:19]\ns_waitcnt lgkmcnt(0)\ns_mov_b32 s69, s18")
        if 100 not in dbg:
            for i in range(12): a.I(f"s_mov_b32 s{70+i}, 0")
    a.I(f"""s_lshl_b32 s42, s5, 1
    s_lshl_b32 s42, 3, s42
    s_mov_b32 s43, 0
    s_branch {P}_ent""")
    a.L(P+"_top")
    E(14)
    a.I("s_barrier")
    E(0)
    q=LQ(a)
    accof=lambda nm: AQ+4*nm
    KX={0:STG+0, 1:STG+8, 2:STG+12, 3:STG+16, 4:STG+20}
    SM=STG+4
    def kx_read(f,dst): q.op(f"ds_read_b128 v[{dst}:{dst+3}], v{KVR} offset:{f*1024}",('kx',f))
    def a_read(j): q.op(f"ds_read_b128 {vr(W(j%4),4)}, v{L16} offset:{MEML+1024*KAP[j]}",('a',j))
    vm=[]
    def vop(t,tag): a.I(t); vm.append(tag)
    def vwait(tag):
        idx=max(i for i,t in enumerate(vm) if t==tag)
        a.I(f"s_waitcnt vmcnt({len(vm)-1-idx})")
    late=f"buffer_load_dwordx4 v{L16}, s[20:23], s34 offen sc1 lds"
    rback=f"ds_read_b128 {vr(LP,4)}, v{PK4} offset:{MEML+1024}"
    def chk3():
        a.I(f"s_or_b64 vcc, vcc, s[8:9]\ns_cbranch_scc1 {P}_lr")
        a.L(f"{P}_ld")
        def ool():
            r=LP
            a.L(f"{P}_lr")
            a.I(f"""v_cmp_eq_u32 vcc, -1, v{r}
            v_cmp_eq_u32 s[8:9], -1, v{r+1}
            s_or_b64 vcc, vcc, s[8:9]
            v_cmp_eq_u32 s[8:9], -1, v{r+2}
            s_or_b64 vcc, vcc, s[8:9]
            v_cmp_eq_u32 s[8:9], -1, v{r+3}
            s_or_b64 vcc, vcc, s[8:9]
            s_cbranch_scc0 {P}_ld""")
            cnt(90)
            a.I(f"""s_sub_u32 s94, s94, 1
            s_cbranch_scc1 {P}_lx
            s_add_u32 m0, s46, {MEML+1024}
            s_nop 0
            {late}
            s_waitcnt vmcnt(0)
            {rback}
            s_waitcnt lgkmcnt(0)
            s_branch {P}_lr""")
            a.L(f"{P}_lx")
            a.I(f"s_mov_b32 s94, 0\ns_branch {P}_ld")
        out.append(ool)
    c=U_LC; r=U_R
    T_=[]
    def task(name,kind,cost,e,d,fn,after=()):
        T_.append(dict(name=name,kind=kind,cost=cost,e=e,d=d,fn=(fn if callable(fn) else (lambda t=fn: a.I(t))),after=list(after)))
    def half(j,h):
        b=STG+8*BUF[j]+4*h
        q.op(f"ds_read_b128 v[{b}:{b+3}], v{WL} offset:{(j+1)*2048+1024*h}",('w',j))
    PRV={v:k for k,v in NXT.items()}
    task('gw','s',4,4,5,lambda: a.I(f"s_waitcnt vmcnt({len(vm)})"))
    for j in range(1,NL):
        e=LIDX[PRV[j]] if j in PRV else 0
        af=['gw'] if j==2 else []
        task(f'w{j}a','ds',6,e,LIDX[j]-7,(lambda j=j: half(j,0)),af)
        task(f'w{j}b','ds',6,e,LIDX[j]-6,(lambda j=j: half(j,1)),[f'w{j}a'])
    task('late','vm',12,U_LL,U_LL,lambda: vop(late,'late'))
    task('m0v','s',4,U_LL+1,r-1,"s_mov_b32 m0, s45",['late'])
    task('V0','vm',12,r,r+1,lambda: vop(f"buffer_load_dwordx4 v{L16}, s[20:23], s53 offen sc1 lds",'V'),['m0v'])
    task('V1','vm',12,r+2,r+3,lambda: vop(f"buffer_load_dwordx4 v{L16}, s[20:23], s53 offen offset:1024 sc1 lds",'V'),['V0'])
    task('pub','vm',12,r+4,r+5,lambda: vop(f"buffer_store_dwordx4 {vr(PB,4)}, v{L16}, s[20:23], s57 offen sc1",'pub'),['V1'])
    task('a3','ds',6,r+5,13,lambda: a_read(3),['pub'])
    task('fl','s',12,r+3,r+8,lambda: (a.I(f"s_cmp_eq_u32 s56, 1\ns_cbranch_scc0 {P}_fw"), a.L(P+"_fd")))
    task('m0k','s',4,r+3,r+8,"s_mov_b32 m0, s39",['V1'])
    task('K0','vm',12,r+7,r+9,lambda: vop(f"buffer_load_dwordx4 v{L16}, s[20:23], s38 offen sc1 lds",'K'),['fl','m0k'])
    task('K1','vm',12,r+9,r+12,lambda: vop(f"buffer_load_dwordx4 v{L16}, s[20:23], s38 offen offset:1024 sc1 lds",'K'),['K0'])
    task('a4','ds',6,5,16,lambda: a_read(4))
    task('pk4','v',4,2,c-1,f"v_add_u32 v{PK4}, s46, v{L16}")
    task('rb','ds',10,c,c,lambda: (vwait('late'), q.op(rback,'rb')),['pk4'])
    task('rbw','s',4,c+4,c+4,lambda: q.wait('rb'),['rb'])
    task('c1','v',4,c+4,c+4,f"v_cmp_u_f32 vcc, v{LP}, v{LP+1}",['rbw'])
    task('c2','v',4,c+5,c+5,f"v_cmp_u_f32 s[8:9], v{LP+2}, v{LP+3}",['c1'])
    task('c3','s',12,c+7,c+7,lambda: (chk3(), a.I("s_barrier"), a_read(5)),['c2','K1'])
    task('a6','ds',6,c+8,c+8,lambda: a_read(6),['c3'])
    task('a7','ds',6,c+8,c+9,lambda: a_read(7),['a6'])
    task('a8','ds',6,29,30,lambda: a_read(8),['a7'])
    for f,e in ((0,LIDX[12]),(1,LIDX[13]),(2,LIDX[13]),(3,LIDX[14]),(4,LIDX[14])):
        task(f'kx{f}','ds',6,e,45,(lambda f=f: kx_read(f,KX[f])))
    task('sm','v',4,LIDX[12],40,f"v_and_b32 v{SM}, 0xffff, v{PK1}")
    prev='sm'
    for k,t in enumerate((f"v_add_f32 v{AQ}, v{AQ}, v{AQ+2}", f"v_add_f32 v{AQ+1}, v{AQ+1}, v{AQ+3}", f"v_add_f32 v{AQ+4}, v{AQ+4}, v{AQ+6}",
                          f"v_add_f32 v{AQ+5}, v{AQ+5}, v{AQ+7}", f"v_cvt_pk_bf16_f32 v{AQ}, v{AQ}, v{AQ+1}", f"v_cvt_pk_bf16_f32 v{AQ+1}, v{AQ+4}, v{AQ+5}")):
        task(f'q{k}','v',4,40+k,40+k,t,[prev]); prev=f'q{k}'
    q.now=-4
    a_read(0); half(0,0); half(0,1); a_read(1); a_read(2)
    a.I(f"s_add_u32 m0, s46, {MEML+1024}")
    q.wait(('a',0))
    did=set(); over=0
    for i,u in enumerate(U1):
        _,j,nm=u
        q.now=i
        if u in LDSU:
            jj=LDSU.index(u)
            b=STG+8*BUF[jj]; B=f"v[{b}:{b+7}]"
        else: B=rtxt(u)
        a.I(f"v_smfmac_f32_16x16x64_bf16 {vr(accof(nm),4)}, {vr(W(j%4),4)}, {B}, v{IDX}")
        if i==0: E(1)
        if i==29: E(2)
        if i==45: E(3)
        tg=[]
        if i+1<len(U1):
            tg=[('a',U1[i+1][1])]
            if U1[i+1] in LDSU: tg.append(('w',LDSU.index(U1[i+1])))
        used=0
        if tg and q.needs(*tg):
            q.wait(*tg,age=5); used=4
        rdy=lambda t: t['name'] not in did and t['e']<=i and all(x in did for x in t['after'])
        vmust=any(t['kind']=='v' and t['name'] not in did and t['d']<=i for t in T_)
        lim=8 if vmust else 12
        while True:
            cand=sorted([t for t in T_ if rdy(t) and t['kind']!='v'],key=lambda t:t['d'])
            pick=[t for t in cand if t['d']<=i] or [t for t in cand if used+t['cost']<=lim]
            if not pick: break
            t=pick[0]; t['fn'](); did.add(t['name']); used+=t['cost']
        nv=0
        while True:
            cand=sorted([t for t in T_ if rdy(t) and t['kind']=='v'],key=lambda t:t['d'])
            pick=[t for t in cand if t['d']<=i] or ([t for t in cand] if (nv==0 and used<=8) else [])
            if not pick: break
            t=pick[0]; t['fn'](); did.add(t['name']); used=max(used,8)+4; nv+=1
        over+=max(0,used-12)
    assert len(did)==len(T_), [t['name'] for t in T_ if t['name'] not in did]
    if os.environ.get("VERB"): print("P1 overflow estimate", over)
    def dv(i):
        _,j,nm=UD[i]
        a.I(f"v_smfmac_f32_16x16x64_bf16 {vr(accof(nm),4)}, {vr(W(j%4),4)}, {rtxt(UD[i])}, v{IDX}")
    q.op(f"ds_write2_b32 v{SM}, v{AQ}, v{AQ+1} offset0:0 offset1:4",'tq')
    dv(0)
    a.I(f"""    v_lshrrev_b32 v{SM+1}, 16, v{PK1}
    v_add_f32 v{AK}, v{AK}, v{AK+2}
    v_add_f32 v{AK+1}, v{AK+1}, v{AK+3}
    v_cvt_pk_bf16_f32 v{AK}, v{AK}, v{AK+1}
    v_add_f32 v{AK+4}, v{AK+4}, v{AK+6}
    v_add_f32 v{AK+5}, v{AK+5}, v{AK+7}
    v_cvt_pk_bf16_f32 v{AK+1}, v{AK+4}, v{AK+5}""")
    q.op(f"ds_write_b64 v{SM+1}, v[{AK}:{AK+1}]",'tk')
    dv(1)
    a.I(f"v_and_b32 v{SM+2}, 0xffff, v{PK2}")
    dv(2)
    a.I(f"v_lshrrev_b32 v{SM+3}, 16, v{PK2}")
    dv(3)
    a.I(z2(SM))
    q.all()
    E(4)
    a.I("s_barrier\ns_mov_b32 s56, s41")
    E(5)
    QF=AQ; KM0=W(1); KM1=W(2); S1=W(3); S2=W(0)
    def qf(ks):
        for rho in range(2):
            q.op(f"ds_read_b64_tr_b16 v[{QF+4*ks+2*rho}:{QF+4*ks+2*rho+1}], v{SM+2} offset:{ks*512+rho*64}",('qf',ks))
    def km(sg_):
        for rho in range(2):
            d=(KM0,KM1)[sg_]+2*rho
            q.op(f"ds_read_b64_tr_b16 v[{d}:{d+1}], v{SM+3} offset:{sg_*1024+rho*128}",('km',sg_))
    qf(0); qf(1)
    dv(4); qf(2)
    dv(5); qf(3)
    dv(6); km(0)
    dv(7); km(1)
    a.I(z2(SM+2))
    def sx(f):
        tk=f>>2; ks=f&3; Sx=(S1,S2)[tk]
        q.wait(('qf',ks),('kx',f))
        c="0" if ks==0 else vr(Sx,4)
        a.I(f"v_mfma_f32_16x16x32_bf16 {vr(Sx,4)}, {vr(KX[f],4)}, {vr(QF+4*ks,4)}, {c}")
    VF=STG+16; VM=AV; ON=AV+4; T=STG+2
    sx(0); KX[5]=KX[0]; kx_read(5,KX[5])
    sx(1); KX[6]=KX[1]; kx_read(6,KX[6])
    a.I(f"v_add_f32 v{AV}, v{AV}, v{AV+2}")
    sx(2); KX[7]=KX[2]; kx_read(7,KX[7])
    a.I(f"v_add_f32 v{AV+1}, v{AV+1}, v{AV+3}")
    sx(3)
    a.I(f"v_add_f32 v{AV+4}, v{AV+4}, v{AV+6}\nv_add_f32 v{AV+5}, v{AV+5}, v{AV+7}")
    sx(4)
    a.I(f"v_cvt_pk_bf16_f32 v{AV}, v{AV}, v{AV+1}")
    q.wait(('km',1))
    a.I(f"v_smfmac_f32_16x16x64_bf16 {vr(SM,4)}, {vr(KM0,4)}, {vr(QF,8)}, v{IDX}")
    a.I(f"v_cvt_pk_bf16_f32 v{AV+1}, v{AV+4}, v{AV+5}")
    a.I(f"v_smfmac_f32_16x16x64_bf16 {vr(SM,4)}, {vr(KM1,4)}, {vr(QF+8,8)}, v{IDX}")
    sx(5)
    a.I(f"v_max3_f32 v{T}, v{S1}, v{S1+1}, v{S1+2}")
    sx(6)
    a.I(f"""v_add_f32 v{SM}, v{SM}, v{SM+2}
    v_add_f32 v{SM+1}, v{SM+1}, v{SM+3}""")
    sx(7)
    E(6)
    a.I(f"""s_cmp_eq_u32 s6, s36
    v_max3_f32 v{T}, v{T}, v{S1+3}, v{SM}
    v_max_f32 v{T}, v{T}, v{SM+1}
    s_cbranch_scc1 {P}_fin""")
    vop(f"buffer_load_dwordx4 v[{AQ}:{AQ+3}], v{L16}, s[20:23], s47 offen",'l2')
    a.I(f"""v_mov_b32 v{VM+2}, v{VM+1}
    v_mov_b32 v{VM+3}, 0
    {z2(SM+2)}
    v_mov_b32 v{ON}, 0x3f803f80""")
    E(7)
    a.I(f"""v_max3_f32 v{T}, v{T}, v{S2}, v{S2+1}
    v_max3_f32 v{T}, v{T}, v{S2+2}, v{S2+3}
    v_mov_b32 v{T+1}, v{T}""")
    vop(f"buffer_load_dwordx4 v[{AQ+4}:{AQ+7}], v{L16}, s[20:23], s47 offen offset:1024",'l2')
    a.I(f"""v_mov_b32 v{ON+1}, v{ON}
    v_permlane16_swap_b32 v{T}, v{T+1}
    v_max_f32 v{T}, v{T}, v{T+1}
    v_mov_b32 v{T+1}, v{T}""")
    vop(f"buffer_load_dwordx4 v[{AK}:{AK+3}], v{L16}, s[20:23], s47 offen offset:2048",'l2')
    a.I(f"""v_mov_b64 v[{ON+2}:{ON+3}], v[{ON}:{ON+1}]
    v_permlane32_swap_b32 v{T}, v{T+1}
    v_max_f32 v{T}, v{T}, v{T+1}
    v_mul_f32 v{T}, s35, v{T}""")
    for r in (S1,S1+2,S2,S2+2,SM):
        a.I(f"v_pk_fma_f32 v[{r}:{r+1}], v[{r}:{r+1}], s[48:49], v[{T}:{T+1}] op_sel_hi:[1,1,0] neg_lo:[0,0,1] neg_hi:[0,0,1]")
    vwait('V')
    q.op(f"ds_read_b128 v[{VF}:{VF+3}], v{WL}",'vf')
    q.op(f"ds_read_b128 v[{VF+4}:{VF+7}], v{WL} offset:1024",'vf')
    q.op(f"ds_write_b64 v{WL}, v[{VM}:{VM+1}]",'vmw')
    for r in (S1,S1+1,S1+2,S1+3,S2,S2+1,S2+2,S2+3): a.I(f"v_exp_f32 v{r}, v{r}")
    a.I(f"""v_cvt_pk_bf16_f32 v{S1}, v{S1}, v{S1+1}
    v_cvt_pk_bf16_f32 v{S1+1}, v{S1+2}, v{S1+3}
    v_cvt_pk_bf16_f32 v{S1+2}, v{S2}, v{S2+1}
    v_cvt_pk_bf16_f32 v{S1+3}, v{S2+2}, v{S2+3}
    v_exp_f32 v{SM}, v{SM}""")
    q.wait('vf')
    E(8)
    O0=W(1); O1=W(2); SUM=S2; Px=S1
    L2R=[AQ,AK]
    ACC={8:W(0), 0:W(2), 1:STG+4, 2:STG+8, 3:W(3), 4:AV, 5:AV+4, 6:STG+16, 7:STG+20}
    OA=[W(1),STG+0]; AD=STG+12
    a.I(f"""v_mfma_f32_16x16x32_bf16 {vr(O0,4)}, {vr(VF,4)}, {vr(Px,4)}, 0
    v_exp_f32 v{SM+1}, v{SM+1}
    v_mfma_f32_16x16x32_bf16 {vr(O1,4)}, {vr(VF+4,4)}, {vr(Px,4)}, 0
    v_cvt_pk_bf16_f32 v{SM}, v{SM}, v{SM+1}
    v_mov_b32 v{SM+1}, 0
    v_mfma_f32_16x16x32_bf16 {vr(SUM,4)}, {vr(ON,4)}, {vr(Px,4)}, 0""")
    vop(f"buffer_load_dwordx4 v[{AK+4}:{AK+7}], v{L16}, s[20:23], s47 offen offset:3072",'l2')
    a.I(f"""v_and_b32 v{STG}, 0xffff, v{PK3}
    v_mfma_f32_16x16x32_bf16 {vr(SUM,4)}, {vr(ON,4)}, {vr(SM,4)}, {vr(SUM,4)}
    s_and_b32 s7, s6, 1
    s_add_u32 s6, s6, 1
    v_mfma_f32_16x16x32_bf16 {vr(O0,4)}, {vr(VM,4)}, {vr(SM,4)}, {vr(O0,4)}
    {z2(STG+8)}
    {z2(STG+10)}
    v_mfma_f32_16x16x32_bf16 {vr(O1,4)}, {vr(VM+2,4)}, {vr(SM,4)}, {vr(O1,4)}
    {z2(W(3))}
    v_rcp_f32 v{SUM}, v{SUM}
    {z2(W(3)+2)}
    {z2(STG+16)}
    v_mul_f32 v{O0}, v{O0}, v{SUM}
    v_mul_f32 v{O0+1}, v{O0+1}, v{SUM}
    v_mul_f32 v{O0+2}, v{O0+2}, v{SUM}
    v_mul_f32 v{O0+3}, v{O0+3}, v{SUM}
    v_pk_mul_f32 v[{O1}:{O1+1}], v[{O1}:{O1+1}], v[{SUM}:{SUM+1}] op_sel_hi:[1,0]
    v_pk_mul_f32 v[{O1+2}:{O1+3}], v[{O1+2}:{O1+3}], v[{SUM}:{SUM+1}] op_sel_hi:[1,0]
    v_cvt_pk_bf16_f32 v{O0}, v{O0}, v{O0+1}
    v_cvt_pk_bf16_f32 v{O0+1}, v{O0+2}, v{O0+3}
    v_cvt_pk_bf16_f32 v{O0+2}, v{O1}, v{O1+1}
    v_cvt_pk_bf16_f32 v{O0+3}, v{O1+2}, v{O1+3}""")
    q.op(f"ds_write_b128 v{STG}, {vr(O0,4)}",'ow')
    for r in (W(0),W(0)+2,W(2),W(2)+2,STG+4,STG+6,AV,AV+2,AV+4,AV+6): a.I(z2(r))
    a.I(f"""v_bfe_u32 v{AD+1}, v{L16}, 2, 7
    v_lshrrev_b32 v{PK4}, 7, v{L16}
    v_and_b32 v{AD}, 0x70, v{L16}
    v_lshl_add_u32 v{PK4}, v{PK4}, 12, v{AD}""")
    q.all()
    E(9)
    a.I("s_barrier")
    E(10)
    q.op(f"ds_read_b128 {vr(OA[0],4)}, v{L16} offset:{OL}",'oa0')
    q.op(f"ds_read_b128 {vr(OA[1],4)}, v{L16} offset:{OL+1024}",'oa1')
    if HINT_ON:
        a.I("s_mov_b64 exec, s[42:43]")
        vop(f"buffer_store_dword v{AD+3}, v{AD+2}, s[20:23], s54 offen {st}",'hp')
        a.I("s_mov_b64 exec, -1")
    def post(t):
        d=ACC[t]; o=d if t==8 else ACC[(t//4)*4]+(t%4)
        return [f"v_add_f32 v{d}, v{d}, v{d+2}", f"v_add_f32 v{d+1}, v{d+1}, v{d+3}", f"v_cvt_pk_bf16_f32 v{o}, v{d}, v{d+1}"]
    AS=ACC[1]; RD=ACC[2]; C7=AD
    RA=[AQ,AQ+4,AK,AK+4]
    RB=[W(0),W(1),W(2),STG+16]
    def p7_issue(x="",RR=RA):
        for j in range(4):
            a.I(f"buffer_load_dwordx4 {vr(RR[j],4)}, v{L16}, s[20:23], s33 offen offset:{1024*j} sc1{x}")
    a.I(f"{z2(STG+18)}\n{z2(STG+20)}\nv_lshrrev_b32 v{AD+2}, 9, v{L16}")
    for i,u in enumerate(UO):
        _,t,kp=u; n=i>>1
        if i==0: q.wait('oa0')
        if i==1: q.wait('oa1')
        if u==L2U[0]: vwait('l2')
        B=vr(L2R[L2U.index(u)],8) if u in L2U else rtxt(u)
        a.I(f"v_smfmac_f32_16x16x64_bf16 {vr(ACC[t],4)}, {vr(OA[kp],4)}, {B}, v{IDX}")
        if HINT_ON and i in HPOLL: vop(f"buffer_load_dword v{AD}, v{AD+1}, s[20:23], s55 offen sc1 ; nowarn",'poll')
        bk={0:["s_mov_b32 s13, s14","s_and_b32 s14, s6, 3"],1:["s_mul_i32 s14, s14, 9216",f"s_add_u32 s14, s14, {MEMB}"],
            2:["s_mov_b32 s59, s14","s_add_u32 s34, s46, s14"],3:["s_add_u32 s34, s34, 1024","s_add_u32 s37, s37, 128"],
            5:["s_xor_b32 s39, s39, 8192","s_add_u32 s53, s38, 8192"],6:["s_add_u32 s38, s38, 16384","s_add_u32 s57, s57, 4096"]}
        for x in bk.get(i,[]): a.I(x)
        if i==0: E(11); a.I(z2(STG+22))
        if i==1: a.I(f"v_lshl_add_u32 v{AD+2}, v{AD+2}, 12, v{AD+1}")
        if i==2: a.I(f"v_xor_b32 v{KVR}, 8192, v{KVR}")
        if i==9: a.I(f"ds_read_b128 {vr(AS,4)}, v{L16} offset:{SPARE}")
        if i==HCHK+1:
            if HINT_ON: a.I(f"s_cbranch_vccnz {P}_hw")
            a.L(P+"_hd")
        if i==15: a.I("s_cmp_eq_u32 s40, 0")
        if kp==1 and n>=1:
            p=post(TORD[n-1]); a.I(p[0]); a.I(p[1])
        if kp==0 and n>=2:
            a.I(post(TORD[n-2])[2])
            if TORD[n-2] in (8,0,4): a.I(f"v_bfi_b32 v{ACC[TORD[n-2]]}, 1, s7, v{ACC[TORD[n-2]]}")
        if HINT_ON and i==HCHK: a.I(f"v_cmp_ne_u32 vcc, s6, v{AD} ; nowarn")
        if i==4: vop(f"buffer_store_dword v{ACC[8]}, v{AD+2}, s[20:23], s12 offen {st}",'st8')
        if i==12: vop(f"buffer_store_dwordx4 {vr(ACC[0],4)}, v{PK4}, s[20:23], s32 offen {st}",'stA')
    a.I(post(6)[2])
    a.I(f"v_lshrrev_b32 v{AD+2}, 16, v{PK3}\nv_mov_b32 v{AD+3}, -1")
    for x in post(7): a.I(x)
    stB=f"buffer_store_dwordx4 {vr(ACC[4],4)}, v{PK4}, s[20:23], s11 offen {st}"
    E(12)
    def fetch_pub():
        a.I(f"""s_waitcnt lgkmcnt(0)
        v_lshrrev_b32 v{STG}, 16, v{PK1}
        ds_read_b64 v[{PB}:{PB+1}], v{STG}
        ds_read_b64 v[{PB+2}:{PB+3}], v{WL}
        s_load_dword s41, s[16:17], s37 offset:128 glc""")
        for r in range(AV,AV+8,2): a.I(z2(r))
    def zero_qk():
        for r in range(AQ,AQ+16,2): a.I(z2(r))
    def p7_check(base,RR=RA):
        for j in range(4):
            c="0" if j==0 else vr(RD,4); r=RR[j]
            a.I(f"s_waitcnt vmcnt({base+3-j})")
            if j==0: a.I(f"v_xor_b32 v{C7}, s7, v{r} ; nowarn")
            else: a.I(f"v_bitop3_b32 v{C7}, v{C7}, v{r}, s7 bitop3:0xf6 ; nowarn")
            a.I(f"v_mfma_f32_16x16x32_bf16 {vr(RD,4)}, {vr(AS,4)}, {vr(r,4)}, {c} ; nowarn")
        a.I(f"v_and_b32 v{C7}, 1, v{C7}\nv_cmp_ne_u32 vcc, 0, v{C7}")
    def p7_fin():
        a.I(f"""v_add_f32_dpp v{RD}, v{RD}, v{RD} row_ror:8 row_mask:0xf bank_mask:0xf
        v_add_f32_dpp v{RD+1}, v{RD+1}, v{RD+1} row_ror:8 row_mask:0xf bank_mask:0xf
        v_cvt_pk_bf16_f32 v{RD+2}, v{RD}, v{RD+1}
        buffer_store_dword v{RD+2}, v{AD+2}, s[20:23], s59 offen {st}""")
    repo=f"buffer_store_dword v{AD+3}, v{AD+2}, s[20:23], s13 offen {st}"
    def reduce(tag, two, mid, ctr, after=None, xb=1):
        x=1 if after else 0
        p7_issue()
        mid()
        if two: p7_issue("",RB)
        if after: after()
        n=4 if two else 0
        p7_check(n+x)
        a.I(f"s_cbranch_vccnz {P}_rr{tag}")
        a.L(f"{P}_rd{tag}")
        p7_fin()
        def reissue(RR):
            cnt(ctr)
            a.I("s_mov_b64 exec, vcc")
            p7_issue("",RR)
            a.I("s_mov_b64 exec, -1")
        def ool():
            a.L(f"{P}_rr{tag}")
            reissue(RA)
            if two:
                p7_check(n+x*xb,RB)
                a.I(f"s_nop 5\ns_cbranch_vccz {P}_rd{tag}")
                a.L(f"{P}_rl{tag}")
                reissue(RB)
                p7_check(n)
                a.I(f"s_nop 5\ns_cbranch_vccz {P}_rd{tag}")
                reissue(RA)
                p7_check(n,RB)
                a.I(f"""s_nop 5
                s_cbranch_vccz {P}_rd{tag}
                s_sub_u32 s94, s94, 1
                s_cbranch_scc0 {P}_rl{tag}""")
            else:
                p7_check(0)
                a.I(f"""s_nop 5
                s_cbranch_vccz {P}_rd{tag}
                s_sub_u32 s94, s94, 1
                s_cbranch_scc0 {P}_rr{tag}""")
            a.I(f"s_mov_b32 s94, 0\ns_nop 7\ns_branch {P}_rd{tag}")
        out.append(ool)
    a.I(f"s_cbranch_scc0 {P}_ne")
    pace(D_E0,RD)
    if G("SBM",1): reduce("e", R2, lambda: (a.I(stB), fetch_pub(), pace(D_E1,RD)), 92, lambda: None, 0)
    else: reduce("e", R2, lambda: pace(D_E1,RD), 92, lambda: (a.I(stB), fetch_pub()))
    E(13)
    a.I(f"s_barrier\n{repo}\ns_branch {P}_g")
    a.L(P+"_ne")
    pace(D_E0+SBD,RD); a.I(stB)
    fetch_pub()
    pace(D_NR,RD)
    a.I(f"""s_cmp_eq_u32 s40, 1
    s_barrier
    s_cbranch_scc0 {P}_g0""")
    reduce("l", 0, lambda: pace(8,RD), 92)
    E(13)
    a.I(repo)
    zero_qk()
    a.I(f"s_branch {P}_top")
    a.L(P+"_ent")
    fetch_pub()
    a.I(f"""s_cmp_eq_u32 s5, 1
    s_cbranch_scc0 {P}_g""")
    zero_qk()
    a.I(f"s_branch {P}_top")
    a.L(P+"_g0")
    E(13)
    a.L(P+"_g")
    GA=STG+1; GB=STG+2; CK=STG+3
    G0=STG+16; G1=STG+20
    def g_issue(x=""):
        a.I(f"""buffer_load_dwordx4 {vr(G0,4)}, v{GA}, s[20:23], s59 offen sc1{x}
        buffer_load_dwordx4 {vr(G1,4)}, v{GB}, s[20:23], s59 offen sc1{x}""")
    a.I(f"""v_add_u32 v{GA}, s52, v{L16}
    v_add_u32 v{GB}, s58, v{L16}""")
    pace(D_G,CK)
    g_issue()
    a.I("s_waitcnt vmcnt(4)")
    zero_qk()
    for k in range(G2-1):
        g_issue(" ; nowarn"); pace(3,CK)
    a.L(P+"_ga")
    if G2: g_issue(" ; nowarn")
    a.I(f"""s_waitcnt vmcnt({2*G2+1})
    v_max3_u32 v{CK}, v{G0}, v{G0+1}, v{G0+2} ; nowarn
    v_max_u32 v{CK}, v{CK}, v{G0+3} ; nowarn
    ds_write_b128 v{GA}, {vr(G0,4)} offset:{MEML} ; nowarn
    s_waitcnt vmcnt({2*G2})
    v_max3_u32 v{CK}, v{CK}, v{G1}, v{G1+1} ; nowarn
    v_max3_u32 v{CK}, v{CK}, v{G1+2}, v{G1+3} ; nowarn
    ds_write_b128 v{GB}, {vr(G1,4)} offset:{MEML} ; nowarn
    v_cmpx_eq_u32 vcc, -1, v{CK}""")
    cnt(93)
    a.I(f"s_cbranch_execz {P}_gd")
    if not G2: g_issue(" ; nowarn")
    a.I(f"""s_sub_u32 s94, s94, 1
    s_cbranch_scc0 {P}_ga
    s_mov_b32 s94, 0""")
    a.L(P+"_gd")
    a.I(f"""s_mov_b64 exec, -1
    s_waitcnt lgkmcnt(0)
    s_branch {P}_top""")
    for f in out: f()
    a.L(P+"_hw")
    cnt(91)
    a.I(f"""buffer_load_dword v{AD}, v{AD+1}, s[20:23], s55 offen sc1 ; nowarn
    v_cmp_ne_u32 vcc, s6, v{AD} ; nowarn
    s_cbranch_vccz {P}_hd
    s_sub_u32 s94, s94, 1
    s_cbranch_scc0 {P}_hw
    s_mov_b32 s94, 0
    s_branch {P}_hd""")
    a.L(P+"_fw")
    a.I(f"""s_cmp_ge_u32 s6, s36
    s_cbranch_scc1 {P}_fd""")
    a.L(P+"_fw2")
    a.I(f"""buffer_load_dword v{L16}, off, s[20:23], s37 sc1
    s_waitcnt vmcnt(0)
    v_readfirstlane_b32 s56, v{L16}
    v_mbcnt_lo_u32_b32 v{L16}, -1, 0
    v_mbcnt_hi_u32_b32 v{L16}, -1, v{L16}
    v_lshlrev_b32 v{L16}, 4, v{L16}
    s_cmp_eq_u32 s56, 1
    s_cbranch_scc1 {P}_fd""")
    spin_tail(a,P+"_fw2",P+"_fd",sleep=1)
    a.L(P+"_fin")
    a.I(f"""v_lshrrev_b32 v{AQ+4}, 16, v{PK1}
    ds_read_b64 v[{AQ}:{AQ+1}], v{AQ+4}
    v_mov_b64 v[{AQ+2}:{AQ+3}], v[{VM}:{VM+1}]
    s_waitcnt lgkmcnt(0)
    s_add_u32 s57, s57, 4096
    buffer_store_dwordx4 {vr(AQ,4)}, v{L16}, s[20:23], s57 offen sc1""")
    rt(a,3,48)
    a.I(f"""s_mov_b32 s95, 1
    s_cmp_lg_u32 s44, 0
    s_cbranch_scc1 M_Efin""")
    if dbg and 100 in dbg:
        a.I(f"""s_waitcnt lgkmcnt(0)
        s_lshl_b32 s9, s4, 2
        s_add_u32 s9, s9, s5
        s_lshl_b32 s9, s9, 7
        s_add_u32 s9, s9, {DBGW}
        s_nop 7
        v_mov_b32 v48, 0""")
        for i in range(16): a.I(f"v_mov_b32 v{8+i}, s{60+2*i}")
        a.I(f"""s_memrealtime s[60:61]
        s_waitcnt lgkmcnt(0)""")
        a.L(P+"_cal")
        a.I(f"""s_memrealtime s[62:63]
        s_memtime s[64:65]
        s_waitcnt lgkmcnt(0)
        s_cmp_eq_u32 s62, s60
        s_cbranch_scc1 {P}_cal
        v_mov_b32 v24, s62
        v_mov_b32 v25, s64""")
        a.I("s_mov_b64 exec, 1")
        for i in range(5): a.I(f"buffer_store_dwordx4 v[{8+4*i}:{11+4*i}], v48, s[20:23], s9 offen offset:{16*i}")
    elif dbg:
        a.I(f"""s_memtime s[62:63]
        s_waitcnt lgkmcnt(0)
        s_lshl_b32 s9, s4, 2
        s_add_u32 s9, s9, s5
        s_lshl_b32 s9, s9, 7
        s_add_u32 s9, s9, {DBGW}
        s_nop 7
        v_mov_b32 v8, s88
        v_mov_b32 v9, s18
        v_mov_b32 v10, s62
        v_mov_b32 v11, s91
        v_mov_b32 v12, s92
        v_mov_b32 v13, s93
        v_mov_b32 v14, s90
        v_mov_b32 v15, s60
        v_mov_b32 v48, 0""")
        for i in range(12): a.I(f"v_mov_b32 v{16+i}, s{96+i if i<5 else 70+i}")
        a.I("s_mov_b64 exec, 1")
        for i in range(5): a.I(f"buffer_store_dwordx4 v[{8+4*i}:{11+4*i}], v48, s[20:23], s9 offen offset:{16*i}")
    a.I(f"""s_mov_b64 exec, -1
    s_add_u32 s36, s36, 63
    s_mov_b32 s44, {LOFF}
    s_branch M_A_layer""")
```

```python
from asmb import *
LOFF=0x6000000
KV=0x0
KVM=KV+0x100000+4096
OBUF=0x4000000; XA=0x5000000; ZF=0x5300000; ZO=0x5600000; FLAGS=0x5900000; XIN=0x5C00000
OFLAG=0x40000; XFLAG=0x42000; EFLAG=0x43000; DFLAG=0x43800; FFLAG=0x44000; FLAGB=0x45000
SH=0xC000000
FIMG=SH; FINV=SH+0x100000; WFI=SH+0x200000
TW1=SH+0x500000; TW2=TW1+0x4000; CST=TW1+0x8000
PART=SH+0x600000; MEMB=SH+0x700000; WOC=SH+0x800000
DBGW=0xF000000
WS_SIZE=0x10000000
XBYTES=2048*576*2
KA=dict(x=0,mem0=8,Wq=16,Wk=24,Wv=32,Wo=40,seg=48,bx=56,wr=64,wi=72,out=80,dbg=88,ws=96)

def kernel_begin(a, name):
    a.raw(f".text\n.globl {name}\n.p2align 8\n.type {name},@function\n{name}:")

def kernel_desc(name, vgpr, sgpr=96, accum=None):
    if accum is None: accum=(vgpr+3)//4*4
    return f""".section .rodata,"a"
.p2align 6
.amdhsa_kernel {name}
  .amdhsa_next_free_vgpr {vgpr}
  .amdhsa_next_free_sgpr {sgpr}
  .amdhsa_accum_offset {accum}
  .amdhsa_group_segment_fixed_size 0
  .amdhsa_kernarg_size 104
  .amdhsa_user_sgpr_count 2
  .amdhsa_user_sgpr_kernarg_segment_ptr 1
  .amdhsa_system_sgpr_workgroup_id_x 1
.end_amdhsa_kernel"""

def srd(a, d, ptr, size):
    a.I(f"""s_mov_b32 s{d}, s{ptr}
    s_and_b32 s{d+1}, s{ptr+1}, 0xffff
    s_mov_b32 s{d+2}, {size}
    s_mov_b32 s{d+3}, 0x00020000""")

def sdiv(a, q, x, d, tmp=None, maxx=1<<16):
    M=-(-(1<<32)//d)
    assert maxx*d <= (1<<32)
    a.I(f"s_mul_hi_u32 s{q}, s{x}, {M}")

DB_OVF=8; DB_INIT=10; DB_TAB=11; DB_L4=16; DB_L5=32
NB=4; NG=4; ND=3; NE=4; NOTH=48
def spin_tail(a, loop, out, sleep=0):
    import os
    if sleep: a.I(f"s_sleep {min(127,sleep*int(os.environ.get('SLM',1)))}")
    a.I(f"""s_sub_u32 s94, s94, 1
    s_cbranch_scc0 {loop}
    s_mov_b32 s94, 0""")
    if out: a.I(f"s_branch {out}")
def wait_dbg(a, word, target, v, sleep=4, layer=False):
    l=a.lab("wd")
    if layer: a.I(f"s_lshl_b32 s9, s95, 2\ns_add_u32 s9, s9, {4*word}\nv_mov_b32 v{v}, s9")
    else: a.I(f"v_mov_b32 v{v}, {4*word}")
    a.L(l)
    a.I(f"""global_load_dword v{v+1}, v{v}, s[28:29] sc1
    s_waitcnt vmcnt(0)
    v_readfirstlane_b32 s9, v{v+1}
    s_cmp_ge_u32 s9, {target}
    s_cbranch_scc1 {l}d""")
    spin_tail(a,l,None,sleep)
    a.L(l+"d")
def add_dbg(a, word, v, layer=False):
    if layer: a.I(f"s_lshl_b32 s9, s95, 2\ns_add_u32 s9, s9, {4*word}\nv_mov_b32 v{v}, s9")
    else: a.I(f"v_mov_b32 v{v}, {4*word}")
    a.I(f"""v_mov_b32 v{v+1}, 1
    s_mov_b64 exec, 1
    global_atomic_add v{v}, v{v+1}, s[28:29]
    s_mov_b64 exec, -1""")
def wait_flags(a, soff, n, v, vl16, sleep=4, sh=2):
    l=a.lab("wf")
    if sh<4: a.I(f"v_lshrrev_b32 v{v}, {4-sh}, v{vl16}")
    else: a.I(f"v_lshlrev_b32 v{v}, {sh-4}, v{vl16}")
    if n>64: a.I(f"v_add_u32 v{v+2}, {64<<sh}, v{v}\nv_min_u32 v{v+2}, {(n-1)<<sh}, v{v+2}")
    else: a.I(f"v_min_u32 v{v}, {(n-1)<<sh}, v{v}")
    a.L(l)
    a.I(f"buffer_load_dword v{v+1}, v{v}, s[20:23], s{soff} offen sc1")
    if n>64: a.I(f"buffer_load_dword v{v+3}, v{v+2}, s[20:23], s{soff} offen sc1")
    a.I("s_waitcnt vmcnt(0)")
    if n>64: a.I(f"v_and_b32 v{v+1}, v{v+1}, v{v+3}")
    a.I(f"""v_cmp_ne_u32 vcc, 1, v{v+1}
    s_cbranch_vccz {l}d""")
    spin_tail(a,l,None,sleep)
    a.L(l+"d")
def post_flag(a, soff, v):
    a.I(f"""v_mov_b32 v{v}, 1
    s_mov_b64 exec, 1
    buffer_store_dword v{v}, off, s[20:23], s{soff} sc1
    s_mov_b64 exec, -1""")
def next_layer(a):
    a.I(f"""s_add_u32 s95, s95, 1
    s_add_u32 s20, s20, {LOFF}
    s_addc_u32 s21, s21, 0
    s_mov_b32 s22, {WS_SIZE-LOFF}
    s_add_u32 s24, s20, {XIN}
    s_addc_u32 s25, s21, 0""")
def lane(a, v):
    a.I(f"v_mbcnt_lo_u32_b32 v{v}, -1, 0\nv_mbcnt_hi_u32_b32 v{v}, -1, v{v}")

import os
RT=bool(os.environ.get("RT"))
def rt(a, slot, v, lay="s95"):
    if not RT: return
    a.I(f"""s_memrealtime s[98:99]
    s_lshl_b32 s8, s4, 7
    s_lshl_b32 s9, {lay}, 6
    s_add_u32 s8, s8, s9
    s_add_u32 s8, s8, {DBGW+0x10000+4*slot}
    s_waitcnt lgkmcnt(0)
    v_mov_b32 v{v}, s98
    s_mov_b64 exec, 1
    buffer_store_dword v{v}, off, s[84:87], s8
    s_mov_b64 exec, -1""")
```

```python
from common import *
from bstage import ln_addr, ln_load, ln_compute, XF_TH, XF_SIZE
import struct
from rawload import *
def f2u(x): return struct.unpack('<I',struct.pack('<f',x))[0]
SCL=f2u(128**-0.5*1.4426950408889634)
LDS_LA=163840
BUDGET=400000
import os
BST=os.environ.get('BST','sc1')
BRB=os.environ.get('BRB','')

class LQ:
    def __init__(self,a): self.a=a; self.q=[]; self.t=[]; self.done=0; self.now=0
    def op(self,text,tag=None):
        self.a.I(text); self.q.append(tag); self.t.append(self.now)
    def idx(self,*tags): return max(max(i for i,t in enumerate(self.q) if t==tag) for tag in tags)
    def needs(self,*tags): return self.idx(*tags)>=self.done
    def wait(self,*tags,age=None):
        idx=self.idx(*tags)
        if idx<self.done: return
        if age is not None:
            while idx+1<len(self.q) and self.now-self.t[idx+1]>=age: idx+=1
        n=len(self.q)-1-idx
        assert n<=15, n
        self.a.I(f"s_waitcnt lgkmcnt({n})"); self.done=idx+1
    def all(self):
        self.a.I("s_waitcnt lgkmcnt(0)"); self.done=len(self.q)

def softmax(a, S1, S2, Sm, T, sC, fill=None):
    f=fill or (lambda k: None)
    a.I(f"""v_max3_f32 v{T}, v{S1}, v{S1+1}, v{S1+2}
    v_pk_add_f32 v[{Sm}:{Sm+1}], v[{Sm}:{Sm+1}], v[{Sm+2}:{Sm+3}]
    v_max3_f32 v{T}, v{T}, v{S1+3}, v{Sm}
    v_max3_f32 v{T+1}, v{S2}, v{S2+1}, v{S2+2}
    v_max3_f32 v{T}, v{T}, v{Sm+1}, v{S2+3}
    v_max_f32 v{T}, v{T}, v{T+1}
    v_mov_b32 v{T+1}, v{T}""")
    a.I(f"v_mov_b32 v{Sm+2}, 0\nv_mov_b32 v{Sm+3}, 0")
    f(0)
    a.I(f"""v_permlane16_swap_b32 v{T}, v{T+1}
    v_max_f32 v{T}, v{T}, v{T+1}
    v_mov_b32 v{T+1}, v{T}""")
    f(1)
    a.I(f"""v_permlane32_swap_b32 v{T}, v{T+1}
    v_max_f32 v{T}, v{T}, v{T+1}
    v_mul_f32 v{T}, s{sC}, v{T}""")
    regs=[S1,S1+1,S1+2,S1+3,S2,S2+1,S2+2,S2+3,Sm,Sm+1]
    for r in regs: a.I(f"v_fma_f32 v{r}, v{r}, s{sC}, -v{T}")
    for r in regs: a.I(f"v_exp_f32 v{r}, v{r}")
    a.I(f"""v_cvt_pk_bf16_f32 v{S1}, v{S1}, v{S1+1}
    v_cvt_pk_bf16_f32 v{S1+1}, v{S1+2}, v{S1+3}
    v_cvt_pk_bf16_f32 v{S1+2}, v{S2}, v{S2+1}
    v_cvt_pk_bf16_f32 v{S1+3}, v{S2+2}, v{S2+3}
    v_cvt_pk_bf16_f32 v{Sm}, v{Sm}, v{Sm+1}
    v_mov_b32 v{Sm+1}, 0""")

def pv(a, Px, Pm, VF, VM, ONES, O0, O1, SUM, OUT):
    a.I(f"""v_mfma_f32_16x16x32_bf16 v[{SUM}:{SUM+3}], v[{ONES}:{ONES+3}], v[{Px}:{Px+3}], 0
    v_mfma_f32_16x16x32_bf16 v[{SUM}:{SUM+3}], v[{ONES}:{ONES+3}], v[{Pm}:{Pm+3}], v[{SUM}:{SUM+3}]
    v_mfma_f32_16x16x32_bf16 v[{O0}:{O0+3}], v[{VF}:{VF+3}], v[{Px}:{Px+3}], 0
    v_mfma_f32_16x16x32_bf16 v[{O1}:{O1+3}], v[{VF+4}:{VF+7}], v[{Px}:{Px+3}], 0
    v_mfma_f32_16x16x32_bf16 v[{O0}:{O0+3}], v[{VM}:{VM+3}], v[{Pm}:{Pm+3}], v[{O0}:{O0+3}]
    v_mfma_f32_16x16x32_bf16 v[{O1}:{O1+3}], v[{VM+2}:{VM+5}], v[{Pm}:{Pm+3}], v[{O1}:{O1+3}]
    v_rcp_f32 v{SUM}, v{SUM}
    v_rcp_f32 v{SUM+1}, v{SUM+1}
    v_pk_mul_f32 v[{O0}:{O0+1}], v[{O0}:{O0+1}], v[{SUM}:{SUM+1}]
    v_pk_mul_f32 v[{O0+2}:{O0+3}], v[{O0+2}:{O0+3}], v[{SUM}:{SUM+1}]
    v_pk_mul_f32 v[{O1}:{O1+1}], v[{O1}:{O1+1}], v[{SUM}:{SUM+1}]
    v_pk_mul_f32 v[{O1+2}:{O1+3}], v[{O1+2}:{O1+3}], v[{SUM}:{SUM+1}]
    v_cvt_pk_bf16_f32 v{OUT}, v{O0}, v{O0+1}
    v_cvt_pk_bf16_f32 v{OUT+1}, v{O0+2}, v{O0+3}
    v_cvt_pk_bf16_f32 v{OUT+2}, v{O1}, v{O1+1}
    v_cvt_pk_bf16_f32 v{OUT+3}, v{O1+2}, v{O1+3}""")

def stamp(a, P, i, on):
    if on: a.I(f"""s_memtime s[66:67]
    s_waitcnt lgkmcnt(0)
    s_sub_u32 s68, s66, s69
    s_add_u32 s{70+i}, s{70+i}, s68
    s_mov_b32 s69, s66""")

def role_b(a, P):
    flg=FLAGS
    L16=0; GO=1; LO=2; DEL=3; IDX=4
    QS=XF_SIZE+64-(XF_SIZE%64); QS=40960
    BTK=38912
    def wreg(ti,ks):
        f=ks*6+ti
        return ar(4*f,4) if f<64 else vr(80+4*(f-64),4)
    a.L(P+"B")
    a.I(f"""s_sub_u32 s8, s4, 32""")
    sdiv(a,6,8,NB)
    a.I(f"""s_mul_i32 s7, s6, {NB}
    s_sub_u32 s7, s8, s7
    v_mov_b32 v10, s5""")
    ln_addr(a,"v10",0,GO,LO,12)
    a.I(f"""v_and_b32 v10, 15, v0
    v_lshrrev_b32 v11, 2, v10
    v_lshlrev_b32 v11, 3, v11
    v_and_b32 v12, 3, v10
    v_add_u32 v11, v11, v12
    v_lshrrev_b32 v12, 4, v0
    v_lshlrev_b32 v12, 3, v12
    v_sub_u32 v{DEL}, v11, v12
    v_mov_b32 v{IDX}, 0x4444
    v_mov_b32 v11, 0xeeee
    v_and_b32 v12, 2, v0
    v_cmp_eq_u32 vcc, 2, v12
    v_cndmask_b32 v{IDX}, v{IDX}, v11, vcc
    v_lshlrev_b32 v{L16}, 4, v0""")
    def wt(ti,ks):
        f=ks*6+ti
        return ('a',4*f) if f<64 else ('v',80+4*(f-64))
    a.I(f"""v_lshrrev_b32 v20, 6, v{L16}          ; a
    v_bfe_u32 v21, v{L16}, 4, 2            ; piece
    v_lshlrev_b32 v8, 13, v20
    v_lshl_add_u32 v8, v21, 4, v8
    v_and_b32 v22, 3, v20
    v_lshrrev_b32 v23, 8, v{L16}
    v_lshl_add_u32 v22, v23, 3, v22
    v_lshlrev_b32 v22, 6, v22
    v_lshl_add_u32 v22, v21, 4, v22
    s_lshl_b32 s9, s5, 12
    v_add_u32 v9, s9, v22
    v_add_u32 v10, s9, v{L16}
    s_lshl_b32 s30, s6, 8
    s_lshl_b32 s9, s5, 6
    s_add_u32 s30, s30, s9""")
    chunks=[]
    for k in range(9):
        for mat in range(3):
            g=[wt(2*mat+t,2*k+hb) for t in range(2) for hb in range(2)]
            chunks.append(dict(srd=SQ+4*mat, voff=[8]*4, soff=[(30,(64*k+16*i)*8192) for i in range(4)], grp=g,
                rd=[((g[2*t+hb][0],g[2*t+hb][1]+2*rho),9,hb*2048+rho*256+t*8) for t in range(2) for hb in range(2) for rho in range(2)]))
    rawload(a,chunks,10,flags="")
    a.I("s_barrier")
    wait_dbg(a,DB_INIT,NOTH,8)
    a.L(P+"B_layer")
    rt(a,1,8)
    a.I(f"""s_mov_b32 s10, s7            ; s_q
    s_mov_b32 s11, -1                    ; s_a
    s_mov_b32 s12, {QS}
    s_mov_b32 s13, {QS+24576}
    s_mov_b32 s14, {SCL}
    s_waitcnt vmcnt(0)""")
    a.L(P+"B_loop")
    a.I(f"""s_cmp_ge_u32 s10, 64
    s_cbranch_scc1 {P}B_attn""")
    X=8; T=44
    a.I(f"""s_cmp_eq_u32 s95, 0
    s_cbranch_scc1 {P}B_x
    s_lshl_b32 s15, s10, 4
    s_add_u32 s15, s15, {FLAGS+EFLAG}""")
    wait_flags(a,15,3,8,L16,sleep=2)
    a.L(P+"B_x")
    if RT:
        a.I(f"s_cmp_lg_u32 s10, s7\ns_cbranch_scc1 {P}B_x2"); rt(a,2,8); a.L(P+"B_x2")
    a.I(f"s_mul_i32 s15, s10, {32*1152}")
    ln_load(a,X,GO,24,"s15","sc1")
    a.I(f"""s_lshl_b32 s16, s6, 21
    s_lshl_b32 s17, s10, 12
    s_add_u32 s17, s17, s16
    s_lshl_b32 s18, s5, 10
    s_add_u32 s17, s17, s18
    s_add_u32 s17, s17, {KVM}
    v_mov_b32 v44, -1
    v_mov_b32 v45, -1
    v_mov_b32 v46, -1
    v_mov_b32 v47, -1
    buffer_store_dwordx4 v[44:47], v{L16}, s[20:23], s17 offen sc1
    s_waitcnt vmcnt(1)""")
    ln_compute(a,X,T,LO,36,37)
    a.I("s_waitcnt lgkmcnt(0)\ns_barrier")
    ACC=32; FR=8
    def rd(ks):
        for th in range(2):
            r=FR+((ks%3)*2+th)*4
            a.I(f"ds_read_b128 v[{r}:{r+3}], v{L16} offset:{th*XF_TH+ks*1024}")
    rd(0); rd(1)
    acc=lambda ti,th: ACC+(ti*2+th)*4
    for ks in range(18):
        if ks+2<18: rd(ks+2)
        a.I(f"s_waitcnt lgkmcnt({min(2,17-ks)*2})")
        for ti in range(6):
            for th in range(2):
                d=acc(ti,th); r=vr(FR+((ks%3)*2+th)*4,4)
                c="0" if ks==0 else vr(d,4)
                if ti<4: a.I(f"v_mfma_f32_16x16x32_bf16 {vr(d,4)}, {wreg(ti,ks)}, {r}, {c}")
                else:    a.I(f"v_mfma_f32_16x16x32_bf16 {vr(d,4)}, {r}, {wreg(ti,ks)}, {c}")
    a.I(f"""s_lshl_b32 s17, s10, 14
    s_add_u32 s17, s17, s16
    s_add_u32 s17, s17, {KV}
    s_add_u32 s18, s18, s17              ; + w*1024  (K)
    s_lshl_b32 s19, s5, 11
    s_add_u32 s19, s19, s17
    s_add_u32 s19, s19, 8192             ; V + w*2048
    s_lshl_b32 s38, s5, 10
    s_add_u32 s38, s38, s12
    v_add_u32 v5, s38, v{L16}
    s_lshl_b32 s38, s5, 11
    s_add_u32 s38, s38, s12
    v_add_u32 v6, s38, v{L16}
    s_add_u32 s39, s18, 4096""")
    for m in range(2):
        for th in range(2):
            o=8+(m*2+th)*4; d0=acc(2*m,th); d1=acc(2*m+1,th)
            a.I(f"""v_cvt_pk_bf16_f32 v{o}, v{d0}, v{d0+1}
            v_cvt_pk_bf16_f32 v{o+1}, v{d1}, v{d1+1}
            v_cvt_pk_bf16_f32 v{o+2}, v{d0+2}, v{d0+3}
            v_cvt_pk_bf16_f32 v{o+3}, v{d1+2}, v{d1+3}
            ds_write_b128 v5, v[{o}:{o+3}] offset:{m*8192+th*4096}""")
            if m==1: a.I(f"buffer_store_dwordx4 v[{o}:{o+3}], v{L16}, s[20:23], s{18 if th==0 else 39} offen sc1")
    for tau in range(2):
        o=24+tau*4; d0=acc(4+tau,0); d1=acc(4+tau,1)
        a.I(f"""v_cvt_pk_bf16_f32 v{o}, v{d0}, v{d0+1}
        v_cvt_pk_bf16_f32 v{o+1}, v{d0+2}, v{d0+3}
        v_cvt_pk_bf16_f32 v{o+2}, v{d1}, v{d1+1}
        v_cvt_pk_bf16_f32 v{o+3}, v{d1+2}, v{d1+3}
        ds_write_b128 v6, v[{o}:{o+3}] offset:{16384+tau*1024}
        buffer_store_dwordx4 v[{o}:{o+3}], v{L16}, s[20:23], s19 offen offset:{tau*1024} {BST}""")
    if BRB:
        a.I(f"""s_waitcnt vmcnt(0)
        buffer_load_dwordx4 v[8:11], v{L16}, s[20:23], s19 offen {BRB}
        buffer_load_dwordx4 v[12:15], v{L16}, s[20:23], s19 offen offset:1024 {BRB}""")
    a.I(f"""s_waitcnt vmcnt(0) lgkmcnt(0)
    s_barrier
    s_cmp_lg_u32 s5, 0
    s_cbranch_scc1 {P}B_attn
    s_lshl_b32 s17, s6, 6
    s_add_u32 s17, s17, s10
    s_lshl_b32 s17, s17, 7
    s_add_u32 s17, s17, {flg}
    v_mov_b32 v8, 1
    s_mov_b64 exec, 1
    buffer_store_dword v8, v{L16}, s[20:23], s17 offen sc1
    s_mov_b64 exec, -1""")
    a.L(P+"B_attn")
    if RT:
        a.I(f"s_cmp_lg_u32 s10, s7\ns_cbranch_scc1 {P}B_a2"); rt(a,3,8); a.L(P+"B_a2")
    a.I(f"""s_cmp_lt_i32 s11, 0
    s_cbranch_scc1 {P}B_next
    s_lshl_b32 s16, s11, 5
    s_add_u32 s16, s16, s6
    s_lshl_b32 s17, s6, 21
    s_lshl_b32 s18, s11, 12
    s_add_u32 s17, s17, s18
    s_add_u32 s17, s17, {KVM}
    s_lshl_b32 s18, s5, 10
    s_add_u32 s18, s18, s17
    v_add_u32 v6, s13, v{L16}
    s_lshl_b32 s38, s5, 11
    v_add_u32 v7, s38, v6""")
    KM=8; VM=16; VF=20; QF=28; KF=44; S1=60; S2=64; Sm=68; ON=72; T=78; O0=44; O1=48
    a.I(f"""ds_read_b128 v[{VF}:{VF+3}], v7 offset:16384
    ds_read_b128 v[{VF+4}:{VF+7}], v7 offset:17408""")
    for i in range(4): a.I(f"v_mov_b32 v{ON+i}, 0x3f803f80")
    a.I(f"""s_lshl_b32 s38, s5, 9
    ; TKw = (16w+n)*32+g*8
    v_and_b32 v5, 0xf0, v{L16}
    v_lshl_add_u32 v5, v5, 1, s38
    v_lshrrev_b32 v{T+1}, 8, v{L16}
    v_lshl_add_u32 v5, v{T+1}, 3, v5""")
    a.L(P+"B_poll")
    a.I(f"""buffer_load_dwordx4 v[{KM}:{KM+3}], v{L16}, s[20:23], s18 offen sc1
    s_waitcnt vmcnt(0)
    v_max3_u32 v{T}, v{KM}, v{KM+1}, v{KM+2}
    v_max_u32 v{T}, v{T}, v{KM+3}
    v_cmp_eq_u32 vcc, -1, v{T}
    s_cbranch_vccz {P}B_go""")
    spin_tail(a,P+"B_poll",None,sleep=4)
    a.L(P+"B_go")
    rt(a,4,77)
    a.I(f"""ds_write_b64 v5, v[{KM}:{KM+1}] offset:{BTK}
    v_mov_b64 v[{VM}:{VM+1}], v[{KM+2}:{KM+3}]
    v_and_b32 v{T}, 0x300, v{L16}
    v_bfe_u32 v{T+1}, v{L16}, 4, 4
    v_lshl_add_u32 v{T}, v{T+1}, 3, v{T}
    s_waitcnt lgkmcnt(0)
    s_barrier""")
    for sg_ in range(2):
        for rho in range(2):
            a.I(f"ds_read_b64_tr_b16 v[{KM+4*sg_+2*rho}:{KM+4*sg_+2*rho+1}], v{T} offset:{BTK+sg_*1024+rho*128}")
    a.I(f"""s_lshl_b32 s17, s16, 13
    s_lshl_b32 s18, s5, 11
    s_add_u32 s17, s17, s18
    s_add_u32 s17, s17, {OBUF}
    v_mov_b32 v76, 0xff800000
    v_mov_b32 v{VM+2}, v{VM+1}
    v_mov_b32 v{VM+3}, 0""")
    for tq in range(2):
        for ks in range(4): a.I(f"ds_read_b128 v[{QF+4*ks}:{QF+4*ks+3}], v6 offset:{tq*4096+ks*1024}")
        for i in range(4): a.I(f"v_mov_b32 v{Sm+i}, 0")
        for tk in range(2):
            S=(S1,S2)[tk]
            for ks in range(4): a.I(f"ds_read_b128 v[{KF+4*ks}:{KF+4*ks+3}], v6 offset:{8192+tk*4096+ks*1024}")
            a.I("s_waitcnt lgkmcnt(0)")
            for ks in range(4):
                c="0" if ks==0 else vr(S,4)
                a.I(f"v_mfma_f32_16x16x32_bf16 {vr(S,4)}, {vr(KF+4*ks,4)}, {vr(QF+4*ks,4)}, {c}")
            a.I("s_nop 3")
        for sg_ in range(2):
            a.I(f"v_smfmac_f32_16x16x64_bf16 {vr(Sm,4)}, {vr(KM+4*sg_,4)}, {vr(QF+8*sg_,8)}, v{IDX}")
        for tk in range(2):
            S=(S1,S2)[tk]
            for r in range(4):
                a.I(f"""v_cmp_le_i32 vcc, {r+4*(tk-tq)}, v{DEL}
                v_cndmask_b32 v{S+r}, v76, v{S+r}, vcc""")
        softmax(a,S1,S2,Sm,T,14)
        pv(a,S1,Sm,VF,VM,ON,O0,O1,S2,52+4*tq)
        a.I(f"buffer_store_dwordx4 v[{52+4*tq}:{55+4*tq}], v{L16}, s[20:23], s17 offen offset:{tq*1024} sc1")
        if tq==0: a.I("s_nop 1")
    a.I(f"""s_waitcnt vmcnt(0)
    s_barrier
    s_cmp_lg_u32 s5, 0
    s_cbranch_scc1 {P}B_next
    s_lshl_b32 s17, s16, 2
    s_add_u32 s17, s17, {flg+OFLAG}
    v_mov_b32 v8, 1
    s_mov_b64 exec, 1
    buffer_store_dword v8, v{L16}, s[20:23], s17 offen sc1
    s_mov_b64 exec, -1""")
    a.L(P+"B_next")
    rt(a,5,8)
    a.I(f"""s_mov_b32 s11, s10
    s_add_u32 s10, s10, {NB}
    s_mov_b32 s38, s12
    s_mov_b32 s12, s13
    s_mov_b32 s13, s38
    s_cmp_lt_u32 s11, 64
    s_cbranch_scc1 {P}B_loop
    s_cmp_eq_u32 s95, 1
    s_cbranch_scc1 {P}Efin""")
    next_layer(a)
    a.I(f"s_branch {P}B_layer")

def role_c(a, P):
    flg=FLAGS+OFLAG; xdst=XA
    L16=0
    def wreg(kl,tau):
        f=kl*3+tau
        return ar(4*f,4) if f<64 else vr(128+4*(f-64),4)
    a.L(P+"C")
    lane(a,0)
    a.I(f"""s_and_b32 s8, s4, 31
    s_sub_u32 s9, s4, 160
    s_lshr_b32 s9, s9, 5
    s_lshl_b32 s6, s9, 1
    s_mul_i32 s40, s9, 24
    s_add_u32 s40, s40, s8
    s_cmp_ge_u32 s8, 12
    s_cselect_b32 s9, 1, 0
    s_add_u32 s6, s6, s9
    s_mul_i32 s9, s9, 12
    s_sub_u32 s7, s8, s9                 ; cb
    v_and_b32 v1, 7, v0
    v_lshlrev_b32 v1, 2, v1
    v_and_b32 v10, 15, v0
    v_lshrrev_b32 v11, 2, v10
    v_lshlrev_b32 v11, 3, v11
    v_and_b32 v12, 3, v10
    v_add_u32 v11, v11, v12
    v_mul_u32_u24 v2, 1152, v11
    v_lshrrev_b32 v12, 4, v0
    v_mul_u32_u24 v12, 24, v12
    v_add_u32 v2, v2, v12
    v_lshlrev_b32 v{L16}, 4, v0
    s_mul_i32 s9, s5, 6144
    v_add_u32 v3, s9, v{L16}
    s_mul_i32 s9, s5, 3072
    v_add_u32 v4, s9, v{L16}
    s_mul_i32 s30, s5, {1024*1152}
    s_mul_i32 s9, s7, 96
    s_add_u32 s30, s30, s9
    s_lshl_b32 s9, s5, 12
    v_add_u32 v9, s9, v{L16}
    v_bfe_u32 v20, v{L16}, 6, 2
    v_lshrrev_b32 v21, 8, v{L16}
    v_lshl_add_u32 v20, v21, 3, v20
    v_mul_u32_u24 v20, 96, v20
    v_bfe_u32 v21, v{L16}, 4, 2
    v_mul_u32_u24 v21, 24, v21
    v_add3_u32 v8, v20, v21, s9
    v_lshrrev_b32 v20, 4, v{L16}""")
    for i in range(3):
        a.I(f"""v_add_u32 v21, {64*i}, v20
        v_mul_u32_u24 v22, 171, v21
        v_lshrrev_b32 v22, 10, v22
        v_mul_u32_u24 v23, 6, v22
        v_sub_u32 v23, v21, v23
        v_mul_u32_u24 v22, 1152, v22
        v_lshl_add_u32 v{5+i}, v23, 4, v22""")
    def wt(kl,tau):
        f=kl*3+tau
        return ('a',4*f) if f<64 else ('v',128+4*(f-64))
    chunks=[]
    for kl in range(32):
        g=[wt(kl,t) for t in range(3)]
        chunks.append(dict(srd=SQ+12, voff=[5,6,7], soff=[(30,32*kl*1152)]*3, grp=g,
            rd=[((g[t][0],g[t][1]+2*rho),8,rho*384+t*8) for t in range(3) for rho in range(2)]))
    if os.environ.get("CDEL"): wait_dbg(a,DB_TAB,NOTH,10,sleep=16)
    rawload(a,chunks,9,flags="")
    a.I("s_barrier")
    wait_dbg(a,DB_INIT,NOTH,8)
    rt(a,1,14)
    a.L(P+"C_loop")
    a.I(f"""s_lshl_b32 s10, s6, 5
    s_lshl_b32 s11, s5, 3
    s_add_u32 s10, s10, s11              ; s*32+8w
    s_lshl_b32 s11, s10, 2
    s_add_u32 s11, s11, {flg}
    s_lshl_b32 s12, s10, 13
    s_add_u32 s12, s12, {OBUF}
    s_mul_i32 s13, s6, {32*1152}
    s_mul_i32 s14, s7, 96
    s_add_u32 s13, s13, s14
    s_mul_i32 s14, s5, {4*1152}
    s_add_u32 s13, s13, s14
    """)
    a.L(P+"C_poll")
    a.I(f"""buffer_load_dword v5, v1, s[20:23], s11 offen sc1
    s_waitcnt vmcnt(0)
    v_cmp_ne_u32 vcc, 1, v5
    s_cbranch_vccz {P}C_go""")
    spin_tail(a,P+"C_poll",None,sleep=4)
    a.L(P+"C_go")
    rt(a,4,14)
    a.I("""buffer_load_dwordx4 v[8:11], v2, s[24:27], s13 offen sc1
    buffer_load_dwordx2 v[12:13], v2, s[24:27], s13 offen offset:16 sc1""")
    ACC=16; FB=40; NR=22
    def ld(f):
        r=FB+4*(f%NR)
        a.I(f"buffer_load_dwordx4 v[{r}:{r+3}], v{L16}, s[20:23], s12 offen offset:{(f&3)*1024} sc1")
        if f&3==3: a.I("s_add_u32 s12, s12, 4096")
    for f in range(NR): ld(f)
    for kl in range(32):
        issued=min(64,NR+2*kl)
        a.I(f"s_waitcnt vmcnt({issued-2*kl-2})")
        for th in range(2):
            r=FB+4*((2*kl+th)%NR)
            for tau in range(3):
                d=ACC+(th*3+tau)*4
                c="0" if kl==0 else vr(d,4)
                a.I(f"v_mfma_f32_16x16x32_bf16 {vr(d,4)}, {wreg(kl,tau)}, {vr(r,4)}, {c}")
        for f in (NR+2*kl,NR+2*kl+1):
            if f<64: ld(f)
    for i in range(6): a.I(f"ds_write_b128 v3, {vr(ACC+4*i,4)} offset:{1024*i}")
    a.I(f"""s_waitcnt lgkmcnt(0)
    s_barrier
    s_cmp_ge_u32 s5, 2
    s_cbranch_scc1 {P}C_next""")
    for w in range(4):
        for tau in range(3):
            a.I(f"ds_read_b128 {vr(FB+(w*3+tau)*4,4)}, v4 offset:{w*6144+tau*1024}")
    a.I("s_waitcnt lgkmcnt(0)")
    for p in range(6):
        x=8+p; d=FB+2*p
        a.I(f"""v_pk_add_f32 v[{d}:{d+1}], v[{d}:{d+1}], v[{d+12}:{d+13}]
        v_pk_add_f32 v[{d+24}:{d+25}], v[{d+24}:{d+25}], v[{d+36}:{d+37}]
        v_lshlrev_b32 v14, 16, v{x}
        v_and_b32 v15, 0xffff0000, v{x}
        v_pk_add_f32 v[{d}:{d+1}], v[{d}:{d+1}], v[{d+24}:{d+25}]
        v_pk_add_f32 v[14:15], v[14:15], v[{d}:{d+1}]
        v_cvt_pk_bf16_f32 v{x}, v14, v15""")
    a.I(f"""s_add_u32 s13, s13, {xdst}
    buffer_store_dwordx4 v[8:11], v2, s[20:23], s13 offen sc1
    buffer_store_dwordx2 v[12:13], v2, s[20:23], s13 offen offset:16 sc1
    s_waitcnt vmcnt(0)""")
    a.L(P+"C_next")
    a.I(f"""s_barrier
    s_cmp_lg_u32 s5, 0
    s_cbranch_scc1 {P}C_nf
    s_lshl_b32 s11, s6, 6
    s_lshl_b32 s12, s7, 2
    s_add_u32 s11, s11, s12
    s_add_u32 s11, s11, {FLAGS+XFLAG}""")
    post_flag(a,11,14)
    a.L(P+"C_nf")
    rt(a,5,14)
    a.I(f"""s_add_u32 s6, s6, {NG}
    s_cmp_lt_u32 s6, 64
    s_cbranch_scc1 {P}C_loop
    s_mov_b32 s41, 0
    s_branch {P}L5""")
```

```python
from common import *
N5=640; N4=1296; N6=56
B5=0; B4=B5+N5; B6=B4+N4; NT=B6+N6

def others(a, P):
    a.L(P+"O")
    a.I(f"""s_lshl_b32 s45, s44, 2
    s_add_u32 s45, s45, s5               ; ow 0..191
    v_lshrrev_b32 v1, 4, v0
    v_and_b32 v2, 15, v0
    v_lshlrev_b32 v3, 4, v0
    v_mov_b32 v4, 0
    v_mov_b32 v5, 0
    v_mov_b32 v6, 0
    v_mov_b32 v7, 0
    v_mov_b32 v8, -1
    v_mov_b32 v9, -1
    v_mov_b32 v10, -1
    v_mov_b32 v11, -1""")
    def fill(base,n,reg):
        l=a.lab("fl")
        a.I("s_mov_b32 s3, s45")
        a.L(l)
        a.I(f"""s_cmp_ge_u32 s3, {n}
        s_cbranch_scc1 {l}d
        s_lshl_b32 s6, s3, 10
        s_add_u32 s6, s6, {base}
        buffer_store_dwordx4 v[{reg}:{reg+3}], v3, s[20:23], s6 offen sc1
        s_add_u32 s3, s3, 192
        s_branch {l}""")
        a.L(l+"d")
    fill(FLAGS,FLAGB//1024,4); fill(PART,288,8); fill(MEMB,36,8); fill(MEMB+0x10000,2,4); fill(LOFF+FLAGS,FLAGB//1024,4)
    a.I(f"""s_cmp_lg_u32 s45, 100
    s_cbranch_scc1 {P}O_nm
    s_load_dwordx2 s[8:9], s[0:1], {KA['mem0']}
    v_lshrrev_b32 v12, 2, v2
    v_lshlrev_b32 v12, 1, v12
    v_and_b32 v13, 1, v0
    v_add_u32 v12, v12, v13
    v_mul_u32_u24 v17, 1152, v12
    v_bfe_u32 v12, v0, 1, 1
    v_lshl_add_u32 v18, v12, 6, v17
    v_lshl_add_u32 v18, v1, 3, v18
    v_lshl_add_u32 v17, v1, 5, v17
    v_lshl_add_u32 v17, v12, 2, v17
    s_mov_b32 s30, 0x05040100
    s_mov_b32 s31, 0x07060302
    s_waitcnt lgkmcnt(0)""")
    srd(a,80,8,9216)
    for k in range(8):
        a.I(f"""buffer_load_dwordx2 v[{24+4*k}:{25+4*k}], v18, s[80:83], 0 offen offset:{128*k}
        buffer_load_dwordx2 v[{26+4*k}:{27+4*k}], v18, s[80:83], 0 offen offset:{128*k+32}""")
    for j in range(4): a.I(f"buffer_load_dword v{56+j}, v17, s[80:83], 0 offen offset:{1024+8*j}")
    a.I(f"s_mov_b32 s9, {MEMB+4*9216}\ns_waitcnt vmcnt(0)")
    for k in range(8):
        b=24+4*k
        a.I(f"""v_perm_b32 v60, v{b+2}, v{b}, s30
        v_perm_b32 v61, v{b+2}, v{b}, s31
        v_perm_b32 v62, v{b+3}, v{b+1}, s30
        v_perm_b32 v63, v{b+3}, v{b+1}, s31
        buffer_store_dwordx4 v[60:63], v3, s[20:23], s9 offen sc1
        s_add_u32 s9, s9, 1024""")
    a.I(f"buffer_store_dwordx4 v[56:59], v3, s[20:23], s9 offen sc1")
    a.L(P+"O_nm")
    a.I(f"""s_load_dwordx4 s[12:15], s[0:1], {KA['wr']}
    s_waitcnt vmcnt(0) lgkmcnt(0)
    s_barrier
    s_cmp_lg_u32 s5, 0
    s_cbranch_scc1 {P}O_t""")
    add_dbg(a,DB_INIT,12)
    a.L(P+"O_t")
    rt(a,1,12)
    srd(a,24,12,2048*578)
    srd(a,80,14,2048*578)
    a.I(f"s_sub_u32 s46, s45, 192")
    a.L("P_end")
    a.I(f"""s_mov_b64 exec, -1
    s_add_u32 s46, s46, 192
    s_mov_b32 s3, s46
    s_cmp_lt_u32 s3, {B4}
    s_cbranch_scc1 P_T5
    s_cmp_lt_u32 s3, {B6}
    s_cbranch_scc1 P_T4
    s_cmp_lt_u32 s3, {NT}
    s_cbranch_scc1 P_T6
    s_waitcnt vmcnt(0)
    s_barrier
    s_cmp_lg_u32 s5, 0
    s_cbranch_scc1 {P}O_d""")
    add_dbg(a,DB_TAB,12)
    a.L(P+"O_d")
    rt(a,2,12)
    a.I(f"""s_cmp_lt_u32 s44, {3*ND}
    s_cbranch_scc1 {P}D
    s_cmp_lt_u32 s44, {3*ND+3*NE}
    s_cbranch_scc1 {P}E
    s_add_u32 s40, s44, {48-3*ND-3*NE}
    s_mov_b32 s41, 1
    s_branch {P}L5""")
    a.L("P_T4")
    a.I(f"""s_sub_u32 s3, s3, {B4}
    s_cmp_ge_u32 s3, 648
    s_cselect_b32 s38, 1, 0          ; inv?
    s_cselect_b32 s39, 648, 0
    s_sub_u32 s3, s3, s39            ; f""")
    sdiv(a,32,3,18)
    a.I(f"""s_mul_i32 s33, s32, 18
    s_sub_u32 s33, s3, s33           ; ks
    s_lshl_b32 s34, s33, 5
    v_lshl_add_u32 v3, v1, 3, s34
    s_mov_b32 s40, {-(-(1<<32)//576)}
    s_mov_b32 s41, 0x3ae38e39        ; 1/576
    s_cmp_eq_u32 s38, 1
    s_cbranch_scc1 P_T4i
    s_lshl_b32 s34, s32, 4
    v_add_u32 v4, s34, v2            ; c (fixed)""")
    def elem(dst, d, c, wgt):
        a.I(f"""v_cmp_eq_u32 vcc, 1, v{c}
        v_lshrrev_b32 v30, 1, v{c}
        v_and_b32 v31, 1, v{c}
        v_mul_u32_u24 v31, 144, v31
        v_mov_b32 v32, 288
        v_cndmask_b32 v30, v30, v32, vcc
        v_cndmask_b32 v31, v31, 0, vcc
        v_mad_u32_u24 v30, v30, v{d}, v31
        v_mul_hi_u32 v31, v30, s40
        v_mul_u32_u24 v31, 576, v31
        v_sub_u32 v30, v30, v31
        v_cvt_f32_u32 v30, v30
        v_mul_f32 v30, s41, v30
        v_cos_f32 v{dst}, v30""")
        if wgt:
            a.I(f"""v_cmp_gt_u32 vcc, 2, v{c}
            v_add_f32 v31, v{dst}, v{dst}
            v_cndmask_b32 v{dst}, v31, v{dst}, vcc""")
    for t in range(8):
        a.I(f"v_add_u32 v5, {t}, v3")
        elem(8+t,5,4,False)
    a.I(f"s_mov_b32 s35, {FIMG}\ns_branch P_T4s")
    a.L("P_T4i")
    sdiv(a,36,32,3)
    a.I(f"""s_mul_i32 s37, s36, 3
    s_sub_u32 s37, s32, s37          ; tau
    s_mul_i32 s36, s36, 48
    s_lshl_b32 s37, s37, 2
    s_add_u32 s36, s36, s37
    v_lshrrev_b32 v4, 2, v2
    v_mul_u32_u24 v4, 12, v4
    v_and_b32 v5, 3, v2
    v_add3_u32 v4, v4, v5, s36       ; d (fixed)
    v_mov_b32 v34, 288""")
    for t in range(8):
        a.I(f"v_add_u32 v5, {t}, v3")
        elem(8+t,4,5,True)
    a.I(f"s_mov_b32 s35, {FINV}")
    a.L("P_T4s")
    a.I("s_nop 1")
    for p in range(4):
        a.I(f"v_cvt_pk_bf16_f32 v{20+p}, v{8+2*p}, v{9+2*p}")
    a.I("""s_lshl_b32 s3, s3, 10
    s_add_u32 s35, s35, s3
    v_lshlrev_b32 v4, 4, v0
    buffer_store_dwordx4 v[20:23], v4, s[20:23], s35 offen sc1
    s_branch P_end""")
    a.L("P_T5")
    a.I(f"""s_lshr_b32 s32, s3, 7        ; kg
    s_lshr_b32 s33, s3, 6
    s_and_b32 s33, s33, 1          ; hf
    s_lshr_b32 s34, s3, 3
    s_and_b32 s34, s34, 7          ; q
    s_and_b32 s35, s3, 7
    s_lshl_b32 s36, s32, 6
    v_add_u32 v3, s36, v0          ; kd
    v_lshlrev_b32 v4, 1, v3
    s_lshl_b32 s36, s33, 5
    s_lshl_b32 s37, s34, 2
    s_add_u32 s36, s36, s37
    s_lshl_b32 s36, s36, 5         ; 32*(32hf+4q)
    s_lshl_b32 s37, s35, 2
    s_add_u32 s36, s36, s37        ; ks0
    s_mul_i32 s36, s36, 578""")
    for i in range(4):
        for k in range(4):
            a.I(f"""buffer_load_ushort v{8+4*k+i}, v4, s[24:27], s36 offen offset:{578*k}
            buffer_load_ushort v{24+4*k+i}, v4, s[80:83], s36 offen offset:{578*k}""")
        if i<3: a.I(f"s_add_u32 s36, s36, {32*578}")
    a.I(f"""v_lshlrev_b32 v5, 13, v3
    s_lshl_b32 s36, s34, 10
    s_lshl_b32 s37, s33, 9
    s_add_u32 s36, s36, s37
    s_lshl_b32 s37, s35, 6
    s_add_u32 s36, s36, s37
    s_add_u32 s36, s36, {WFI}
    v_cmp_gt_u32 vcc, 289, v3
    s_and_saveexec_b64 s[48:49], vcc
    s_waitcnt vmcnt(0)""")
    for r in range(16):
        a.I(f"v_lshl_or_b32 v{8+r}, v{24+r}, 16, v{8+r}")
    for k in range(4):
        a.I(f"buffer_store_dwordx4 v[{8+4*k}:{11+4*k}], v5, s[20:23], s36 offen offset:{16*k} sc1")
    a.I("s_branch P_end")
    a.L("P_T6")
    a.I(f"""s_sub_u32 s3, s3, {B6}
    v_and_b32 v3, 31, v0           ; l&31
    v_lshrrev_b32 v4, 5, v0        ; hf
    v_bfe_u32 v5, v3, 2, 1
    v_lshlrev_b32 v5, 5, v5
    v_lshrrev_b32 v6, 3, v3
    v_lshl_add_u32 v5, v6, 2, v5
    v_and_b32 v6, 3, v3
    v_add_u32 v5, v5, v6
    s_mov_b32 s41, 0x3a000000      ; 1/2048
    v_lshlrev_b32 v7, 4, v0
    s_cmp_ge_u32 s3, 54
    s_cbranch_scc1 P_end
    s_cmp_ge_u32 s3, 32
    s_cbranch_scc1 P_T6c
    s_cmp_ge_u32 s3, 16
    s_cbranch_scc1 P_T6b""")
    def cs(dst, ang, off):
        a.I(f"""v_add_u32 v30, {off}, v{ang}
        v_and_b32 v30, 0x7ff, v30
        v_cvt_f32_u32 v30, v30
        v_mul_f32 v30, s41, v30
        v_cos_f32 v{dst}, v30""")
    a.I("""s_lshl_b32 s32, s3, 1
    v_lshl_add_u32 v8, v4, 5, s32
    v_mul_u32_u24 v9, v8, v3
    v_add_u32 v10, v9, v3""")
    cs(12,9,0); cs(13,10,0); cs(14,9,1536); cs(15,10,1536)
    a.I(f"""s_lshl_b32 s3, s3, 10
    s_add_u32 s3, s3, {TW1}
    s_nop 0
    buffer_store_dwordx4 v[12:15], v7, s[20:23], s3 offen sc1
    s_branch P_end""")
    a.L("P_T6b")
    import struct
    sc=struct.unpack('<I',struct.pack('<f',1.0/(2048*576)))[0]
    a.I(f"""s_sub_u32 s3, s3, 16
    s_lshr_b32 s32, s3, 3
    s_lshl_b32 s32, s32, 4
    v_add_u32 v8, s32, v5          ; s2
    s_and_b32 s33, s3, 1
    s_lshl_b32 s33, s33, 1         ; r&3
    s_bfe_u32 s34, s3, 0x20001     ; (u>>1)&3 = r>>2
    s_lshl_b32 s34, s34, 3
    s_add_u32 s33, s33, s34
    v_lshl_add_u32 v11, v4, 2, s33 ; k1
    v_mul_u32_u24 v9, v8, v11
    v_add_u32 v10, v9, v8""")
    cs(12,9,0); cs(13,10,0); cs(14,9,1536); cs(15,10,1536)
    a.I(f"""s_mov_b32 s35, {sc:#x}
    s_nop 0
    v_mul_f32 v12, s35, v12
    v_mul_f32 v13, s35, v13
    v_mul_f32 v14, s35, v14
    v_mul_f32 v15, s35, v15
    s_lshl_b32 s3, s3, 10
    s_add_u32 s3, s3, {TW2}
    buffer_store_dwordx4 v[12:15], v7, s[20:23], s3 offen sc1
    s_branch P_end""")
    a.L("P_T6c")
    a.I(f"""s_sub_u32 s3, s3, 32
    s_cmp_ge_u32 s3, 6
    s_cbranch_scc1 P_T6d
    s_lshr_b32 s32, s3, 1
    s_mov_b32 s36, 0
    s_cmp_eq_u32 s32, 1
    s_cselect_b32 s36, 1536, s36
    s_cmp_eq_u32 s32, 2
    s_cselect_b32 s36, 512, s36
    s_and_b32 s33, s3, 1
    s_lshl_b32 s33, s33, 4
    v_lshl_add_u32 v8, v4, 2, s33     ; 16k+4hf
    v_lshlrev_b32 v9, 6, v3           ; a*64""")
    for t in range(8):
        a.I(f"""v_add_u32 v10, {(t&3)+8*(t>>2)}, v8
        v_mul_u32_u24 v10, v10, v9""")
        cs(12+t,10,"s36")
    a.I("s_branch P_T6s")
    a.L("P_T6d")
    a.I(f"""s_sub_u32 s32, s3, 6
    s_cmp_ge_u32 s32, 8
    s_cselect_b32 s36, 1536, 0
    s_bfe_u32 s33, s32, 0x10002       ; phi
    s_lshl_b32 s33, s33, 4
    v_add_u32 v9, s33, v5             ; a
    v_lshlrev_b32 v9, 5, v9           ; a*32
    s_and_b32 s34, s32, 3
    s_lshl_b32 s34, s34, 3
    v_lshl_add_u32 v8, v4, 5, s34     ; 32hf+8ks""")
    for t in range(8):
        a.I(f"""v_add_u32 v10, {t}, v8
        v_mul_u32_u24 v10, v10, v9""")
        cs(12+t,10,"s36")
    a.L("P_T6s")
    a.I("s_nop 1")
    for p in range(4):
        a.I(f"v_cvt_pk_bf16_f32 v{20+p}, v{12+2*p}, v{13+2*p}")
    a.I(f"""s_lshl_b32 s3, s3, 10
    s_add_u32 s3, s3, {CST}
    buffer_store_dwordx4 v[20:23], v7, s[20:23], s3 offen sc1""")
    a.I("s_branch P_end")
```

```python
from common import *
NFIN=53
XF_KS=4*272
XF_TH=72*272
XF_SIZE=2*XF_TH

def xlane_sum(a, x, t, op="v_add_f32"):
    a.I(f"""{op}_dpp v{x}, v{x}, v{x} quad_perm:[1,0,3,2] row_mask:0xf bank_mask:0xf
    {op}_dpp v{x}, v{x}, v{x} quad_perm:[2,3,0,1] row_mask:0xf bank_mask:0xf
    {op}_dpp v{x}, v{x}, v{x} row_half_mirror row_mask:0xf bank_mask:0xf""")

def rbf(a, x):
    a.I(f"""v_cvt_pk_bf16_f32 v{x}, v{x}, v{x}
    v_and_b32 v{x}, 0xffff0000, v{x}""")

def ln_addr(a, vw, vlane, vgoff, vloff, t, ldsbase=0):
    a.I(f"""v_lshrrev_b32 v{t}, 3, v{vlane}          ; rho
    v_lshl_add_u32 v{vgoff}, {vw}, 3, v{t}
    v_mul_u32_u24 v{vgoff}, 1152, v{vgoff}
    v_and_b32 v{t+1}, 7, v{vlane}                  ; c
    v_lshl_add_u32 v{vgoff}, v{t+1}, 4, v{vgoff}
    v_lshrrev_b32 v{vloff}, 2, v{t}                ; theta
    v_mul_u32_u24 v{vloff}, {XF_TH}, v{vloff}
    v_mul_u32_u24 v{t+1}, 272, v{t+1}
    v_add_u32 v{vloff}, v{vloff}, v{t+1}
    v_and_b32 v{t}, 3, v{t}
    v_lshl_add_u32 v{t}, {vw}, 2, v{t}             ; n
    v_lshl_add_u32 v{vloff}, v{t}, 4, v{vloff}""")

def ln_load(a, X, vgoff, srdx, soff, flags=""):
    for j in range(9):
        a.I(f"buffer_load_dwordx4 v[{X+4*j}:{X+4*j+3}], v{vgoff}, s[{srdx}:{srdx+3}], {soff} offen offset:{128*j} {flags}")

def ln_compute(a, X, T, vloff, sA, sB):
    assert T%2==0
    a.I(f"""s_mov_b32 s{sA}, 0x3f803f80
    s_mov_b32 s{sB}, 0x3ae38e39
    v_mov_b32 v{T}, 0
    v_mov_b32 v{T+1}, 0""")
    for i in range(36):
        a.I(f"v_dot2_f32_bf16 v{T+(i&1)}, v{X+i}, s{sA}, v{T+(i&1)}")
    a.I(f"v_add_f32 v{T}, v{T}, v{T+1}")
    xlane_sum(a,T,T+1)
    a.I(f"""v_mul_f32 v{T}, s{sB}, v{T}
    v_mov_b32 v{T+2}, v{T}""")
    rbf(a,T+2)
    a.I(f"""v_mov_b32 v{T+3}, v{T+2}
    v_sub_f32 v{T}, v{T}, v{T+2}
    v_mov_b32 v{T+4}, 0
    v_mov_b32 v{T+5}, 0""")
    for i in range(36):
        u=T+6+2*(i&1)
        a.I(f"""v_lshlrev_b32 v{u}, 16, v{X+i}
        v_and_b32 v{u+1}, 0xffff0000, v{X+i}
        v_pk_add_f32 v[{u}:{u+1}], v[{u}:{u+1}], v[{T+2}:{T+3}] neg_lo:[0,1] neg_hi:[0,1]
        v_pk_fma_f32 v[{T+4}:{T+5}], v[{u}:{u+1}], v[{u}:{u+1}], v[{T+4}:{T+5}]
        v_cvt_pk_bf16_f32 v{X+i}, v{u}, v{u+1}""")
    a.I(f"v_add_f32 v{T+4}, v{T+4}, v{T+5}")
    xlane_sum(a,T+4,T+5)
    a.I(f"""v_mul_f32 v{T+4}, s{sB}, v{T+4}
    v_fma_f32 v{T+4}, -v{T}, v{T}, v{T+4}
    v_max_f32 v{T+4}, 0, v{T+4}""")
    rbf(a,T+4)
    a.I(f"v_add_f32 v{T+4}, 0x3727c5ac, v{T+4}")
    rbf(a,T+4)
    a.I(f"v_sqrt_f32 v{T+4}, v{T+4}")
    rbf(a,T+4)
    a.I(f"""v_rcp_f32 v{T+4}, v{T+4}
    s_nop 0
    v_mov_b32 v{T+5}, v{T+4}""")
    for j in range(9):
        for k in range(4):
            i=4*j+k
            u=T+6+2*(i&1)
            a.I(f"""v_lshlrev_b32 v{u}, 16, v{X+i}
            v_and_b32 v{u+1}, 0xffff0000, v{X+i}
            v_pk_mul_f32 v[{u}:{u+1}], v[{u}:{u+1}], v[{T+4}:{T+5}]
            v_cvt_pk_bf16_f32 v{X+i}, v{u}, v{u+1}""")
        a.I(f"ds_write_b128 v{vloff}, v[{X+4*j}:{X+4*j+3}] offset:{8*272*j}")

def load_54(a, vl16, srdw, sb):
    a.I(f"""s_add_u32 s{sb+1}, s{sb}, 18432
    s_add_u32 s{sb+2}, s{sb}, 36864""")
    for ks in range(18):
        for tau in range(3):
            r=(ks*3+tau)*4
            a.I(f"buffer_load_dwordx4 a[{r}:{r+3}], v{vl16}, s[{srdw}:{srdw+3}], s{sb+tau} offen offset:{(ks&3)*1024} sc1")
        if ks&3==3:
            for tau in range(3): a.I(f"s_add_u32 s{sb+tau}, s{sb+tau}, 4096")

def role_d(a, P):
    a.L(P+"D")
    lane(a,0)
    sdiv(a,3,44,3)
    a.I(f"""s_mul_i32 s43, s3, 3
    s_sub_u32 s43, s44, s43              ; cg
    v_mov_b32 v1, s5""")
    ln_addr(a,"v1",0,2,3,4)
    a.I(f"""v_lshlrev_b32 v6, 4, v0
    v_bfe_u32 v7, v0, 1, 3
    v_lshlrev_b32 v7, 13, v7
    v_and_b32 v8, 1, v0
    v_lshl_add_u32 v7, v8, 6, v7
    v_lshrrev_b32 v8, 4, v0
    v_lshl_add_u32 v7, v8, 4, v7
    v_lshl_add_u32 v10, v8, 4, v6
    s_mov_b32 s40, s3""")
    wait_dbg(a,DB_TAB,NOTH,8)
    a.I(f"""s_lshl_b32 s7, s43, 2
    s_add_u32 s7, s7, s5
    s_mul_i32 s10, s7, {54*1024}
    s_add_u32 s10, s10, {FIMG}""")
    load_54(a,6,84,10)
    a.L(P+"D_loop")
    a.I(f"""s_lshl_b32 s6, s3, 7
    s_add_u32 s6, s6, {FLAGS+XFLAG}""")
    wait_flags(a,6,24,8,6,sleep=1)
    rt(a,4,8)
    a.I(f"""s_mul_i32 s6, s3, {32*1152}
    s_add_u32 s6, s6, {XA}""")
    X=16
    ln_load(a,X,2,20,"s6","sc1")
    a.I("s_waitcnt vmcnt(0)")
    ln_compute(a,X,52,3,12,13)
    a.I("s_waitcnt lgkmcnt(0)\ns_barrier")
    ACC=64; FR=16
    def rd(ks):
        for th in range(2):
            r=FR+((ks%4)*2+th)*4
            a.I(f"ds_read_b128 v[{r}:{r+3}], v10 offset:{th*XF_TH+ks*XF_KS}")
    for ks in range(3): rd(ks)
    for ks in range(18):
        if ks+3<18: rd(ks+3)
        a.I(f"s_waitcnt lgkmcnt({min(3,17-ks)*2})")
        for th in range(2):
            for tau in range(3):
                d=ACC+(th*3+tau)*4; r=FR+((ks%4)*2+th)*4; w=(ks*3+tau)*4
                c="0" if ks==0 else f"v[{d}:{d+3}]"
                a.I(f"v_mfma_f32_16x16x32_bf16 v[{d}:{d+3}], v[{r}:{r+3}], a[{w}:{w+3}], {c}")
    a.I(f"""s_mul_i32 s8, s7, {48*4096}
    s_lshl_b32 s9, s3, 7
    s_add_u32 s8, s8, s9
    s_add_u32 s8, s8, {ZF}""")
    for tau in range(3):
        o=16+4*tau
        for th in range(2):
            d=ACC+(th*3+tau)*4
            a.I(f"""v_cvt_pk_bf16_f32 v{o+2*th}, v{d}, v{d+1}
            v_cvt_pk_bf16_f32 v{o+2*th+1}, v{d+2}, v{d+3}""")
        a.I(f"buffer_store_dwordx4 v[{o}:{o+3}], v7, s[20:23], s8 offen sc1")
        if tau<2: a.I(f"s_add_u32 s8, s8, {16*4096}")
    a.I(f"""s_barrier
    s_add_u32 s3, s3, {ND}
    s_cmp_lt_u32 s3, 64
    s_cbranch_scc1 {P}D_loop
    s_waitcnt vmcnt(0)
    s_barrier
    s_cmp_lg_u32 s5, 0
    s_cbranch_scc1 {P}D_n
    s_lshl_b32 s6, s44, 2
    s_add_u32 s6, s6, {FLAGS+DFLAG}""")
    post_flag(a,6,8)
    a.L(P+"D_n")
    rt(a,5,8)
    a.I(f"""s_cmp_eq_u32 s95, 1
    s_cbranch_scc1 {P}D_e""")
    next_layer(a)
    a.I(f"""s_mov_b32 s3, s40
    s_branch {P}D_loop""")
    a.L(P+"D_e")
    a.I(f"""s_add_u32 s44, s44, {3*(NFIN+NE)}
    s_mov_b32 s42, {NE+ND}
    s_branch {P}E_go""")

def role_e(a, P):
    a.L(P+"Efin")
    a.I(f"""s_cmp_ge_u32 s4, {3*NFIN}
    s_cbranch_scc1 {P}end
    s_load_dwordx2 s[16:17], s[0:1], {KA['ws']}
    s_waitcnt vmcnt(0) lgkmcnt(0)
    s_barrier""")
    srd(a,84,16,WS_SIZE)
    a.I(f"""s_add_u32 s20, s84, {LOFF}
    s_addc_u32 s21, s85, 0
    s_mov_b32 s22, {WS_SIZE-LOFF}
    s_mov_b32 s95, 1
    s_mov_b32 s44, s4
    s_mov_b32 s42, 64
    s_branch {P}E_go""")
    a.L(P+"E")
    a.I(f"""s_sub_u32 s44, s44, {3*ND}
    s_mov_b32 s42, {NE}""")
    a.L(P+"E_go")
    lane(a,0)
    sdiv(a,3,44,3)
    a.I(f"""s_mul_i32 s43, s3, 3
    s_sub_u32 s43, s44, s43              ; cg
    s_mov_b32 s40, s3
    v_lshlrev_b32 v6, 4, v0
    v_lshrrev_b32 v2, 3, v0
    v_lshlrev_b32 v2, 13, v2
    v_and_b32 v3, 7, v0
    v_lshl_add_u32 v2, v3, 4, v2
    v_and_b32 v3, 3, v0
    v_lshrrev_b32 v4, 4, v0
    v_bfe_u32 v5, v0, 2, 2
    v_lshl_add_u32 v5, v4, 3, v5
    v_lshlrev_b32 v5, 6, v5
    v_lshl_add_u32 v5, v3, 3, v5
    v_and_b32 v7, 15, v0
    v_mul_u32_u24 v7, 1152, v7
    v_mul_u32_u24 v8, 24, v4
    v_add_u32 v7, v7, v8""")
    wait_dbg(a,DB_TAB,NOTH,8)
    a.I(f"""s_lshl_b32 s7, s43, 2
    s_add_u32 s7, s7, s5
    s_mul_i32 s10, s7, {54*1024}
    s_add_u32 s10, s10, {FINV}""")
    load_54(a,6,84,10)
    a.L(P+"E_layer")
    a.I(f"""s_load_dwordx2 s[18:19], s[0:1], {KA['out']}
    s_add_u32 s16, s84, {LOFF+XIN}
    s_addc_u32 s17, s85, 0
    s_waitcnt lgkmcnt(0)
    s_cmp_eq_u32 s95, 0
    s_cselect_b32 s18, s16, s18
    s_cselect_b32 s19, s17, s19""")
    srd(a,80,18,XBYTES)
    rt(a,9,8)
    a.I(f"s_mov_b32 s6, {FLAGS+FFLAG}")
    wait_flags(a,6,73,8,6,sleep=1,sh=5)
    rt(a,10,8)
    def dma(seg):
        a.I(f"""s_mul_i32 s6, s5, {9*16*4096}
        s_lshl_b32 s9, {seg}, 7
        s_add_u32 s6, s6, s9
        s_add_u32 s6, s6, {ZO}
        s_mul_i32 s9, s5, 9216
        s_add_u32 s9, s9, s14
        s_xor_b32 s14, s14, 36864""")
        for j in range(9):
            a.I(f"""s_mov_b32 m0, s9
            buffer_load_dwordx4 v2, s[20:23], s6 offen sc1 lds""")
            if j<8: a.I(f"s_add_u32 s6, s6, {16*4096}\ns_add_u32 s9, s9, 1024")
    a.I("s_mov_b32 s14, 0\nv_mov_b32 v12, v5")
    dma("s3")
    a.L(P+"E_loop")
    a.I(f"""s_mul_i32 s10, s3, {32*1152}
    s_mul_i32 s11, s7, 96
    s_add_u32 s10, s10, s11
    s_add_u32 s11, s10, {16*1152}
    s_add_u32 s12, s10, {XA}
    s_add_u32 s13, s11, {XA}""")
    for th in range(2):
        a.I(f"""buffer_load_dwordx4 v[{48+6*th}:{51+6*th}], v7, s[20:23], s{12+th} offen sc1
        buffer_load_dwordx2 v[{52+6*th}:{53+6*th}], v7, s[20:23], s{12+th} offen offset:16 sc1""")
    a.I(f"""s_add_u32 s15, s3, s42
    s_cmp_lt_u32 s15, 64
    s_cbranch_scc1 {P}E_pf
    s_waitcnt vmcnt(4)
    s_branch {P}E_c""")
    a.L(P+"E_pf")
    dma("s15")
    a.I("s_waitcnt vmcnt(13)")
    a.L(P+"E_c")
    a.I("s_barrier")
    ACC=64; FR=16
    def rd(ks):
        for th in range(2):
            r=FR+((ks%4)*2+th)*4
            for rho in range(2):
                a.I(f"ds_read_b64_tr_b16 v[{r+2*rho}:{r+2*rho+1}], v12 offset:{ks*2048+rho*256+th*32}")
    for ks in range(3): rd(ks)
    for ks in range(18):
        if ks+3<18: rd(ks+3)
        a.I(f"s_waitcnt lgkmcnt({min(3,17-ks)*4})")
        for th in range(2):
            for tau in range(3):
                d=ACC+(th*3+tau)*4; r=FR+((ks%4)*2+th)*4; w=(ks*3+tau)*4
                c="0" if ks==0 else f"v[{d}:{d+3}]"
                a.I(f"v_mfma_f32_16x16x32_bf16 v[{d}:{d+3}], a[{w}:{w+3}], v[{r}:{r+3}], {c}")
    a.I("s_waitcnt vmcnt(0)")
    for th in range(2):
        for p in range(6):
            x=48+6*th+p; d=ACC+th*12+2*p
            a.I(f"""v_lshlrev_b32 v10, 16, v{x}
            v_and_b32 v11, 0xffff0000, v{x}
            v_pk_add_f32 v[10:11], v[10:11], v[{d}:{d+1}]
            v_cvt_pk_bf16_f32 v{x}, v10, v11""")
        a.I(f"""buffer_store_dwordx4 v[{48+6*th}:{51+6*th}], v7, s[80:83], s{10+th} offen sc1
        buffer_store_dwordx2 v[{52+6*th}:{53+6*th}], v7, s[80:83], s{10+th} offen offset:16 sc1""")
    a.I(f"""v_xor_b32 v12, 36864, v12
    s_cmp_lt_u32 s15, 64
    s_cselect_b32 s9, 0, s95
    s_cmp_eq_u32 s9, 1
    s_cbranch_scc1 {P}end
    s_waitcnt vmcnt(0)
    s_barrier
    s_or_b32 s9, s5, s95
    s_cmp_lg_u32 s9, 0
    s_cbranch_scc1 {P}E_n
    s_lshl_b32 s6, s3, 4
    s_lshl_b32 s9, s43, 2
    s_add_u32 s6, s6, s9
    s_add_u32 s6, s6, {LOFF+FLAGS+EFLAG}""")
    post_flag(a,6,10)
    a.L(P+"E_n")
    if RT:
        a.I(f"s_cmp_lg_u32 s3, s40\ns_cbranch_scc1 {P}E_n2"); rt(a,11,8); a.L(P+"E_n2")
    rt(a,12,8)
    a.I(f"""s_add_u32 s3, s3, s42
    s_cmp_lt_u32 s3, 64
    s_cbranch_scc1 {P}E_loop
    s_cmp_eq_u32 s95, 1
    s_cbranch_scc1 {P}end""")
    next_layer(a)
    a.I(f"""s_add_u32 s3, s40, {NFIN}
    s_mov_b32 s42, {NE+ND}
    s_branch {P}E_layer""")

def block_l5(a, P):
    name=P+"L5"; E=name+"_end"
    ACC=64; PRE=128; PIM=144; PNG=160; TW=176; W=0; T=40
    C32=0; S32=8; NS32=16; C64=24; S64=56
    a.L(name)
    lane(a,0)
    a.I(f"""s_lshl_b32 s2, s40, 2
    s_add_u32 s2, s2, s5
    s_waitcnt vmcnt(0) lgkmcnt(0)
    s_barrier
    s_cmp_ge_u32 s40, 73
    s_cbranch_scc1 {E}2
    s_mov_b32 s3, s2
    s_min_u32 s2, s2, 288
    s_lshl_b32 s10, s5, 13
    v_lshlrev_b32 v32, 4, v0
    v_lshrrev_b32 v33, 5, v0
    v_bfe_u32 v34, v0, 2, 2
    v_lshl_add_u32 v33, v33, 2, v34
    v_lshlrev_b32 v33, 8, v33
    v_and_b32 v34, 1, v0
    v_lshl_add_u32 v33, v34, 7, v33
    v_bfe_u32 v34, v0, 4, 1
    v_lshl_add_u32 v33, v34, 4, v33
    v_bfe_u32 v34, v0, 1, 1
    v_lshl_add_u32 v33, v34, 3, v33
    s_mov_b32 s14, -1
    s_cmp_eq_u32 s2, 0
    s_cselect_b32 s6, 1, 0
    s_cselect_b32 s14, 0x0f0f0f0f, s14
    s_cmp_eq_u32 s2, 288
    s_cselect_b32 s6, 1, s6
    s_cselect_b32 s14, 0xf0f0f0f0, s14
    s_cselect_b32 s12, 0, s2
    s_cselect_b32 s13, 64, 0
    s_mov_b32 s15, s14
    s_lshl_b32 s12, s12, 13
    s_add_u32 s11, s10, s13
    v_add_u32 v33, s11, v33
    v_and_b32 v35, 31, v0
    v_lshlrev_b32 v35, 8, v35
    v_lshrrev_b32 v34, 5, v0
    v_lshl_add_u32 v35, v34, 7, v35
    v_and_b32 v34, 7, v0
    v_lshl_add_u32 v35, v34, 4, v35
    v_xor_b32 v35, s13, v35
    v_add_u32 v35, s10, v35
    v_lshrrev_b32 v34, 4, v0
    v_lshlrev_b32 v34, 4, v34
    v_xor_b32 v36, v32, v34
    v_add_u32 v36, s10, v36
    v_xor_b32 v37, 64, v36""")
    wait_dbg(a,DB_TAB,NOTH,38)
    a.I(f"s_mov_b32 s8, {CST}")
    for f in range(22):
        a.I(f"buffer_load_dwordx4 a[{4*f}:{4*f+3}], v32, s[84:87], s8 offen offset:{(f&3)*1024} sc1")
        if f&3==3: a.I("s_add_u32 s8, s8, 4096")
    a.I(f"s_mov_b32 s8, {TW1}")
    for u in range(16):
        a.I(f"buffer_load_dwordx4 v[{TW+4*u}:{TW+4*u+3}], v32, s[84:87], s8 offen offset:{(u&3)*1024} sc1")
        if u&3==3: a.I("s_add_u32 s8, s8, 4096")
    for u in range(16):
        a.I(f"buffer_load_dwordx4 a[{96+4*u}:{99+4*u}], v32, s[84:87], s8 offen offset:{(u&3)*1024} sc1")
        if u&3==3: a.I("s_add_u32 s8, s8, 4096")
    a.I(f"""s_lshl_b32 s8, s2, 13
    s_add_u32 s8, s8, {WFI}""")
    for q in range(8):
        a.I(f"buffer_load_dwordx4 v[{W+4*q}:{W+4*q+3}], v32, s[84:87], s8 offen offset:{(q&3)*1024} sc1")
        if q==3: a.I("s_add_u32 s8, s8, 4096")
    rt(a,6,38)
    a.I(f"s_mov_b32 s7, {FLAGS+DFLAG}")
    wait_flags(a,7,3*ND,38,32,sleep=1)
    rt(a,7,38)
    a.I(f"""s_waitcnt vmcnt(0)
    s_cmp_ge_u32 s3, 289
    s_cbranch_scc1 {E}2
    s_add_u32 s7, s12, {ZF}
    s_mov_b32 m0, s10
    s_nop 0""")
    for j in range(4): a.I(f"buffer_load_dwordx4 v32, s[20:23], s7 offen offset:{1024*j} sc1 lds")
    a.I(f"""s_add_u32 s7, s7, 4096
    s_add_u32 m0, s10, 4096
    s_nop 0""")
    for j in range(4): a.I(f"buffer_load_dwordx4 v32, s[20:23], s7 offen offset:{1024*j} sc1 lds")
    a.I("s_waitcnt vmcnt(0)")
    XA_=128
    for pl in range(2):
        for th in range(2):
            for kp in range(2):
                r=XA_+((pl*2+th)*2+kp)*4
                for rho in range(2):
                    a.I(f"ds_read_b64_tr_b16 v[{r+2*rho}:{r+2*rho+1}], v33 offset:{pl*64+kp*4096+rho*2048+th*32}")
    a.I(f"""s_waitcnt lgkmcnt(0)
    s_cmp_eq_u32 s6, 0
    s_cbranch_scc1 {name}_c""")
    for i in range(16): a.I(f"v_mov_b32 v{XA_+16+i}, 0")
    a.I("s_nop 1")
    a.L(name+"_c")
    def mm(d, A, B, first):
        c="0" if first else f"v[{d}:{d+15}]"
        a.I(f"v_mfma_f32_32x32x16_bf16 v[{d}:{d+15}], {A}, {B}, {c}")
    RE=lambda t: ACC+16*t
    IM=lambda t: ACC+32+16*t
    xa=lambda pl,th,kp: vr(XA_+((pl*2+th)*2+kp)*4,4)
    for th in range(2):
        for kp in range(2):
            mm(RE(th), xa(0,th,kp), ar(C32+4*kp,4), kp==0)
            mm(IM(th), xa(1,th,kp), ar(C32+4*kp,4), kp==0)
        for kp in range(2):
            mm(RE(th), xa(1,th,kp), ar(S32+4*kp,4), False)
            mm(IM(th), xa(0,th,kp), ar(NS32+4*kp,4), False)
    def cmul(re, im, c, s, sign, i, outs):
        t=T+4*(i&1)
        n1="" if sign>0 else " neg_lo:[1,0,0] neg_hi:[1,0,0]"
        n2=" neg_lo:[1,0,0] neg_hi:[1,0,0]" if sign>0 else ""
        a.I(f"""v_pk_mul_f32 v[{t}:{t+1}], v[{re}:{re+1}], v[{c}:{c+1}]
        v_pk_mul_f32 v[{t+2}:{t+3}], v[{im}:{im+1}], v[{c}:{c+1}]
        v_pk_fma_f32 v[{t}:{t+1}], v[{im}:{im+1}], v[{s}:{s+1}], v[{t}:{t+1}]{n1}
        v_pk_fma_f32 v[{t+2}:{t+3}], v[{re}:{re+1}], v[{s}:{s+1}], v[{t+2}:{t+3}]{n2}""")
        for dst,which,neg in outs:
            b=t+2*which; m="-" if neg else ""
            a.I(f"v_cvt_pk_bf16_f32 v{dst}, {m}v{b}, {m}v{b+1}")
    for th in range(2):
        for p in range(8):
            u=8*th+p
            cmul(RE(th)+2*p, IM(th)+2*p, TW+4*u, TW+4*u+2, +1, u, [(PRE+u,0,False),(PIM+u,1,False),(PNG+u,0,True)])
    for ph in range(2):
        for ks in range(4):
            mm(RE(ph), ar(C64+(ph*4+ks)*4,4), vr(PRE+4*ks,4), ks==0)
            mm(IM(ph), ar(C64+(ph*4+ks)*4,4), vr(PIM+4*ks,4), ks==0)
        for ks in range(4):
            mm(RE(ph), ar(S64+(ph*4+ks)*4,4), vr(PIM+4*ks,4), False)
            for i in range(4): a.I(f"v_accvgpr_read_b32 v{TW+(ph*4+ks)*8+i}, a{96+(ph*4+ks)*8+i}")
            mm(IM(ph), ar(S64+(ph*4+ks)*4,4), vr(PNG+4*ks,4), False)
            for i in range(4,8): a.I(f"v_accvgpr_read_b32 v{TW+(ph*4+ks)*8+i}, a{96+(ph*4+ks)*8+i}")
    for ph in range(2):
        for p in range(8):
            u=8*ph+p; w=W+2*u; q=48+4*(u&1)
            a.I(f"""v_lshlrev_b32 v{q}, 16, v{w}
            v_lshlrev_b32 v{q+1}, 16, v{w+1}
            v_and_b32 v{q+2}, 0xffff0000, v{w}
            v_and_b32 v{q+3}, 0xffff0000, v{w+1}""")
            cmul(RE(ph)+2*p, IM(ph)+2*p, q, q+2, -1, u, [(PRE+u,0,False),(PIM+u,1,False),(PNG+u,1,True)])
    for th in range(2):
        for ks in range(4):
            mm(RE(th), vr(PRE+4*ks,4), ar(C64+(th*4+ks)*4,4), ks==0)
            mm(IM(th), vr(PIM+4*ks,4), ar(C64+(th*4+ks)*4,4), ks==0)
        for ks in range(4):
            mm(RE(th), vr(PNG+4*ks,4), ar(S64+(th*4+ks)*4,4), False)
            mm(IM(th), vr(PRE+4*ks,4), ar(S64+(th*4+ks)*4,4), False)
    a.I("s_waitcnt vmcnt(0)")
    for th in range(2):
        for p in range(8):
            u=8*th+p
            cmul(RE(th)+2*p, IM(th)+2*p, TW+4*u, TW+4*u+2, -1, u, [(PRE+u,0,False),(PIM+u,1,False)])
    for th in range(2):
        for rho in range(2):
            mm(RE(th), vr(PRE+8*th+4*rho,4), ar(C32+4*rho,4), rho==0)
            mm(IM(th), vr(PIM+8*th+4*rho,4), ar(C32+4*rho,4), rho==0)
        for rho in range(2):
            mm(RE(th), vr(PIM+8*th+4*rho,4), ar(NS32+4*rho,4), False)
            mm(IM(th), vr(PRE+8*th+4*rho,4), ar(S32+4*rho,4), False)
    a.I(f"s_add_u32 s12, s12, {ZO}")
    for k in range(8):
        for i in range(4): a.I(f"v_cvt_pk_bf16_f32 v{4*k+i}, v{ACC+8*k+2*i}, v{ACC+8*k+2*i+1}")
        a.I(f"v_xor_b32 v38, {16*k}, v35\nds_write_b128 v38, v[{4*k}:{4*k+3}]")
    for k in range(8): a.I(f"ds_read_b128 v[{4*k}:{4*k+3}], v{36+(k&1)} offset:{1024*k}")
    a.I("s_mov_b64 exec, s[14:15]")
    for k in range(8):
        a.I(f"s_waitcnt lgkmcnt({7-k})\nbuffer_store_dwordx4 v[{4*k}:{4*k+3}], v32, s[20:23], s12 offen offset:{1024*(k&3)} sc1")
        if k==3: a.I("s_add_u32 s12, s12, 4096")
    a.I("s_mov_b64 exec, -1\ns_waitcnt vmcnt(0)")
    a.L(E+"2")
    a.I(f"""s_barrier
    s_cmp_lg_u32 s5, 0
    s_cbranch_scc1 {E}
    s_lshl_b32 s7, s40, 5
    s_add_u32 s7, s7, {FLAGS+FFLAG}""")
    post_flag(a,7,38)
    a.L(E)
    rt(a,8,38)
    a.I(f"""s_cmp_eq_u32 s95, 1
    s_cbranch_scc1 {P}end""")
    next_layer(a)
    a.I(f"""s_cmp_eq_u32 s41, 0
    s_cbranch_scc1 {P}C
    s_branch {P}L5""")
```

```python
from chaindefs import *
from rawload import *

def chain_setup(a, P, dbg=False):
    def T(i):
        if dbg: a.I(f"s_memtime s[50:51]\ns_waitcnt lgkmcnt(0)\ns_sub_u32 s{96+i}, s50, s88")
    flg=FLAGS
    a.L(P+"A")
    T(0)
    a.I(f"""v_and_b32 v10, 15, v0
    v_lshrrev_b32 v11, 4, v0
    v_mov_b32 v{IDX}, 0x4444
    v_mov_b32 v12, 0xeeee
    v_and_b32 v13, 2, v0
    v_cmp_eq_u32 vcc, 2, v13
    v_cndmask_b32 v{IDX}, v{IDX}, v12, vcc
    s_lshl_b32 s8, s5, 9
    v_lshrrev_b32 v12, 3, v10
    v_lshl_add_u32 v13, v12, 8, s8
    v_and_b32 v12, 7, v10
    v_lshl_add_u32 v13, v12, 4, v13
    v_lshl_add_u32 v13, v11, 2, v13
    v_add_u32 v13, {TQ}, v13
    v_lshl_add_u32 v14, v0, 3, s8
    v_add_u32 v14, {TK}, v14
    v_lshl_or_b32 v{PK1}, v14, 16, v13
    v_lshrrev_b32 v12, 1, v11
    v_lshlrev_b32 v13, 8, v12
    v_lshlrev_b32 v14, 9, v12
    v_and_b32 v12, 1, v11
    v_lshl_add_u32 v13, v12, 6, v13
    v_lshl_add_u32 v14, v12, 6, v14
    v_bfe_u32 v12, v0, 3, 1
    v_lshl_add_u32 v13, v12, 7, v13
    v_bfe_u32 v12, v0, 2, 1
    v_lshl_add_u32 v13, v12, 4, v13
    v_and_b32 v12, 1, v0
    v_lshl_add_u32 v13, v12, 3, v13
    v_add_u32 v13, {TQ}, v13
    v_bfe_u32 v12, v0, 2, 2
    v_lshl_add_u32 v14, v12, 3, v14
    v_and_b32 v12, 3, v0
    v_lshl_add_u32 v14, v12, 7, v14
    v_add_u32 v14, {TK}, v14
    v_lshl_or_b32 v{PK2}, v14, 16, v13
    v_lshrrev_b32 v12, 1, v11
    v_lshlrev_b32 v13, 4, v12
    v_bfe_u32 v12, v0, 1, 2
    v_lshl_add_u32 v13, v12, 2, v13
    v_and_b32 v12, 1, v11
    v_lshl_add_u32 v13, v12, 1, v13
    v_and_b32 v12, 1, v0
    v_add_u32 v13, v13, v12
    v_lshl_add_u32 v13, v13, 4, s8
    v_add_u32 v13, {OL}, v13
    s_lshr_b32 s9, s4, 3
    s_mul_i32 s9, s9, 18
    s_and_b32 s10, s4, 7
    s_add_u32 s9, s9, s10
    s_lshl_b32 s10, s5, 3
    s_add_u32 s9, s9, s10                ; 18*(h>>3)+(h&7)+8w
    s_lshr_b32 s10, s4, 1
    s_mul_i32 s10, s10, 18
    s_and_b32 s11, s4, 1
    s_add_u32 s10, s10, s11
    s_add_u32 s10, s10, 16               ; 18*(h>>1)+16+(h&1)
    s_cmp_lt_u32 s5, 2
    s_cselect_b32 s40, s9, s10           ; u
    s_cselect_b32 s41, 1, 0
    s_cmp_eq_u32 s5, 2
    s_cselect_b32 s9, 1, 0
    s_cmp_lt_u32 s4, 8
    s_cselect_b32 s10, 1, 0
    s_and_b32 s9, s9, s10
    s_or_b32 s41, s41, s9
    s_min_u32 s40, s40, 71""")
    sdiv(a,42,40,18)
    a.I(f"""s_mul_i32 s9, s42, 18
    s_sub_u32 s43, s40, s9               ; lambda
    v_and_b32 v18, 7, v10
    s_cmp_ge_u32 s43, 16
    s_cbranch_scc1 {P}A_u8
    s_lshl_b32 s44, s42, 7
    s_and_b32 s9, s43, 1
    s_lshl_b32 s9, s9, 5
    s_add_u32 s44, s44, s9
    s_lshr_b32 s9, s43, 3
    s_lshl_b32 s9, s9, 6
    s_add_u32 s44, s44, s9
    v_lshl_add_u32 v14, v18, 2, s44
    s_bfe_u32 s9, s43, 0x20001
    v_mov_b32 v15, s9                    ; g_src
    s_branch {P}A_uj""")
    a.L(P+"A_u8")
    a.I(f"""s_lshl_b32 s44, s42, 4
    s_add_u32 s44, s44, 512
    v_and_b32 v12, 3, v10
    v_lshl_add_u32 v14, v12, 2, s44
    s_sub_u32 s9, s43, 16
    s_lshl_b32 s9, s9, 1
    v_lshrrev_b32 v15, 2, v18
    v_add_u32 v15, s9, v15""")
    a.L(P+"A_uj")
    a.I("""v_and_b32 v12, 2, v11
    v_add_u32 v14, v14, v12              ; c = c0 + 2*(g>>1)""")
    a.I(f"""v_lshrrev_b32 v16, 4, v14
    v_lshlrev_b32 v16, 8, v16            ; (c>>4)*256
    v_lshl_add_u32 v16, v15, 6, v16
    v_bfe_u32 v12, v14, 1, 1
    v_lshl_add_u32 v16, v12, 5, v16
    v_and_b32 v12, 1, v11
    v_lshl_add_u32 v16, v12, 4, v16
    v_bfe_u32 v12, v14, 2, 2
    v_lshl_add_u32 v16, v12, 2, v16
    v_lshl_or_b32 v{PK3}, v16, 16, v13
    v_lshrrev_b32 v12, 3, v0
    v_lshlrev_b32 v13, 12, v12
    v_and_b32 v12, 7, v0
    v_lshl_add_u32 v13, v12, 4, v13
    v_lshrrev_b32 v12, 5, v0
    v_lshlrev_b32 v14, 12, v12
    v_and_b32 v12, 31, v0
    v_lshl_add_u32 v14, v12, 2, v14
    v_mov_b32 v{PK4}, v13
    v_mov_b32 v19, v14
    ; Asel -> v[20:23]
    v_mov_b32 v12, 0x3f80
    v_mov_b32 v13, 0x3f800000
    v_and_b32 v14, 4, v10
    v_cmp_eq_u32 vcc, 4, v14
    v_cndmask_b32 v12, v12, v13, vcc
    v_and_b32 v14, 2, v10
    v_cmp_eq_u32 vcc, 0, v14
    v_cndmask_b32 v12, 0, v12, vcc
    v_lshrrev_b32 v13, 3, v10
    v_lshlrev_b32 v13, 1, v13
    v_and_b32 v14, 1, v10
    v_add_u32 v13, v13, v14
    v_cmp_eq_u32 vcc, 0, v13
    v_cndmask_b32 v20, 0, v12, vcc
    v_cmp_eq_u32 vcc, 1, v13
    v_cndmask_b32 v21, 0, v12, vcc
    v_cmp_eq_u32 vcc, 2, v13
    v_cndmask_b32 v22, 0, v12, vcc
    v_cmp_eq_u32 vcc, 3, v13
    v_cndmask_b32 v23, 0, v12, vcc
    v_lshlrev_b32 v{KVR}, 4, v0
    ds_write_b128 v{KVR}, v[20:23] offset:{SPARE}
    s_mul_i32 s9, s5, {WLW}
    s_add_u32 s45, s9, {WLB}
    v_add_u32 v{WL}, s45, v{KVR}
    s_mul_i32 s32, s5, {18*4096}
    s_lshl_b32 s9, s4, 7
    s_add_u32 s32, s32, s9
    s_add_u32 s32, s32, {PART}
    s_add_u32 s11, s32, {8*4096}
    s_add_u32 s12, s32, {16*4096}
    s_lshl_b32 s33, s40, 12
    s_add_u32 s33, s33, {PART}
    s_mov_b32 s35, {SCL}
    s_mov_b32 s48, {SCL}
    s_mov_b32 s49, {SCL}
    s_lshl_b32 s9, s4, 2
    s_add_u32 s9, s9, s5
    s_lshl_b32 s47, s9, 12
    s_add_u32 s47, s47, {WOC}
    s_lshl_b32 s54, s4, 2
    s_add_u32 s54, s54, {HINT}
    s_and_b32 s55, s4, 7
    s_lshl_b32 s55, s55, 8
    s_add_u32 s55, s55, {HINT}""")
    T(1)
    VA,VN,VO,V8,TRV,TRN,TR8,VB,TVL=8,9,12,13,14,15,16,17,18
    a.I(f"""v_lshrrev_b32 v20, 2, v0             ; a
    v_and_b32 v21, 3, v0                 ; piece / c4
    v_and_b32 v22, 3, v20
    v_lshlrev_b32 v22, 4, v22
    v_add_u32 v22, v22, v11              ; 16*(a&3)+(a>>2)
    v_lshlrev_b32 v{VA}, 13, v22
    v_lshl_add_u32 v{VA}, v21, 4, v{VA}
    v_lshlrev_b32 v{VN}, 13, v20
    v_lshl_add_u32 v{VN}, v21, 4, v{VN}""")
    def rowO(dst,x,t):
        a.I(f"""v_bfe_u32 v{t}, v{x}, 3, 1
        v_lshlrev_b32 v{dst}, 2, v{t}
        v_bfe_u32 v{t}, v{x}, 2, 1
        v_lshl_add_u32 v{dst}, v{t}, 1, v{dst}
        v_bfe_u32 v{t}, v{x}, 1, 1
        v_lshl_add_u32 v{dst}, v{t}, 3, v{dst}
        v_and_b32 v{t}, 1, v{x}
        v_add_u32 v{dst}, v{dst}, v{t}""")
    rowO(22,20,23)
    a.I(f"""v_mul_u32_u24 v{VO}, 1152, v22
    v_lshl_add_u32 v{VO}, v21, 4, v{VO}
    v_lshrrev_b32 v24, 1, v0""")
    rowO(22,24,23)
    a.I(f"""v_lshrrev_b32 v23, 5, v0
    v_lshl_add_u32 v22, v23, 4, v22
    v_mul_u32_u24 v{V8}, 1152, v22
    v_and_b32 v23, 1, v0
    v_lshl_add_u32 v{V8}, v23, 4, v{V8}
    ; 8gb+r
    v_and_b32 v22, 3, v20
    v_lshl_add_u32 v22, v11, 3, v22
    s_lshl_b32 s9, s5, 12
    s_add_u32 s9, s9, {KVL}
    v_lshlrev_b32 v23, 6, v22
    v_lshl_add_u32 v24, v21, 4, v23
    v_add_u32 v{TRV}, s9, v24
    v_add_u32 v{TVL}, s45, v24
    v_lshl_add_u32 v24, v21, 3, v23
    v_add_u32 v{TRN}, s9, v24
    v_lshlrev_b32 v23, 5, v22
    v_lshl_add_u32 v24, v21, 3, v23
    v_add_u32 v{TR8}, s9, v24
    v_add_u32 v{VB}, s9, v{KVR}
    s_lshl_b32 s30, s4, 8
    s_lshl_b32 s9, s5, 6
    s_add_u32 s30, s30, s9               ; h*256 + w*64
    s_mul_i32 s31, s4, 147456
    s_lshl_b32 s9, s5, 5
    s_add_u32 s36, s31, s9
    s_lshl_b32 s9, s5, 8
    s_add_u32 s31, s31, s9""")
    chunks=[]
    TMP=[('v',24),('v',32)]
    def off(rt,k): return (rt[0],rt[1]+k)
    for j in range(9):
        for mat in range(3):
            k=KAP[j]; u=[('p',j,2*mat),('p',j,2*mat+1)]
            c=dict(srd=SQ+4*mat, voff=[VA if k<8 else VN]*4, soff=[(30,(64*k+(4*i if k<8 else 16*i))*8192) for i in range(4)])
            if u[1] in LDSU:
                s1=LDSU.index(u[1])+1
                dst=[TMP[0] if u[0] in LDSU else regof(u[0]), TMP[1]]
                base=(s1-1)*2048
                c.update(grp=None, m0=(45,base), rd=[(off(dst[t],4*hb+2*rho),TVL,base+hb*2048+rho*256+t*8) for t in range(2) for hb in range(2) for rho in range(2)])
                c['wb']=[(off(dst[t],4*hb),WL,base+t*2048+hb*1024) for t in range(2) for hb in range(2) if u[t] in LDSU]
            else:
                dst=[regof(u[0]),regof(u[1])]
                c.update(grp=[off(dst[i>>1],4*(i&1)) for i in range(4)], rd=[(off(dst[t],4*hb+2*rho),TRV,hb*2048+rho*256+t*8) for t in range(2) for hb in range(2) for rho in range(2)])
            chunks.append(c)
    dst=[regof(('o',8,0)),regof(('o',8,1))]
    chunks.append(dict(srd=SQ+12, voff=[V8]*4, soff=[(36,32*i*1152+1024) for i in range(4)], grp=[off(dst[i>>1],4*(i&1)) for i in range(4)],
        rd=[(off(dst[kp],4*hb+2*rho),TR8,kp*2048+hb*1024+rho*128) for kp in range(2) for hb in range(2) for rho in range(2)]))
    for tp in range(4):
        for kp in range(2):
            u=[('o',2*tp,kp),('o',2*tp+1,kp)]
            dst=[('v',40),('v',48)] if u[0] in L2U else [regof(u[0]),regof(u[1])]
            chunks.append(dict(srd=SQ+12, voff=[VO]*4, soff=[(31,(64*kp+16*i)*1152+64*tp) for i in range(4)], grp=[off(dst[i>>1],4*(i&1)) for i in range(4)],
                rd=[(off(dst[t],4*hb+2*rho),TRN,hb*2048+rho*256+t*32) for t in range(2) for hb in range(2) for rho in range(2)]))
    rawload(a,chunks,VB,flags=os.environ.get("CFL",""),maxout=int(os.environ.get("CMO",56)))
    T(2)
    a.I(f"v_mov_b32 v{L16}, v{KVR}")
    for i in range(4): a.I(f"buffer_store_dwordx4 v[{40+4*i}:{43+4*i}], v{L16}, s[20:23], s47 offen offset:{1024*i}")
    wait_dbg(a,DB_INIT,NOTH,8,sleep=1)
    a.I(f"v_bfe_u32 v8, v{L16}, 2, 5")
    a.L(P+"A_bw")
    a.I(f"""global_load_dword v9, v8, s[28:29] sc1
    s_waitcnt vmcnt(0)
    v_readlane_b32 s9, v9, 0
    s_mov_b32 s10, 0
    s_cmp_ge_u32 s9, 32
    s_cbranch_scc1 {P}A_bd
    s_mov_b32 s10, 1""")
    for x in range(1,8): a.I(f"v_readlane_b32 s8, v9, {x}\ns_add_u32 s9, s9, s8")
    a.I(f"""s_cmp_ge_u32 s9, 256
    s_cbranch_scc1 {P}A_bd""")
    spin_tail(a,P+"A_bw",None,sleep=1)
    a.L(P+"A_bd")
    T(3)
    a.I(f"""s_mov_b32 s6, 0
    s_mov_b32 s36, 63
    s_mov_b32 s14, {MEMB}
    s_mov_b32 s44, 0
    s_lshl_b32 s46, s5, 11
    s_lshr_b32 s52, s5, 1
    s_lshl_b32 s52, s52, 12
    s_add_u32 s58, s52, 2048
    s_cmp_eq_u32 s5, 3
    s_cselect_b32 s52, 8192, s52
    s_cselect_b32 s58, 8192, s58
    s_cmp_eq_u32 s5, 1
    s_cselect_b32 s40, 1, 0
    s_cmp_eq_u32 s41, 0
    s_cselect_b32 s40, 2, s40""")
    a.L(P+"A_layer")
    a.I(f"""s_lshl_b32 s37, s4, 13
    s_add_u32 s37, s37, {flg}
    s_add_u32 s37, s37, s44
    s_lshl_b32 s38, s4, 21
    s_add_u32 s38, s38, s44
    s_lshl_b32 s9, s5, 10
    s_add_u32 s57, s38, s9
    s_add_u32 s57, s57, {KVM-4096}
    s_add_u32 s38, s38, s46
    s_add_u32 s39, s46, {KVL}
    v_add_u32 v{KVR}, {KVL}, v{L16}
    s_waitcnt vmcnt(0) lgkmcnt(0)
    s_barrier""")
    rt(a,1,9)
    a.L(P+"A_f0")
    a.I(f"""buffer_load_dword v9, off, s[20:23], s37 sc1
    s_waitcnt vmcnt(0)
    v_readfirstlane_b32 s9, v9
    s_cmp_eq_u32 s9, 1
    s_cbranch_scc1 {P}A_f0d""")
    spin_tail(a,P+"A_f0",None,sleep=1)
    a.L(P+"A_f0d")
    T(4)
    rt(a,2,9)
    a.I("s_mov_b32 m0, s39\ns_nop 0")
    for j in range(2): a.I(f"buffer_load_dwordx4 v{L16}, s[20:23], s38 offen offset:{1024*j} sc1 lds")
    a.I(f"""s_add_u32 s37, s37, 128
    s_xor_b32 s39, s39, 8192
    s_add_u32 s53, s38, 8192
    s_add_u32 s38, s38, 16384
    s_mov_b32 s56, 0
    s_mov_b32 s59, {MEMB+4*9216}
    s_add_u32 s34, s46, {MEMB+4*9216+1024}
    s_cmp_eq_u32 s10, 0
    s_cbranch_scc0 {P}S_entry
    s_branch {P}F_entry""")

from chainloop import chain_loop

def gen_mega(a, name, dbg=False):
    P="M_"
    kernel_begin(a,name)
    a.I(f"""s_cmp_ge_u32 s2, 256
    s_cbranch_scc1 {P}end
    s_load_dwordx2 s[16:17], s[0:1], {KA['ws']}
    s_load_dwordx2 s[28:29], s[0:1], {KA['dbg']}
    s_load_dwordx2 s[18:19], s[0:1], {KA['x']}
    s_getreg_b32 s3, hwreg(HW_REG_XCC_ID, 0, 4)
    v_lshrrev_b32 v1, 6, v0
    v_and_b32 v0, 63, v0
    v_readfirstlane_b32 s5, v1
    s_mov_b32 s94, {BUDGET}
    s_mov_b32 s90, 0
    s_mov_b32 s91, 0
    s_mov_b32 s92, 0
    s_mov_b32 s93, 0""")
    if dbg: a.I("s_memtime s[88:89]")
    a.I("s_waitcnt lgkmcnt(0)")
    srd(a,20,16,WS_SIZE)
    srd(a,84,16,WS_SIZE)
    a.I("s_mov_b32 s95, 0")
    srd(a,24,18,XBYTES)
    weight_srds(a)
    def prefetch():
        a.I(f"""s_lshl_b32 s8, s2, 2
        s_add_u32 s8, s8, s5
        s_lshl_b32 s8, s8, 10
        v_lshlrev_b32 v1, 4, v0""")
        n=0
        for t in range(5):
            for m in range(4):
                a.I(f"buffer_load_dwordx4 v[64:67], v1, s[{SQ+4*m}:{SQ+4*m+3}], s8 offen ; nowarn"); n+=1
            a.I(f"s_add_u32 s8, s8, {1024*1024}")
    a.I(f"""v_mov_b32 v4, {SPARE}
    s_cmp_lg_u32 s5, 0
    s_cbranch_scc1 {P}el_pf
    s_and_b32 s3, s3, 7
    s_lshl_b32 s3, s3, 2
    s_lshr_b32 s3, {os.environ.get("XPERM","0x43210765")}, s3
    s_and_b32 s3, s3, 7
    s_lshl_b32 s6, s3, 2
    v_mov_b32 v2, s6
    v_mov_b32 v3, 1
    s_mov_b64 exec, 1
    global_atomic_add v5, v2, v3, s[28:29] sc0
    s_mov_b64 exec, -1""")
    prefetch()
    a.I(f"""s_waitcnt vmcnt(20)
    v_readfirstlane_b32 s7, v5
    s_lshl_b32 s4, s3, 5
    s_add_u32 s4, s4, s7
    s_cmp_lt_u32 s7, 32
    s_cbranch_scc1 {P}el_pub
    v_mov_b32 v2, 32
    s_mov_b64 exec, 1
    global_atomic_add v5, v2, v3, s[28:29] sc0
    s_waitcnt vmcnt(0)
    s_mov_b64 exec, -1
    v_readfirstlane_b32 s7, v5
    v_and_b32 v2, 7, v0
    v_lshlrev_b32 v2, 2, v2""")
    a.L(P+"el_w")
    a.I(f"""global_load_dword v5, v2, s[28:29] sc1
    s_waitcnt vmcnt(0)
    s_mov_b32 s8, 0""")
    for x in range(8):
        a.I(f"v_readlane_b32 s{40+x}, v5, {x}\ns_add_u32 s8, s8, s{40+x}")
    a.I(f"""s_cmp_ge_u32 s8, 256
    s_cbranch_scc1 {P}el_s""")
    spin_tail(a,P+"el_w",None,sleep=2)
    a.L(P+"el_s")
    a.I("s_mov_b32 s4, 255")
    for x in range(8):
        a.I(f"""s_min_u32 s9, s{40+x}, 32
        s_sub_u32 s10, 32, s9
        s_add_u32 s11, s9, s7
        s_add_u32 s11, s11, {32*x}
        s_cmp_lt_u32 s7, s10
        s_cselect_b32 s4, s11, s4
        s_cselect_b32 s7, 0x10000, s7
        s_sub_u32 s7, s7, s10""")
    a.L(P+"el_pub")
    a.I(f"""v_mov_b32 v5, s4
    ds_write_b32 v4, v5
    s_waitcnt lgkmcnt(0)
    s_branch {P}el_done""")
    a.L(P+"el_pf")
    prefetch()
    a.L(P+"el_done")
    a.I(f"""s_barrier
    ds_read_b32 v5, v4
    s_waitcnt lgkmcnt(0)
    v_readfirstlane_b32 s4, v5
    s_barrier""")
    rt(a,0,5)
    a.I(f"""s_cmp_lt_u32 s4, 32
    s_cbranch_scc1 {P}A
    s_cmp_lt_u32 s4, 160
    s_cbranch_scc1 {P}B""")
    a.I(f"""s_sub_u32 s44, s4, 208
    s_cmp_ge_u32 s4, 224
    s_cbranch_scc1 {P}O
    s_and_b32 s8, s4, 31
    s_cmp_lt_u32 s8, 24
    s_cbranch_scc1 {P}C
    s_sub_u32 s44, s8, 24
    s_cmp_ge_u32 s4, 192
    s_cselect_b32 s9, 8, 0
    s_add_u32 s44, s44, s9
    s_branch {P}O""")
    a.L(P+"end")
    a.I("s_endpgm")
    import prep, bstage
    chain_setup(a,P,dbg)
    chain_loop(a,P+"F","",dbg)
    chain_loop(a,P+"S","sc1",False)
    role_b(a,P)
    role_c(a,P)
    prep.others(a,P)
    bstage.role_d(a,P)
    bstage.role_e(a,P)
    bstage.block_l5(a,P)
    return (name, f"; @launch grid=(256,1,1) block=(256,1,1) lds={LDS_LA}", kernel_desc(name, 512, 102, accum=256))
```

```python
from la import *
MEML=0; TQ=9216; TK=11264; OL=13312; SPARE=15360; KVL=16384; WLB=32768; WLW=32768
PSLOT=72*4096
HINT=MEMB+0x10000
SCR=MEMB+0x20000
L16=0; IDX=1; KVR=2; WL=3; PK1=4; PK2=5; PK3=6; PK4=7
WIN=8; AQ=24; AK=32; AV=40; STG=48
W=lambda i: WIN+4*i
KAP=[0,2,4,6,8,1,3,5,7]
TORD=[8,0,1,2,3,4,5,6,7]
def units():
    U=[('p',j,nm) for j in range(5) for nm in (0,2,4,1,3,5)]
    U+=[('p',j,nm) for j,nm in ((5,0),(6,0),(7,0),(5,1),(6,1),(8,0),(7,1),(8,1),(5,2),(6,2),(5,3),(7,2),(8,2),(7,3),(6,3),(8,3))]
    D=[('p',j,nm) for j in range(5,9) for nm in (4,5)]
    O=[('o',t,kp) for t in TORD for kp in range(2)]
    return U,D,O
U1,UD,UO=units()
NL=15
LIDX=[5,8,11,14,17,20,23,26,29,31,34,38,40,41,43]
LDSU=[U1[i] for i in LIDX]
L2T=int(os.environ.get('L2T',6))
L2U=[('o',L2T,0),('o',L2T+1,0)]
REGU=[u for u in U1+UD+UO if u not in LDSU and u not in L2U]
assert len(REGU)==55
def regof(u):
    i=REGU.index(u)
    return ('a',8*i) if i<32 else ('v',72+8*(i-32))
def rtxt(u,half=None):
    f,b=regof(u)
    if half is None: return f"{f}[{b}:{b+7}]"
    return f"{f}[{b+4*half}:{b+4*half+3}]"
```

```python
from chaindefs import *
import os
G=lambda n,d: int(os.environ.get(n,d))
D_LATE=G("DLATE",18)
D_E0=G("DE0",2)
D_NR=G("DNR",0)
U_LL=G("ULL",2)
U_LC=G("ULC",18)
HCHK=G("HCHK",11)
HPOLL=[int(x) for x in os.environ.get("HPOLL","0,1,2,3,6,8,10").split(",")]
U_R=G("UR",6)
UBB=G("UBB",7)
HINT_ON=G("HINT",0)
SBD=G("SBD",2)
DSC=G("DSC",6)
AGE=G("AGE",5)
LEAD=G("LEAD",6)
APL=G("APL",0)
G2=G("G2",1)
R2=G("R2",1)
D_E1=G("DE1",3)
D_G=G("DG",6)

def chain_loop(a, P, st, dbg):
    EPOS=[int(x) for x in os.environ.get("EPOS","").split(",") if x]
    def EM(i):
        if dbg and i in EPOS: k=EPOS.index(i); a.I(f"s_memtime s[{60+2*k}:{61+2*k}]")
    def E(i):
        if EPOS: return
        if dbg and 100 in dbg: a.I(f"s_memtime s[{60+2*i}:{61+2*i}]")
    cnt=lambda r: a.I(f"s_add_u32 s{r}, s{r}, 1") if dbg else None
    q=LQ(a)
    BUF=[1,0,1,0,1,0,1,0]+[(j+1)%3 if False else None for j in range(8,NL)]
    BUF=[1,0,1,0,1,2,0,1,2,0,1,2,0,1,2]
    BUF=[j%3 for j in range(NL)]
    NXT={}
    for j in range(NL):
        n=[k for k in range(j+1,NL) if BUF[k]==BUF[j]]
        if n: NXT[j]=n[0]
    def stg_read(j):
        b=STG+8*BUF[j]
        q.op(f"ds_read_b128 v[{b}:{b+3}], v{WL} offset:{(j+1)*2048}",('w',j))
        q.op(f"ds_read_b128 v[{b+4}:{b+7}], v{WL} offset:{(j+1)*2048+1024}",('w',j))
    def z2(r): return f"v_mov_b64 v[{r}:{r+1}], 0"
    def pace(n,r):
        for i in range(n): a.I(f"v_mov_b32 v{r}, 0\ns_nop 2" if not os.environ.get("NOPACE") else "s_nop 3")
    PB=W(3); LP=W(1)
    out=[]
    a.L(P+"_entry")
    if dbg:
        a.I("s_memtime s[18:19]\ns_waitcnt lgkmcnt(0)\ns_mov_b32 s69, s18")
        if 100 not in dbg:
            for i in range(12): a.I(f"s_mov_b32 s{70+i}, 0")
    a.I(f"""s_lshl_b32 s42, s5, 1
    s_lshl_b32 s42, 3, s42
    s_mov_b32 s43, 0
    s_branch {P}_ent""")
    def zero_qk():
        for r in range(AQ,AQ+16,2): a.I(z2(r))
    a.L(P+"_g0")
    E(13)
    a.L(P+"_g")
    GA=STG+1; GB=STG+2; CK=STG+3
    G0=STG+16; G1=STG+20
    def g_issue(x=""):
        a.I(f"""buffer_load_dwordx4 {vr(G0,4)}, v{GA}, s[20:23], s59 offen sc1{x}
        buffer_load_dwordx4 {vr(G1,4)}, v{GB}, s[20:23], s59 offen sc1{x}""")
    a.I(f"""v_add_u32 v{GA}, s52, v{L16}
    v_add_u32 v{GB}, s58, v{L16}""")
    pace(D_G,CK)
    g_issue()
    a.I("s_waitcnt vmcnt(4)")
    zero_qk()
    for k in range(G2-1):
        g_issue(" ; nowarn"); pace(3,CK)
    a.L(P+"_ga")
    if G2: g_issue(" ; nowarn")
    a.I(f"""s_waitcnt vmcnt({2*G2+1})
    v_max3_u32 v{CK}, v{G0}, v{G0+1}, v{G0+2} ; nowarn
    v_max_u32 v{CK}, v{CK}, v{G0+3} ; nowarn
    ds_write_b128 v{GA}, {vr(G0,4)} offset:{MEML} ; nowarn
    s_waitcnt vmcnt({2*G2})
    v_max3_u32 v{CK}, v{CK}, v{G1}, v{G1+1} ; nowarn
    v_max3_u32 v{CK}, v{CK}, v{G1+2}, v{G1+3} ; nowarn
    ds_write_b128 v{GB}, {vr(G1,4)} offset:{MEML} ; nowarn
    v_cmpx_eq_u32 vcc, -1, v{CK}""")
    cnt(93)
    a.I(f"s_cbranch_execnz {P}_gr")
    a.L(P+"_gd")
    a.I(f"""s_mov_b64 exec, -1
    s_waitcnt lgkmcnt(0)""")
    def gool():
        a.L(P+"_gr")
        if not G2: g_issue(" ; nowarn")
        a.I(f"""s_sub_u32 s94, s94, 1
        s_cbranch_scc0 {P}_ga
        s_mov_b32 s94, 0
        s_branch {P}_gd""")
    out.append(gool)
    a.L(P+"_top")
    E(14)
    a.I("s_barrier")
    E(0)
    q=LQ(a)
    accof=lambda nm: AQ+4*nm
    KX={}
    SM=STG+4
    def kx_read(f,dst): q.op(f"ds_read_b128 v[{dst}:{dst+3}], v{KVR} offset:{f*1024}",('kx',f))
    def a_read(j): q.op(f"ds_read_b128 {vr(W(j%4),4)}, v{L16} offset:{MEML+1024*KAP[j]}",('a',j))
    vm=[]
    def vop(t,tag): a.I(t); vm.append(tag)
    def vwait(tag):
        idx=max(i for i,t in enumerate(vm) if t==tag)
        a.I(f"s_waitcnt vmcnt({len(vm)-1-idx})")
    late=f"buffer_load_dwordx4 v{L16}, s[20:23], s34 offen sc1 lds"
    rback=f"ds_read_b128 {vr(LP,4)}, v{PK4} offset:{MEML+1024}"
    def chk3():
        a.I(f"s_or_b64 vcc, vcc, s[8:9]\ns_cbranch_scc1 {P}_lr")
        a.L(f"{P}_ld")
        def ool():
            r=LP
            a.L(f"{P}_lr")
            a.I(f"""v_cmp_eq_u32 vcc, -1, v{r}
            v_cmp_eq_u32 s[8:9], -1, v{r+1}
            s_or_b64 vcc, vcc, s[8:9]
            v_cmp_eq_u32 s[8:9], -1, v{r+2}
            s_or_b64 vcc, vcc, s[8:9]
            v_cmp_eq_u32 s[8:9], -1, v{r+3}
            s_or_b64 vcc, vcc, s[8:9]
            s_cbranch_scc0 {P}_ld""")
            cnt(90)
            a.I(f"""s_sub_u32 s94, s94, 1
            s_cbranch_scc1 {P}_lx
            s_add_u32 m0, s46, {MEML+1024}
            s_nop 0
            {late}
            s_waitcnt vmcnt(0)
            {rback}
            s_waitcnt lgkmcnt(0)
            s_branch {P}_lr""")
            a.L(f"{P}_lx")
            a.I(f"s_mov_b32 s94, 0\ns_branch {P}_ld")
        out.append(ool)
    c=U_LC; r=U_R
    T_=[]
    def task(name,kind,cost,e,d,fn,after=()):
        T_.append(dict(name=name,kind=kind,cost=cost,e=e,d=d,fn=(fn if callable(fn) else (lambda t=fn: a.I(t))),after=list(after)))
    def half(j,h):
        b=STG+8*BUF[j]+4*h
        q.op(f"ds_read_b128 v[{b}:{b+3}], v{WL} offset:{(j+1)*2048+1024*h}",('w',j))
    PRV={v:k for k,v in NXT.items()}
    task('gw','s',4,4,5,lambda: a.I(f"s_waitcnt vmcnt({len(vm)})"))
    for j in range(1,NL):
        e=LIDX[PRV[j]] if j in PRV else 0
        af=['gw'] if j==2 else []
        task(f'w{j}a','ds',DSC,e,LIDX[j]-LEAD-1,(lambda j=j: half(j,0)),af)
        task(f'w{j}b','ds',DSC,e,LIDX[j]-LEAD,(lambda j=j: half(j,1)),[f'w{j}a'])
    task('late','vm',12,U_LL,U_LL,lambda: vop(late,'late'))
    rk=G("UK",10); UP=G("UP",12)
    task('m0v','s',4,max(U_LL+1,r-3),r-1,"s_mov_b32 m0, s45",['late']+(['c3'] if r>c+7 else []))
    task('V0','vm',12,r,r+1,lambda: vop(f"buffer_load_dwordx4 v{L16}, s[20:23], s53 offen sc1 lds",'V'),['m0v'])
    task('V1','vm',12,r+2,r+3,lambda: vop(f"buffer_load_dwordx4 v{L16}, s[20:23], s53 offen offset:1024 sc1 lds",'V'),['V0'])
    task('pub','vm',12,UP,UP+1,lambda: vop(f"buffer_store_dwordx4 {vr(PB,4)}, v{L16}, s[20:23], s57 offen sc1",'pub'))
    task('a3','ds',DSC,UP+1,13,lambda: a_read(3),['pub'])
    task('fl','s',12,3,rk-1,lambda: (a.I(f"s_cmp_eq_u32 s56, 1\ns_cbranch_scc0 {P}_fw"), a.L(P+"_fd")))
    task('m0k','s',4,rk-3,rk-1,"s_mov_b32 m0, s39",['V1']+(['c3'] if rk>c+7 else []))
    task('K0','vm',12,rk,rk+2,lambda: vop(f"buffer_load_dwordx4 v{L16}, s[20:23], s38 offen sc1 lds",'K'),['fl','m0k'])
    task('K1','vm',12,rk+2,rk+5,lambda: vop(f"buffer_load_dwordx4 v{L16}, s[20:23], s38 offen offset:1024 sc1 lds",'K'),['K0'])
    task('a4','ds',DSC,5,16,lambda: a_read(4))
    task('pk4','v',4,2,c-1,f"v_add_u32 v{PK4}, s46, v{L16}")
    task('rb','ds',DSC+4,c,c,lambda: (vwait('late'), q.op(rback,'rb')),['pk4'])
    task('rbw','s',4,c+4,c+4,lambda: q.wait('rb'),['rb'])
    task('c1','v',4,c+4,c+4,f"v_cmp_u_f32 vcc, v{LP}, v{LP+1}",['rbw'])
    task('c2','v',4,c+5,c+5,f"v_cmp_u_f32 s[8:9], v{LP+2}, v{LP+3}",['c1'])
    task('c3','s',12,c+7,c+7,lambda: (chk3(), a.I("s_barrier"), a_read(5)),['c2']+(['K1'] if rk<=c+7 else [])+(['V1'] if r<=c+7 else []))
    task('a6','ds',DSC,c+8,c+8,lambda: a_read(6),['c3'])
    task('a7','ds',DSC,c+8,c+8,lambda: a_read(7),['a6'])
    task('a8','ds',DSC,29,29,lambda: a_read(8),['a7'])
    QF=AQ; KM0=W(1); KM1=W(2); S1=W(3); S2=W(0)
    VF=STG+16; VM=AV; ON=AV+4; T=STG+2
    SORD=[0,1,4,5,2,3,6,7]
    KXR=[STG+0,STG+8,STG+12,STG+16,STG+20,STG+0,STG+8,STG+12]
    for n_,f in enumerate(SORD): KX[f]=KXR[n_]
    S0=54
    for n_,e in enumerate((LIDX[12],LIDX[13],LIDX[13],LIDX[14],LIDX[14],S0,S0+1,S0+2)):
        task(f'kx{n_}','ds',DSC,e,(49 if n_<5 else e),(lambda f=SORD[n_]: kx_read(f,KX[f])))
    def chain(names,e0,ops,after=(),gap=1,slack=0):
        prev=list(after)
        for k,t in enumerate(ops):
            task(f'{names}{k}','v',4,e0+k*gap,e0+k*gap+slack,t,prev); prev=[f'{names}{k}']
        return prev
    def post3(A): return [f"v_add_f32 v{A}, v{A}, v{A+2}", f"v_add_f32 v{A+1}, v{A+1}, v{A+3}"]
    QW=G("QW",42); B2A=G("B2A",47); KW=G("KW",49); B2B=G("B2B",56)
    task('tqw','v',4,c+9,35,f"v_and_b32 v{PK4}, 0xffff, v{PK1}",['c3'])
    def sched(names,pairs,after=()):
        prev=list(after)
        for k,(e,t) in enumerate(pairs):
            task(f'{names}{k}','v',4,e,e,t,prev); prev=[f'{names}{k}']
        return prev
    qa=post3(AQ); qb=post3(AQ+4); ka=post3(AK); kb=post3(AK+4)
    pq=sched('q',[(37,qa[0]),(38,qa[1]),(39,f"v_cvt_pk_bf16_f32 v{AQ}, v{AQ}, v{AQ+1}"),(39,qb[0]),(40,qb[1]),(41,f"v_cvt_pk_bf16_f32 v{AQ+1}, v{AQ+4}, v{AQ+5}")])
    task('tq','ds',DSC,QW,QW,lambda: q.op(f"ds_write2_b32 v{PK4}, v{AQ}, v{AQ+1} offset0:0 offset1:32",'tq'),pq+['tqw'])
    pk=sched('k',[(42,f"v_and_b32 v{SM+2}, 0xffff, v{PK2}"),(43,f"v_lshrrev_b32 v{SM+1}, 16, v{PK1}"),(44,ka[0]),(45,ka[1]),(46,f"v_cvt_pk_bf16_f32 v{AK}, v{AK}, v{AK+1}"),
                  (47,kb[0]),(47,kb[1]),(48,f"v_cvt_pk_bf16_f32 v{AK+1}, v{AK+4}, v{AK+5}")])
    task('b2a','s',8,B2A,B2A,lambda: (q.wait('tq'), E(4), a.I("s_barrier")),['tq'])
    def qf(ks,rho): q.op(f"ds_read_b64_tr_b16 v[{QF+4*ks+2*rho}:{QF+4*ks+2*rho+1}], v{SM+2} offset:{ks*512+rho*32}",('qf',ks))
    def km(sg_,rho):
        d=(KM0,KM1)[sg_]+2*rho
        q.op(f"ds_read_b64_tr_b16 v[{d}:{d+1}], v{SM+3} offset:{sg_*1024+rho*32}",('km',sg_))
    task('tk','ds',DSC,KW,KW,lambda: q.op(f"ds_write_b64 v{SM+1}, v[{AK}:{AK+1}]",'tk'),pk)
    for ks in range(4):
        for rho in range(2):
            e=(B2A+1 if ks<2 else KW+1)
            task(f'qf{ks}{rho}','ds',DSC,e,[B2A+1,B2A+2,B2A+3,B2A+3,B2A+4,B2A+5,B2A+5,B2A+6][2*ks+rho],(lambda ks=ks,rho=rho: qf(ks,rho)),['b2a']+(['tk'] if ks>=2 else []))
    task('tkr','v',4,49,53,f"v_lshrrev_b32 v{SM+3}, 16, v{PK2}")
    task('b2b','s',8,B2B,B2B,lambda: (q.wait('tk'), E(5), a.I("s_barrier")),['tk'])
    for sg_ in range(2):
        for rho in range(2):
            task(f'km{sg_}{rho}','ds',DSC,B2B,B2B+sg_+rho*(1-sg_),(lambda sg_=sg_,rho=rho: km(sg_,rho)),['b2b','tkr'])
    task('z0','v',4,KW+1,S0+4,z2(SM),['tk'])
    task('z1','v',4,B2B+1,S0+6,z2(SM+2),['km11','qf31'])
    vops=post3(AV)+post3(AV+4)+[f"v_cvt_pk_bf16_f32 v{AV}, v{AV}, v{AV+1}", f"v_cvt_pk_bf16_f32 v{AV+1}, v{AV+4}, v{AV+5}",
          f"v_mov_b32 v{VM+2}, v{VM+1}", f"v_mov_b32 v{VM+3}, 0", f"v_mov_b32 v{ON}, 0x3f803f80"]
    prev=[]
    for k,t in enumerate(vops):
        task(f'v{k}','v',4,S0+1,S0+9,t,prev); prev=[f'v{k}']
    VPOS=G('VPOS',1)
    if VPOS==0:
      task('vf0','ds',DSC+4,S0+8,S0+9,lambda: (vwait('V'), q.op(f"ds_read_b128 v[{VF}:{VF+3}], v{WL}",'vf')))
      task('vf1','ds',DSC,S0+8,S0+9,lambda: q.op(f"ds_read_b128 v[{VF+4}:{VF+7}], v{WL} offset:1024",'vf'),['vf0'])
    task('mx0','v',4,S0+8,S0+8,f"v_max3_f32 v{T}, v{S1}, v{S1+1}, v{S1+2}")
    task('cmp','s',4,S0+4,S0+9,"s_cmp_eq_u32 s6, s36")
    M=[]
    for u in U1+UD:
        _,j,nm=u
        tg=[('a',j)]
        if u in LDSU:
            jj=LDSU.index(u); b=STG+8*BUF[jj]; B=f"v[{b}:{b+7}]"; tg.append(('w',jj))
        else: B=rtxt(u)
        M.append((f"v_smfmac_f32_16x16x64_bf16 {vr(accof(nm),4)}, {vr(W(j%4),4)}, {B}, v{IDX}",tg,8))
    for f in SORD:
        tk=f>>2; ks=f&3; Sx=(S1,S2)[tk]
        M.append((f"v_mfma_f32_16x16x32_bf16 {vr(Sx,4)}, {vr(KX[f],4)}, {vr(QF+4*ks,4)}, {'0' if ks==0 else vr(Sx,4)}",[('qf',ks),('kx',f)],4))
    M.append((f"v_smfmac_f32_16x16x64_bf16 {vr(SM,4)}, {vr(KM0,4)}, {vr(QF,8)}, v{IDX}",[('km',0)],8))
    M.append((f"v_smfmac_f32_16x16x64_bf16 {vr(SM,4)}, {vr(KM1,4)}, {vr(QF+8,8)}, v{IDX}",[('km',1)],8))
    q.now=-4
    a_read(0); half(0,0); half(0,1); a_read(1); a_read(2)
    a.I(f"s_add_u32 m0, s46, {MEML+1024}")
    q.wait(('a',0))
    did=set(); over=0
    for i,(txt,_,vs) in enumerate(M):
        q.now=i
        a.I(txt)
        EM(i)
        if i==0: E(1)
        if i==29: E(2)
        if i==45: E(3)
        tg=M[i+1][1] if i+1<len(M) else []
        used=0
        if tg and q.needs(*tg):
            q.wait(*tg,age=AGE); used=4
        rdy=lambda t: t['name'] not in did and t['e']<=i and all(x in did for x in t['after'])
        vmust=any(t['kind']=='v' and t['name'] not in did and t['d']<=i for t in T_)
        lim=8 if vmust else 12
        while True:
            cand=sorted([t for t in T_ if rdy(t) and t['kind']!='v'],key=lambda t:t['d'])
            pick=[t for t in cand if t['d']<=i] or [t for t in cand if used+t['cost']<=lim]
            if not pick: break
            t=pick[0]; t['fn'](); did.add(t['name']); used+=t['cost']
        while True:
            cand=sorted([t for t in T_ if rdy(t) and t['kind']=='v'],key=lambda t:t['d'])
            pick=[t for t in cand if t['d']<=i] or ([t for t in cand] if max(used,vs)+4<=12 else [])
            if not pick: break
            t=pick[0]; t['fn'](); did.add(t['name']); used=max(used,vs)+4
        over+=max(0,used-12)
    assert len(did)==len(T_), [t['name'] for t in T_ if t['name'] not in did]
    if os.environ.get("VERB"): print("overflow estimate", over)
    E(6)
    a.I(f"s_cbranch_scc1 {P}_fin")
    E(7)
    a.I(f"""v_max3_f32 v{T}, v{T}, v{S1+3}, v{S2}
    v_max3_f32 v{T}, v{T}, v{S2+1}, v{S2+2}
    v_max_f32 v{T}, v{T}, v{S2+3}
    v_add_f32 v{SM}, v{SM}, v{SM+2}
    v_add_f32 v{SM+1}, v{SM+1}, v{SM+3}
    v_max3_f32 v{T}, v{T}, v{SM}, v{SM+1}
    v_mov_b32 v{T+1}, v{T}
    v_mov_b32 v{ON+1}, v{ON}
    {z2(SM+2)}
    v_permlane16_swap_b32 v{T}, v{T+1}
    v_max_f32 v{T}, v{T}, v{T+1}
    v_mov_b32 v{T+1}, v{T}
    v_mov_b64 v[{ON+2}:{ON+3}], v[{ON}:{ON+1}]
    v_and_b32 v{STG}, 0xffff, v{PK3}
    v_permlane32_swap_b32 v{T}, v{T+1}
    v_max_f32 v{T}, v{T}, v{T+1}
    v_mul_f32 v{T}, s35, v{T}""")
    for r in (S1,S1+2,S2,S2+2,SM):
        a.I(f"v_pk_fma_f32 v[{r}:{r+1}], v[{r}:{r+1}], s[48:49], v[{T}:{T+1}] op_sel_hi:[1,1,0] neg_lo:[0,0,1] neg_hi:[0,0,1]")
    if VPOS==1:
        vwait('V')
        q.op(f"ds_read_b128 v[{VF}:{VF+3}], v{WL}",'vf')
        q.op(f"ds_read_b128 v[{VF+4}:{VF+7}], v{WL} offset:1024",'vf')
    for r in (S1,S1+1,S1+2,S1+3,S2,S2+1,S2+2,S2+3): a.I(f"v_exp_f32 v{r}, v{r}")
    a.I(f"""v_cvt_pk_bf16_f32 v{S1}, v{S1}, v{S1+1}
    v_cvt_pk_bf16_f32 v{S1+1}, v{S1+2}, v{S1+3}
    v_cvt_pk_bf16_f32 v{S1+2}, v{S2}, v{S2+1}
    v_cvt_pk_bf16_f32 v{S1+3}, v{S2+2}, v{S2+3}
    v_exp_f32 v{SM}, v{SM}""")
    q.wait('vf')
    E(8)
    O0=W(1); O1=W(2); SUM=S2; Px=S1
    L2R=[AQ,AK]
    ACC={8:W(0), 0:W(2), 1:STG+4, 2:STG+8, 3:W(3), 4:AV, 5:AV+4, 6:STG+16, 7:STG+20}
    OA=[W(1),STG+0]; AD=STG+12
    l2=lambda k: vop(f"buffer_load_dwordx4 v[{AQ+4*k}:{AQ+4*k+3}], v{L16}, s[20:23], s47 offen offset:{1024*k}",'l2')
    a.I(f"""v_mfma_f32_16x16x32_bf16 {vr(O0,4)}, {vr(VF,4)}, {vr(Px,4)}, 0
    v_exp_f32 v{SM+1}, v{SM+1}
    v_mfma_f32_16x16x32_bf16 {vr(O1,4)}, {vr(VF+4,4)}, {vr(Px,4)}, 0
    v_cvt_pk_bf16_f32 v{SM}, v{SM}, v{SM+1}
    v_mov_b32 v{SM+1}, 0
    v_mfma_f32_16x16x32_bf16 {vr(SUM,4)}, {vr(ON,4)}, {vr(Px,4)}, 0""")
    l2(0)
    a.I(f"v_mfma_f32_16x16x32_bf16 {vr(SUM,4)}, {vr(ON,4)}, {vr(SM,4)}, {vr(SUM,4)}")
    q.op(f"ds_write_b64 v{WL}, v[{VM}:{VM+1}]",'vmw')
    a.I(f"v_mfma_f32_16x16x32_bf16 {vr(O0,4)}, {vr(VM,4)}, {vr(SM,4)}, {vr(O0,4)}")
    l2(1)
    a.I(f"""v_mfma_f32_16x16x32_bf16 {vr(O1,4)}, {vr(VM+2,4)}, {vr(SM,4)}, {vr(O1,4)}
    s_and_b32 s7, s6, 1
    v_rcp_f32 v{SUM}, v{SUM}
    {z2(W(3))}
    {z2(W(3)+2)}
    v_mul_f32 v{O0}, v{O0}, v{SUM}
    v_mul_f32 v{O0+1}, v{O0+1}, v{SUM}
    v_mul_f32 v{O0+2}, v{O0+2}, v{SUM}
    v_mul_f32 v{O0+3}, v{O0+3}, v{SUM}
    v_pk_mul_f32 v[{O1}:{O1+1}], v[{O1}:{O1+1}], v[{SUM}:{SUM+1}] op_sel_hi:[1,0]
    v_pk_mul_f32 v[{O1+2}:{O1+3}], v[{O1+2}:{O1+3}], v[{SUM}:{SUM+1}] op_sel_hi:[1,0]
    v_cvt_pk_bf16_f32 v{O0}, v{O0}, v{O0+1}
    v_cvt_pk_bf16_f32 v{O0+1}, v{O0+2}, v{O0+3}
    v_cvt_pk_bf16_f32 v{O0+2}, v{O1}, v{O1+1}
    v_cvt_pk_bf16_f32 v{O0+3}, v{O1+2}, v{O1+3}""")
    q.op(f"ds_write_b128 v{STG}, {vr(O0,4)}",'ow')
    for r in (W(0),W(0)+2,W(2),W(2)+2,STG+4,STG+6,STG+8,STG+10,AV,AV+2,AV+4,AV+6,STG+16,STG+18,STG+20,STG+22): a.I(z2(r))
    a.I("s_add_u32 s6, s6, 1")
    q.all()
    E(9)
    a.I("s_barrier\ns_mov_b32 s56, s41")
    E(10)
    q.op(f"ds_read_b128 {vr(OA[0],4)}, v{L16} offset:{OL}",'oa0')
    q.op(f"ds_read_b128 {vr(OA[1],4)}, v{L16} offset:{OL+1024}",'oa1')
    if HINT_ON:
        a.I("s_mov_b64 exec, s[42:43]")
        vop(f"buffer_store_dword v{AD+3}, v{AD+2}, s[20:23], s54 offen {st}",'hp')
        a.I("s_mov_b64 exec, -1")
    def post(t):
        d=ACC[t]; o=d if t==8 else ACC[(t//4)*4]+(t%4)
        return [f"v_add_f32 v{d}, v{d}, v{d+2}", f"v_add_f32 v{d+1}, v{d+1}, v{d+3}", f"v_cvt_pk_bf16_f32 v{o}, v{d}, v{d+1}"]
    AS=ACC[1]; RD=ACC[2]; C7=AD
    RA=[AQ,AQ+4,AK,AK+4]
    RB=[W(0),W(1),W(2),STG+16]
    def p7_issue(x="",RR=RA):
        for j in range(4):
            a.I(f"buffer_load_dwordx4 {vr(RR[j],4)}, v{L16}, s[20:23], s33 offen offset:{1024*j} sc1{x}")
    adr=[f"v_bfe_u32 v{AD+1}, v{L16}, 2, 7", f"v_lshrrev_b32 v{AD+2}, 9, v{L16}", f"v_lshrrev_b32 v{PK4}, 7, v{L16}", f"v_and_b32 v{AD}, 0x70, v{L16}",
         f"v_lshl_add_u32 v{AD+2}, v{AD+2}, 12, v{AD+1}", f"v_lshl_add_u32 v{PK4}, v{PK4}, 12, v{AD}", f"v_xor_b32 v{KVR}, 8192, v{KVR}"]
    if APL==0:
        l2(2); a.I("\n".join(adr[:4]))
    elif APL==1:
        a.I("\n".join(adr[:4]))
    elif APL==2:
        l2(2); a.I("\n".join(adr[:2])); l2(3); a.I("\n".join(adr[2:4]))
    for i,u in enumerate(UO):
        _,t,kp=u; n=i>>1
        if i==0: q.wait('oa0')
        if i==1: q.wait('oa1')
        if u==L2U[0]: vwait('l2')
        B=vr(L2R[L2U.index(u)],8) if u in L2U else rtxt(u)
        a.I(f"v_smfmac_f32_16x16x64_bf16 {vr(ACC[t],4)}, {vr(OA[kp],4)}, {B}, v{IDX}")
        if HINT_ON and i in HPOLL: vop(f"buffer_load_dword v{AD}, v{AD+1}, s[20:23], s55 offen sc1 ; nowarn",'poll')
        bk={3:["s_mov_b32 s13, s14","s_and_b32 s14, s6, 3"],4:["s_mul_i32 s14, s14, 9216",f"s_add_u32 s14, s14, {MEMB}"],
            6:["s_mov_b32 s59, s14","s_add_u32 s34, s46, s14"],7:["s_add_u32 s34, s34, 1024","s_add_u32 s37, s37, 128"],
            8:["s_xor_b32 s39, s39, 8192","s_add_u32 s53, s38, 8192"],10:["s_add_u32 s38, s38, 16384","s_add_u32 s57, s57, 4096"]}
        for x in bk.get(i,[]): a.I(x)
        if i==5: vop(f"buffer_store_dword v{ACC[8]}, v{AD+2}, s[20:23], s12 offen {st}",'st8')
        if i==13: vop(f"buffer_store_dwordx4 {vr(ACC[0],4)}, v{PK4}, s[20:23], s32 offen {st}",'stA')
        if i==0: E(11)
        if i==1 and APL==1: l2(2)
        if i==2 and APL<2: l2(3)
        if i<3: a.I(adr[4+i])
        if i==9: a.I(f"ds_read_b128 {vr(AS,4)}, v{L16} offset:{SPARE}")
        if i==HCHK+1:
            if HINT_ON: a.I(f"s_cbranch_vccnz {P}_hw")
            a.L(P+"_hd")
        if i==15: a.I("s_cmp_eq_u32 s40, 0")
        if kp==1 and n>=1:
            p=post(TORD[n-1]); a.I(p[0]); a.I(p[1])
        if kp==0 and n>=2:
            a.I(post(TORD[n-2])[2])
            if TORD[n-2] in (8,0,4): a.I(f"v_bfi_b32 v{ACC[TORD[n-2]]}, 1, s7, v{ACC[TORD[n-2]]}")
        if HINT_ON and i==HCHK: a.I(f"v_cmp_ne_u32 vcc, s6, v{AD} ; nowarn")
    a.I(post(6)[2])
    a.I(f"v_lshrrev_b32 v{AD+2}, 16, v{PK3}\nv_mov_b32 v{AD+3}, -1")
    for x in post(7): a.I(x)
    stB=f"buffer_store_dwordx4 {vr(ACC[4],4)}, v{PK4}, s[20:23], s11 offen {st}"
    E(12)
    def fetch_pub():
        a.I(f"""s_waitcnt lgkmcnt(0)
        v_lshrrev_b32 v{STG}, 16, v{PK1}
        ds_read_b64 v[{PB}:{PB+1}], v{STG}
        ds_read_b64 v[{PB+2}:{PB+3}], v{WL}
        s_load_dword s41, s[16:17], s37 offset:128 glc""")
        for r in range(AV,AV+8,2): a.I(z2(r))
    def p7_check(base,RR=RA):
        for j in range(4):
            c="0" if j==0 else vr(RD,4); r=RR[j]
            a.I(f"s_waitcnt vmcnt({base+3-j})")
            a.I(f"v_mfma_f32_16x16x32_bf16 {vr(RD,4)}, {vr(AS,4)}, {vr(r,4)}, {c} ; nowarn")
            if j==0: a.I(f"v_xor_b32 v{C7}, s7, v{r} ; nowarn")
            else: a.I(f"v_bitop3_b32 v{C7}, v{C7}, v{r}, s7 bitop3:0xf6 ; nowarn")
        a.I(f"v_and_b32 v{C7}, 1, v{C7}\nv_cmp_ne_u32 vcc, 0, v{C7}")
    def p7_fin():
        a.I(f"""v_add_f32_dpp v{RD}, v{RD}, v{RD} row_ror:8 row_mask:0xf bank_mask:0xf
        v_add_f32_dpp v{RD+1}, v{RD+1}, v{RD+1} row_ror:8 row_mask:0xf bank_mask:0xf
        v_cvt_pk_bf16_f32 v{RD+2}, v{RD}, v{RD+1}
        buffer_store_dword v{RD+2}, v{AD+2}, s[20:23], s59 offen {st}""")
    repo=f"buffer_store_dword v{AD+3}, v{AD+2}, s[20:23], s13 offen {st}"
    def reduce(tag, two, mid, ctr, after=None, xb=1):
        x=1 if after else 0
        p7_issue()
        mid()
        if two: p7_issue("",RB)
        if after: after()
        n=4 if two else 0
        p7_check(n+x)
        a.I(f"s_cbranch_vccnz {P}_rr{tag}")
        a.L(f"{P}_rd{tag}")
        p7_fin()
        def reissue(RR):
            cnt(ctr)
            a.I("s_mov_b64 exec, vcc")
            p7_issue("",RR)
            a.I("s_mov_b64 exec, -1")
        def ool():
            a.L(f"{P}_rr{tag}")
            reissue(RA)
            if two:
                p7_check(n+x*xb,RB)
                a.I(f"s_nop 5\ns_cbranch_vccz {P}_rd{tag}")
                a.L(f"{P}_rl{tag}")
                reissue(RB)
                p7_check(n)
                a.I(f"s_nop 5\ns_cbranch_vccz {P}_rd{tag}")
                reissue(RA)
                p7_check(n,RB)
                a.I(f"""s_nop 5
                s_cbranch_vccz {P}_rd{tag}
                s_sub_u32 s94, s94, 1
                s_cbranch_scc0 {P}_rl{tag}""")
            else:
                p7_check(0)
                a.I(f"""s_nop 5
                s_cbranch_vccz {P}_rd{tag}
                s_sub_u32 s94, s94, 1
                s_cbranch_scc0 {P}_rr{tag}""")
            a.I(f"s_mov_b32 s94, 0\ns_nop 7\ns_branch {P}_rd{tag}")
        out.append(ool)
    a.I(f"s_cbranch_scc0 {P}_ne")
    pace(D_E0,RD)
    if G("SBM",1): reduce("e", R2, lambda: (a.I(stB), fetch_pub(), pace(D_E1,RD)), 92, lambda: None, 0)
    else: reduce("e", R2, lambda: pace(D_E1,RD), 92, lambda: (a.I(stB), fetch_pub()))
    E(13)
    a.I(f"s_barrier\n{repo}\ns_branch {P}_g")
    a.L(P+"_ne")
    pace(D_E0+SBD,RD); a.I(stB)
    fetch_pub()
    pace(D_NR,RD)
    a.I(f"""s_cmp_eq_u32 s40, 1
    s_barrier
    s_cbranch_scc0 {P}_g0""")
    reduce("l", 0, lambda: pace(G('DL',0),RD), 92)
    E(13)
    a.I(repo)
    zero_qk()
    a.I(f"s_branch {P}_top")
    a.L(P+"_ent")
    fetch_pub()
    a.I(f"""s_cmp_eq_u32 s5, 1
    s_cbranch_scc0 {P}_g""")
    zero_qk()
    a.I(f"s_branch {P}_top")
    for f in out: f()
    a.L(P+"_hw")
    cnt(91)
    a.I(f"""buffer_load_dword v{AD}, v{AD+1}, s[20:23], s55 offen sc1 ; nowarn
    v_cmp_ne_u32 vcc, s6, v{AD} ; nowarn
    s_cbranch_vccz {P}_hd
    s_sub_u32 s94, s94, 1
    s_cbranch_scc0 {P}_hw
    s_mov_b32 s94, 0
    s_branch {P}_hd""")
    a.L(P+"_fw")
    a.I(f"""s_cmp_ge_u32 s6, s36
    s_cbranch_scc1 {P}_fd""")
    a.L(P+"_fw2")
    a.I(f"""buffer_load_dword v{L16}, off, s[20:23], s37 sc1
    s_waitcnt vmcnt(0)
    v_readfirstlane_b32 s56, v{L16}
    v_mbcnt_lo_u32_b32 v{L16}, -1, 0
    v_mbcnt_hi_u32_b32 v{L16}, -1, v{L16}
    v_lshlrev_b32 v{L16}, 4, v{L16}
    s_cmp_eq_u32 s56, 1
    s_cbranch_scc1 {P}_fd""")
    spin_tail(a,P+"_fw2",P+"_fd",sleep=1)
    a.L(P+"_fin")
    a.I(f"""v_lshrrev_b32 v{AQ+4}, 16, v{PK1}
    ds_read_b64 v[{AQ}:{AQ+1}], v{AQ+4}
    v_mov_b64 v[{AQ+2}:{AQ+3}], v[{VM}:{VM+1}]
    s_waitcnt lgkmcnt(0)
    s_add_u32 s57, s57, 4096
    buffer_store_dwordx4 {vr(AQ,4)}, v{L16}, s[20:23], s57 offen sc1""")
    rt(a,3,48)
    a.I(f"""s_mov_b32 s95, 1
    s_cmp_lg_u32 s44, 0
    s_cbranch_scc1 M_Efin""")
    if dbg and 100 in dbg:
        a.I(f"""s_waitcnt lgkmcnt(0)
        s_lshl_b32 s9, s4, 2
        s_add_u32 s9, s9, s5
        s_lshl_b32 s9, s9, 7
        s_add_u32 s9, s9, {DBGW}
        s_nop 7
        v_mov_b32 v48, 0""")
        for i in range(16): a.I(f"v_mov_b32 v{8+i}, s{60+2*i}")
        a.I(f"""s_memrealtime s[60:61]
        s_waitcnt lgkmcnt(0)""")
        a.L(P+"_cal")
        a.I(f"""s_memrealtime s[62:63]
        s_memtime s[64:65]
        s_waitcnt lgkmcnt(0)
        s_cmp_eq_u32 s62, s60
        s_cbranch_scc1 {P}_cal
        v_mov_b32 v24, s62
        v_mov_b32 v25, s64""")
        a.I("s_mov_b64 exec, 1")
        for i in range(5): a.I(f"buffer_store_dwordx4 v[{8+4*i}:{11+4*i}], v48, s[20:23], s9 offen offset:{16*i}")
    elif dbg:
        a.I(f"""s_memtime s[62:63]
        s_waitcnt lgkmcnt(0)
        s_lshl_b32 s9, s4, 2
        s_add_u32 s9, s9, s5
        s_lshl_b32 s9, s9, 7
        s_add_u32 s9, s9, {DBGW}
        s_nop 7
        v_mov_b32 v8, s88
        v_mov_b32 v9, s18
        v_mov_b32 v10, s62
        v_mov_b32 v11, s91
        v_mov_b32 v12, s92
        v_mov_b32 v13, s93
        v_mov_b32 v14, s90
        v_mov_b32 v15, s60
        v_mov_b32 v48, 0""")
        for i in range(12): a.I(f"v_mov_b32 v{16+i}, s{96+i if i<5 else 70+i}")
        a.I("s_mov_b64 exec, 1")
        for i in range(5): a.I(f"buffer_store_dwordx4 v[{8+4*i}:{11+4*i}], v48, s[20:23], s9 offen offset:{16*i}")
    a.I(f"""s_mov_b64 exec, -1
    s_add_u32 s36, s36, 63
    s_mov_b32 s44, {LOFF}
    s_branch M_A_layer""")
```

```python
from asmb import *
LOFF=0x6000000
KV=0x0
KVM=KV+0x100000+4096
OBUF=0x4000000; XA=0x5000000; ZF=0x5300000; ZO=0x5600000; FLAGS=0x5900000; XIN=0x5C00000
OFLAG=0x40000; XFLAG=0x80000; EFLAG=0x82000; DFLAG=0x82800; FFLAG=0x83000; FLAGB=0x84000
SH=0xC000000
FIMG=SH; FINV=SH+0x100000; WFI=SH+0x200000
TW1=SH+0x500000; TW2=TW1+0x4000; CST=TW1+0x8000
PART=SH+0x600000; MEMB=SH+0x700000; WOC=SH+0x800000
DBGW=0xF000000
WS_SIZE=0x10000000
XBYTES=2048*576*2
KA=dict(x=0,mem0=8,Wq=16,Wk=24,Wv=32,Wo=40,seg=48,bx=56,wr=64,wi=72,out=80,dbg=88,ws=96)

def kernel_begin(a, name):
    a.raw(f".text\n.globl {name}\n.p2align 8\n.type {name},@function\n{name}:")

def kernel_desc(name, vgpr, sgpr=96, accum=None):
    if accum is None: accum=(vgpr+3)//4*4
    return f""".section .rodata,"a"
.p2align 6
.amdhsa_kernel {name}
  .amdhsa_next_free_vgpr {vgpr}
  .amdhsa_next_free_sgpr {sgpr}
  .amdhsa_accum_offset {accum}
  .amdhsa_group_segment_fixed_size 0
  .amdhsa_kernarg_size 104
  .amdhsa_user_sgpr_count 2
  .amdhsa_user_sgpr_kernarg_segment_ptr 1
  .amdhsa_system_sgpr_workgroup_id_x 1
.end_amdhsa_kernel"""

def srd(a, d, ptr, size):
    a.I(f"""s_mov_b32 s{d}, s{ptr}
    s_and_b32 s{d+1}, s{ptr+1}, 0xffff
    s_mov_b32 s{d+2}, {size}
    s_mov_b32 s{d+3}, 0x00020000""")

def sdiv(a, q, x, d, tmp=None, maxx=1<<16):
    M=-(-(1<<32)//d)
    assert maxx*d <= (1<<32)
    a.I(f"s_mul_hi_u32 s{q}, s{x}, {M}")

DB_OVF=8; DB_INIT=10; DB_TAB=11; DB_L4=16; DB_L5=32
NB=4; NG=4; ND=3; NE=4; NOTH=48
def spin_tail(a, loop, out, sleep=0):
    import os
    if sleep: a.I(f"s_sleep {min(127,sleep*int(os.environ.get('SLM',1)))}")
    a.I(f"""s_sub_u32 s94, s94, 1
    s_cbranch_scc0 {loop}
    s_mov_b32 s94, 0""")
    if out: a.I(f"s_branch {out}")
def wait_dbg(a, word, target, v, sleep=4, layer=False):
    l=a.lab("wd")
    if layer: a.I(f"s_lshl_b32 s9, s95, 2\ns_add_u32 s9, s9, {4*word}\nv_mov_b32 v{v}, s9")
    else: a.I(f"v_mov_b32 v{v}, {4*word}")
    a.L(l)
    a.I(f"""global_load_dword v{v+1}, v{v}, s[28:29] sc1
    s_waitcnt vmcnt(0)
    v_readfirstlane_b32 s9, v{v+1}
    s_cmp_ge_u32 s9, {target}
    s_cbranch_scc1 {l}d""")
    spin_tail(a,l,None,sleep)
    a.L(l+"d")
def add_dbg(a, word, v, layer=False):
    if layer: a.I(f"s_lshl_b32 s9, s95, 2\ns_add_u32 s9, s9, {4*word}\nv_mov_b32 v{v}, s9")
    else: a.I(f"v_mov_b32 v{v}, {4*word}")
    a.I(f"""v_mov_b32 v{v+1}, 1
    s_mov_b64 exec, 1
    global_atomic_add v{v}, v{v+1}, s[28:29]
    s_mov_b64 exec, -1""")
def wait_flags(a, soff, n, v, vl16, sleep=4, sh=2):
    l=a.lab("wf")
    import os
    sleep=int(os.environ.get("FSL",2))
    a.I(f"s_cmp_lg_u32 s5, 0\ns_cbranch_scc1 {l}d")
    if sh<4: a.I(f"v_lshrrev_b32 v{v}, {4-sh}, v{vl16}")
    else: a.I(f"v_lshlrev_b32 v{v}, {sh-4}, v{vl16}")
    if n>64: a.I(f"v_add_u32 v{v+2}, {64<<sh}, v{v}\nv_min_u32 v{v+2}, {(n-1)<<sh}, v{v+2}")
    else: a.I(f"v_min_u32 v{v}, {(n-1)<<sh}, v{v}")
    a.L(l)
    a.I(f"buffer_load_dword v{v+1}, v{v}, s[20:23], s{soff} offen sc1")
    if n>64: a.I(f"buffer_load_dword v{v+3}, v{v+2}, s[20:23], s{soff} offen sc1")
    a.I("s_waitcnt vmcnt(0)")
    if n>64: a.I(f"v_and_b32 v{v+1}, v{v+1}, v{v+3}")
    a.I(f"""v_cmp_ne_u32 vcc, 1, v{v+1}
    s_cbranch_vccz {l}d""")
    spin_tail(a,l,None,sleep)
    a.L(l+"d")
    a.I("s_barrier")
def post_flag(a, soff, v):
    a.I(f"""v_mov_b32 v{v}, 1
    s_mov_b64 exec, 1
    buffer_store_dword v{v}, off, s[20:23], s{soff} sc1
    s_mov_b64 exec, -1""")
def next_layer(a):
    a.I(f"""s_add_u32 s95, s95, 1
    s_add_u32 s20, s20, {LOFF}
    s_addc_u32 s21, s21, 0
    s_mov_b32 s22, {WS_SIZE-LOFF}
    s_add_u32 s24, s20, {XIN}
    s_addc_u32 s25, s21, 0""")
def lane(a, v):
    a.I(f"v_mbcnt_lo_u32_b32 v{v}, -1, 0\nv_mbcnt_hi_u32_b32 v{v}, -1, v{v}")

import os
RT=bool(os.environ.get("RT"))
def rt(a, slot, v, lay="s95"):
    if not RT: return
    a.I(f"""s_memrealtime s[98:99]
    s_lshl_b32 s8, s4, 7
    s_lshl_b32 s9, {lay}, 6
    s_add_u32 s8, s8, s9
    s_add_u32 s8, s8, {DBGW+0x10000+4*slot}
    s_waitcnt lgkmcnt(0)
    v_mov_b32 v{v}, s98
    s_mov_b64 exec, 1
    buffer_store_dword v{v}, off, s[84:87], s8
    s_mov_b64 exec, -1""")
```

```python
from common import *
from bstage import ln_addr, ln_load, ln_compute, XF_TH, XF_SIZE, XF_KS
import struct
from rawload import *
def f2u(x): return struct.unpack('<I',struct.pack('<f',x))[0]
SCL=f2u(128**-0.5*1.4426950408889634)
LDS_LA=163840
BUDGET=400000
import os
BST=os.environ.get('BST','sc1')
BRB=os.environ.get('BRB','')

class LQ:
    def __init__(self,a): self.a=a; self.q=[]; self.t=[]; self.done=0; self.now=0
    def op(self,text,tag=None):
        self.a.I(text); self.q.append(tag); self.t.append(self.now)
    def idx(self,*tags): return max(max(i for i,t in enumerate(self.q) if t==tag) for tag in tags)
    def needs(self,*tags): return self.idx(*tags)>=self.done
    def wait(self,*tags,age=None):
        idx=self.idx(*tags)
        if idx<self.done: return
        if age is not None:
            while idx+1<len(self.q) and self.now-self.t[idx+1]>=age: idx+=1
        n=len(self.q)-1-idx
        assert n<=15, n
        self.a.I(f"s_waitcnt lgkmcnt({n})"); self.done=idx+1
    def all(self):
        self.a.I("s_waitcnt lgkmcnt(0)"); self.done=len(self.q)

def softmax(a, S1, S2, Sm, T, sC, fill=None):
    f=fill or (lambda k: None)
    a.I(f"""v_max3_f32 v{T}, v{S1}, v{S1+1}, v{S1+2}
    v_pk_add_f32 v[{Sm}:{Sm+1}], v[{Sm}:{Sm+1}], v[{Sm+2}:{Sm+3}]
    v_max3_f32 v{T}, v{T}, v{S1+3}, v{Sm}
    v_max3_f32 v{T+1}, v{S2}, v{S2+1}, v{S2+2}
    v_max3_f32 v{T}, v{T}, v{Sm+1}, v{S2+3}
    v_max_f32 v{T}, v{T}, v{T+1}
    v_mov_b32 v{T+1}, v{T}""")
    a.I(f"v_mov_b32 v{Sm+2}, 0\nv_mov_b32 v{Sm+3}, 0")
    f(0)
    a.I(f"""v_permlane16_swap_b32 v{T}, v{T+1}
    v_max_f32 v{T}, v{T}, v{T+1}
    v_mov_b32 v{T+1}, v{T}""")
    f(1)
    a.I(f"""v_permlane32_swap_b32 v{T}, v{T+1}
    v_max_f32 v{T}, v{T}, v{T+1}
    v_mul_f32 v{T}, s{sC}, v{T}""")
    regs=[S1,S1+1,S1+2,S1+3,S2,S2+1,S2+2,S2+3,Sm,Sm+1]
    for r in regs: a.I(f"v_fma_f32 v{r}, v{r}, s{sC}, -v{T}")
    for r in regs: a.I(f"v_exp_f32 v{r}, v{r}")
    a.I(f"""v_cvt_pk_bf16_f32 v{S1}, v{S1}, v{S1+1}
    v_cvt_pk_bf16_f32 v{S1+1}, v{S1+2}, v{S1+3}
    v_cvt_pk_bf16_f32 v{S1+2}, v{S2}, v{S2+1}
    v_cvt_pk_bf16_f32 v{S1+3}, v{S2+2}, v{S2+3}
    v_cvt_pk_bf16_f32 v{Sm}, v{Sm}, v{Sm+1}
    v_mov_b32 v{Sm+1}, 0""")

def pv(a, Px, Pm, VF, VM, ONES, O0, O1, SUM, OUT):
    a.I(f"""v_mfma_f32_16x16x32_bf16 v[{SUM}:{SUM+3}], v[{ONES}:{ONES+3}], v[{Px}:{Px+3}], 0
    v_mfma_f32_16x16x32_bf16 v[{SUM}:{SUM+3}], v[{ONES}:{ONES+3}], v[{Pm}:{Pm+3}], v[{SUM}:{SUM+3}]
    v_mfma_f32_16x16x32_bf16 v[{O0}:{O0+3}], v[{VF}:{VF+3}], v[{Px}:{Px+3}], 0
    v_mfma_f32_16x16x32_bf16 v[{O1}:{O1+3}], v[{VF+4}:{VF+7}], v[{Px}:{Px+3}], 0
    v_mfma_f32_16x16x32_bf16 v[{O0}:{O0+3}], v[{VM}:{VM+3}], v[{Pm}:{Pm+3}], v[{O0}:{O0+3}]
    v_mfma_f32_16x16x32_bf16 v[{O1}:{O1+3}], v[{VM+2}:{VM+5}], v[{Pm}:{Pm+3}], v[{O1}:{O1+3}]
    v_rcp_f32 v{SUM}, v{SUM}
    v_rcp_f32 v{SUM+1}, v{SUM+1}
    v_pk_mul_f32 v[{O0}:{O0+1}], v[{O0}:{O0+1}], v[{SUM}:{SUM+1}]
    v_pk_mul_f32 v[{O0+2}:{O0+3}], v[{O0+2}:{O0+3}], v[{SUM}:{SUM+1}]
    v_pk_mul_f32 v[{O1}:{O1+1}], v[{O1}:{O1+1}], v[{SUM}:{SUM+1}]
    v_pk_mul_f32 v[{O1+2}:{O1+3}], v[{O1+2}:{O1+3}], v[{SUM}:{SUM+1}]
    v_cvt_pk_bf16_f32 v{OUT}, v{O0}, v{O0+1}
    v_cvt_pk_bf16_f32 v{OUT+1}, v{O0+2}, v{O0+3}
    v_cvt_pk_bf16_f32 v{OUT+2}, v{O1}, v{O1+1}
    v_cvt_pk_bf16_f32 v{OUT+3}, v{O1+2}, v{O1+3}""")

def stamp(a, P, i, on):
    if on: a.I(f"""s_memtime s[66:67]
    s_waitcnt lgkmcnt(0)
    s_sub_u32 s68, s66, s69
    s_add_u32 s{70+i}, s{70+i}, s68
    s_mov_b32 s69, s66""")

def role_b(a, P):
    flg=FLAGS
    L16=0; GO=1; LO=2; DEL=3; IDX=4
    QS=XF_SIZE+64-(XF_SIZE%64); QS=43008
    BTK=40960
    def wreg(ti,ks):
        f=ks*6+ti
        return ar(4*f,4) if f<64 else vr(80+4*(f-64),4)
    a.L(P+"B")
    a.I(f"""s_sub_u32 s8, s4, 32""")
    sdiv(a,6,8,NB)
    a.I(f"""s_mul_i32 s7, s6, {NB}
    s_sub_u32 s7, s8, s7
    v_mov_b32 v10, s5""")
    ln_addr(a,"v10",0,GO,LO,12)
    a.I(f"""v_and_b32 v10, 15, v0
    v_lshrrev_b32 v11, 2, v10
    v_lshlrev_b32 v11, 3, v11
    v_and_b32 v12, 3, v10
    v_add_u32 v11, v11, v12
    v_lshrrev_b32 v12, 4, v0
    v_lshlrev_b32 v12, 3, v12
    v_sub_u32 v{DEL}, v11, v12
    v_mov_b32 v{IDX}, 0x4444
    v_mov_b32 v11, 0xeeee
    v_and_b32 v12, 2, v0
    v_cmp_eq_u32 vcc, 2, v12
    v_cndmask_b32 v{IDX}, v{IDX}, v11, vcc
    v_lshlrev_b32 v{L16}, 4, v0""")
    def wt(ti,ks):
        f=ks*6+ti
        return ('a',4*f) if f<64 else ('v',80+4*(f-64))
    a.I(f"""v_lshrrev_b32 v20, 6, v{L16}          ; a
    v_bfe_u32 v21, v{L16}, 4, 2            ; piece
    v_lshlrev_b32 v8, 13, v20
    v_lshl_add_u32 v8, v21, 4, v8
    v_and_b32 v22, 3, v20
    v_lshrrev_b32 v23, 8, v{L16}
    v_lshl_add_u32 v22, v23, 3, v22
    v_lshlrev_b32 v22, 6, v22
    v_lshl_add_u32 v22, v21, 4, v22
    s_lshl_b32 s9, s5, 12
    v_add_u32 v9, s9, v22
    v_add_u32 v10, s9, v{L16}
    s_lshl_b32 s30, s6, 8
    s_lshl_b32 s9, s5, 6
    s_add_u32 s30, s30, s9""")
    chunks=[]
    for k in range(9):
        for mat in range(3):
            g=[wt(2*mat+t,2*k+hb) for t in range(2) for hb in range(2)]
            chunks.append(dict(srd=SQ+4*mat, voff=[8]*4, soff=[(30,(64*k+16*i)*8192) for i in range(4)], grp=g,
                rd=[((g[2*t+hb][0],g[2*t+hb][1]+2*rho),9,hb*2048+rho*256+t*8) for t in range(2) for hb in range(2) for rho in range(2)]))
    rawload(a,chunks,10,flags="")
    a.I("s_barrier")
    wait_dbg(a,DB_INIT,NOTH,8)
    a.L(P+"B_layer")
    rt(a,1,8)
    a.I(f"""s_mov_b32 s10, s7            ; s_q
    s_mov_b32 s11, -1                    ; s_a
    s_mov_b32 s12, {QS}
    s_mov_b32 s13, {QS+24576}
    s_mov_b32 s14, {SCL}
    s_waitcnt vmcnt(0)""")
    a.L(P+"B_loop")
    a.I(f"""s_cmp_ge_u32 s10, 64
    s_cbranch_scc1 {P}B_attn""")
    X=8; T=44
    a.I(f"""s_cmp_eq_u32 s95, 0
    s_cbranch_scc1 {P}B_x
    s_lshl_b32 s15, s10, 4
    s_add_u32 s15, s15, {FLAGS+EFLAG}""")
    wait_flags(a,15,3,8,L16,sleep=2)
    a.L(P+"B_x")
    if RT:
        a.I(f"s_cmp_lg_u32 s10, s7\ns_cbranch_scc1 {P}B_x2"); rt(a,2,8); a.L(P+"B_x2")
    a.I(f"s_mul_i32 s15, s10, {32*1152}")
    ln_load(a,X,GO,24,"s15","sc1")
    a.I(f"""s_lshl_b32 s16, s6, 21
    s_lshl_b32 s17, s10, 12
    s_add_u32 s17, s17, s16
    s_lshl_b32 s18, s5, 10
    s_add_u32 s17, s17, s18
    s_add_u32 s17, s17, {KVM}
    v_mov_b32 v44, -1
    v_mov_b32 v45, -1
    v_mov_b32 v46, -1
    v_mov_b32 v47, -1
    buffer_store_dwordx4 v[44:47], v{L16}, s[20:23], s17 offen sc1
    s_waitcnt vmcnt(1)""")
    ln_compute(a,X,T,LO,36,37)
    a.I("s_waitcnt lgkmcnt(0)\ns_barrier")
    ACC=32; FR=8
    def rd(ks):
        for th in range(2):
            r=FR+((ks%3)*2+th)*4
            a.I(f"ds_read_b128 v[{r}:{r+3}], v7 offset:{th*XF_TH+ks*XF_KS}")
    acc=lambda ti,th: ACC+(ti*2+th)*4
    def gemm(tis):
        rd(0); rd(1)
        for ks in range(18):
            if ks+2<18: rd(ks+2)
            a.I(f"s_waitcnt lgkmcnt({min(2,17-ks)*2})")
            for ti in tis:
                for th in range(2):
                    d=acc(ti,th); r=vr(FR+((ks%3)*2+th)*4,4)
                    c="0" if ks==0 else vr(d,4)
                    if ti<4: a.I(f"v_mfma_f32_16x16x32_bf16 {vr(d,4)}, {wreg(ti,ks)}, {r}, {c}")
                    else:    a.I(f"v_mfma_f32_16x16x32_bf16 {vr(d,4)}, {r}, {wreg(ti,ks)}, {c}")
    a.I(f"""s_lshl_b32 s17, s10, 14
    s_add_u32 s17, s17, s16
    s_add_u32 s17, s17, {KV}
    s_add_u32 s18, s18, s17              ; + w*1024  (K)
    s_lshl_b32 s19, s5, 11
    s_add_u32 s19, s19, s17
    s_add_u32 s19, s19, 8192             ; V + w*2048
    s_lshl_b32 s38, s5, 10
    s_add_u32 s38, s38, s12
    v_add_u32 v5, s38, v{L16}
    s_lshl_b32 s38, s5, 11
    s_add_u32 s38, s38, s12
    v_add_u32 v6, s38, v{L16}
    s_add_u32 s39, s18, 4096
    v_lshrrev_b32 v7, 8, v{L16}
    v_lshl_add_u32 v7, v7, 4, v{L16}""")
    gemm((2,3,4,5))
    def qk(m,ob):
        for th in range(2):
            o=ob+th*4; d0=acc(2*m,th); d1=acc(2*m+1,th)
            a.I(f"""v_cvt_pk_bf16_f32 v{o}, v{d0}, v{d0+1}
            v_cvt_pk_bf16_f32 v{o+1}, v{d1}, v{d1+1}
            v_cvt_pk_bf16_f32 v{o+2}, v{d0+2}, v{d0+3}
            v_cvt_pk_bf16_f32 v{o+3}, v{d1+2}, v{d1+3}""")
            if m==1: a.I(f"buffer_store_dwordx4 v[{o}:{o+3}], v{L16}, s[20:23], s{18 if th==0 else 39} offen sc1")
            a.I(f"ds_write_b128 v5, v[{o}:{o+3}] offset:{m*8192+th*4096}")
    qk(1,32)
    for tau in range(2):
        o=40+tau*4; d0=acc(4+tau,0); d1=acc(4+tau,1)
        a.I(f"""v_cvt_pk_bf16_f32 v{o}, v{d0}, v{d0+1}
        v_cvt_pk_bf16_f32 v{o+1}, v{d0+2}, v{d0+3}
        v_cvt_pk_bf16_f32 v{o+2}, v{d1}, v{d1+1}
        v_cvt_pk_bf16_f32 v{o+3}, v{d1+2}, v{d1+3}
        buffer_store_dwordx4 v[{o}:{o+3}], v{L16}, s[20:23], s19 offen offset:{tau*1024} sc1
        ds_write_b128 v6, v[{o}:{o+3}] offset:{16384+tau*1024}""")
    a.I("s_waitcnt lgkmcnt(0)")
    gemm((0,1))
    a.I(f"""s_waitcnt vmcnt(0)
    s_barrier
    s_cmp_lg_u32 s5, 0
    s_cbranch_scc1 {P}B_q
    s_lshl_b32 s17, s6, 6
    s_add_u32 s17, s17, s10
    s_lshl_b32 s17, s17, 7
    s_add_u32 s17, s17, {flg}""")
    post_flag(a,17,8)
    a.L(P+"B_q")
    a.I("s_nop 3")
    qk(0,8)
    a.I("s_waitcnt lgkmcnt(0)\ns_barrier")
    a.L(P+"B_attn")
    if RT:
        a.I(f"s_cmp_lg_u32 s10, s7\ns_cbranch_scc1 {P}B_a2"); rt(a,3,8); a.L(P+"B_a2")
    a.I(f"""s_cmp_lt_i32 s11, 0
    s_cbranch_scc1 {P}B_next
    s_lshl_b32 s16, s11, 5
    s_add_u32 s16, s16, s6
    s_lshl_b32 s17, s6, 21
    s_lshl_b32 s18, s11, 12
    s_add_u32 s17, s17, s18
    s_add_u32 s17, s17, {KVM}
    s_lshl_b32 s18, s5, 10
    s_add_u32 s18, s18, s17
    v_add_u32 v6, s13, v{L16}
    s_lshl_b32 s38, s5, 11
    v_add_u32 v7, s38, v6""")
    KM=8; VM=16; VF=20; QF=28; KF=44; S1=60; S2=64; Sm=68; ON=72; T=78; O0=44; O1=48
    a.I(f"""ds_read_b128 v[{VF}:{VF+3}], v7 offset:16384
    ds_read_b128 v[{VF+4}:{VF+7}], v7 offset:17408""")
    for i in range(4): a.I(f"v_mov_b32 v{ON+i}, 0x3f803f80")
    a.I(f"""s_lshl_b32 s38, s5, 9
    v_lshrrev_b32 v5, 1, v{L16}
    v_add_u32 v5, s38, v5""")
    a.L(P+"B_poll")
    a.I(f"""buffer_load_dwordx4 v[{KM}:{KM+3}], v{L16}, s[20:23], s18 offen sc1
    s_waitcnt vmcnt(0)
    v_max3_u32 v{T}, v{KM}, v{KM+1}, v{KM+2}
    v_max_u32 v{T}, v{T}, v{KM+3}
    v_cmp_eq_u32 vcc, -1, v{T}
    s_cbranch_vccz {P}B_go""")
    spin_tail(a,P+"B_poll",None,sleep=2)
    a.L(P+"B_go")
    rt(a,4,77)
    a.I(f"""ds_write_b64 v5, v[{KM}:{KM+1}] offset:{BTK}
    v_mov_b64 v[{VM}:{VM+1}], v[{KM+2}:{KM+3}]
    v_and_b32 v{T}, 0x200, v{L16}
    v_bfe_u32 v{T+1}, v{L16}, 8, 1
    v_lshl_add_u32 v{T}, v{T+1}, 6, v{T}
    v_bfe_u32 v{T+1}, v{L16}, 6, 2
    v_lshl_add_u32 v{T}, v{T+1}, 3, v{T}
    v_bfe_u32 v{T+1}, v{L16}, 4, 2
    v_lshl_add_u32 v{T}, v{T+1}, 7, v{T}
    s_waitcnt lgkmcnt(0)
    s_barrier""")
    for sg_ in range(2):
        for rho in range(2):
            a.I(f"ds_read_b64_tr_b16 v[{KM+4*sg_+2*rho}:{KM+4*sg_+2*rho+1}], v{T} offset:{BTK+sg_*1024+rho*32}")
    a.I(f"""s_lshl_b32 s17, s16, 13
    s_lshl_b32 s18, s5, 11
    s_add_u32 s17, s17, s18
    s_add_u32 s17, s17, {OBUF}
    v_mov_b32 v76, 0xff800000
    v_mov_b32 v{VM+2}, v{VM+1}
    v_mov_b32 v{VM+3}, 0""")
    for tq in range(2):
        for ks in range(4): a.I(f"ds_read_b128 v[{QF+4*ks}:{QF+4*ks+3}], v6 offset:{tq*4096+ks*1024}")
        for i in range(4): a.I(f"v_mov_b32 v{Sm+i}, 0")
        for tk in range(2):
            S=(S1,S2)[tk]
            for ks in range(4): a.I(f"ds_read_b128 v[{KF+4*ks}:{KF+4*ks+3}], v6 offset:{8192+tk*4096+ks*1024}")
            a.I("s_waitcnt lgkmcnt(0)")
            for ks in range(4):
                c="0" if ks==0 else vr(S,4)
                a.I(f"v_mfma_f32_16x16x32_bf16 {vr(S,4)}, {vr(KF+4*ks,4)}, {vr(QF+4*ks,4)}, {c}")
            a.I("s_nop 3")
        for sg_ in range(2):
            a.I(f"v_smfmac_f32_16x16x64_bf16 {vr(Sm,4)}, {vr(KM+4*sg_,4)}, {vr(QF+8*sg_,8)}, v{IDX}")
        for tk in range(2):
            S=(S1,S2)[tk]
            for r in range(4):
                a.I(f"""v_cmp_le_i32 vcc, {r+4*(tk-tq)}, v{DEL}
                v_cndmask_b32 v{S+r}, v76, v{S+r}, vcc""")
        softmax(a,S1,S2,Sm,T,14)
        pv(a,S1,Sm,VF,VM,ON,O0,O1,S2,52+4*tq)
        a.I(f"buffer_store_dwordx4 v[{52+4*tq}:{55+4*tq}], v{L16}, s[20:23], s17 offen offset:{tq*1024} sc1")
        if tq==0: a.I("s_nop 1")
    a.I(f"""s_waitcnt vmcnt(0)
    s_barrier
    s_cmp_lg_u32 s5, 0
    s_cbranch_scc1 {P}B_next
    s_lshl_b32 s17, s16, 7
    s_add_u32 s17, s17, {flg+OFLAG}
    v_mov_b32 v8, 1
    s_mov_b64 exec, 1
    buffer_store_dword v8, v{L16}, s[20:23], s17 offen sc1
    s_mov_b64 exec, -1""")
    a.L(P+"B_next")
    rt(a,5,8)
    a.I(f"""s_mov_b32 s11, s10
    s_add_u32 s10, s10, {NB}
    s_mov_b32 s38, s12
    s_mov_b32 s12, s13
    s_mov_b32 s13, s38
    s_cmp_lt_u32 s11, 64
    s_cbranch_scc1 {P}B_loop
    s_cmp_eq_u32 s95, 1
    s_cbranch_scc1 {P}Efin""")
    next_layer(a)
    a.I(f"s_branch {P}B_layer")

def role_c(a, P):
    flg=FLAGS+OFLAG; xdst=XA
    L16=0
    def wreg(kl,tau):
        f=kl*3+tau
        return ar(4*f,4) if f<64 else vr(128+4*(f-64),4)
    a.L(P+"C")
    lane(a,0)
    a.I(f"""s_and_b32 s8, s4, 31
    s_cmp_ge_u32 s4, 224
    s_cselect_b32 s9, 8, 0
    s_sub_u32 s8, s8, s9
    s_mov_b32 s39, s8
    s_sub_u32 s9, s4, 160
    s_lshr_b32 s9, s9, 5
    s_mov_b32 s6, s9
    s_mul_i32 s40, s9, 24
    s_add_u32 s40, s40, s8
    s_cmp_ge_u32 s8, 12
    s_cselect_b32 s9, 1, 0
    s_mov_b32 s15, s9                    ; theta
    s_mul_i32 s9, s9, 12
    s_sub_u32 s7, s8, s9                 ; cb
    v_and_b32 v1, 7, v0
    v_lshlrev_b32 v1, 2, v1
    v_and_b32 v10, 15, v0
    v_lshrrev_b32 v11, 2, v10
    v_lshlrev_b32 v11, 3, v11
    v_and_b32 v12, 3, v10
    v_add_u32 v11, v11, v12
    v_mul_u32_u24 v2, 1152, v11
    v_lshrrev_b32 v12, 4, v0
    v_mul_u32_u24 v12, 24, v12
    v_add_u32 v2, v2, v12
    v_lshlrev_b32 v{L16}, 4, v0
    s_mul_i32 s9, s5, 3072
    v_add_u32 v3, s9, v{L16}
    s_mul_i32 s30, s5, {1024*1152}
    s_mul_i32 s9, s7, 96
    s_add_u32 s30, s30, s9
    s_lshl_b32 s9, s5, 12
    v_add_u32 v9, s9, v{L16}
    v_bfe_u32 v20, v{L16}, 6, 2
    v_lshrrev_b32 v21, 8, v{L16}
    v_lshl_add_u32 v20, v21, 3, v20
    v_mul_u32_u24 v20, 96, v20
    v_bfe_u32 v21, v{L16}, 4, 2
    v_mul_u32_u24 v21, 24, v21
    v_add3_u32 v8, v20, v21, s9
    v_lshrrev_b32 v20, 4, v{L16}""")
    for i in range(3):
        a.I(f"""v_add_u32 v21, {64*i}, v20
        v_mul_u32_u24 v22, 171, v21
        v_lshrrev_b32 v22, 10, v22
        v_mul_u32_u24 v23, 6, v22
        v_sub_u32 v23, v21, v23
        v_mul_u32_u24 v22, 1152, v22
        v_lshl_add_u32 v{5+i}, v23, 4, v22""")
    def wt(kl,tau):
        f=kl*3+tau
        return ('a',4*f) if f<64 else ('v',128+4*(f-64))
    chunks=[]
    for kl in range(32):
        g=[wt(kl,t) for t in range(3)]
        chunks.append(dict(srd=SQ+12, voff=[5,6,7], soff=[(30,32*kl*1152)]*3, grp=g,
            rd=[((g[t][0],g[t][1]+2*rho),8,rho*384+t*8) for t in range(3) for rho in range(2)]))
    if os.environ.get("CDEL"): wait_dbg(a,DB_TAB,NOTH,10,sleep=16)
    rawload(a,chunks,9,flags="")
    a.I("s_barrier")
    wait_dbg(a,DB_INIT,NOTH,8)
    rt(a,1,14)
    a.L(P+"C_loop")
    a.I(f"""s_lshl_b32 s10, s6, 5
    s_lshl_b32 s11, s5, 3
    s_add_u32 s10, s10, s11              ; s*32+8w
    s_lshl_b32 s11, s6, 12
    s_add_u32 s11, s11, {flg}
    s_lshl_b32 s12, s10, 13
    s_add_u32 s12, s12, {OBUF}
    s_lshl_b32 s14, s15, 10
    s_add_u32 s12, s12, s14
    s_mul_i32 s13, s6, {32*1152}
    s_mul_i32 s14, s7, 96
    s_add_u32 s13, s13, s14
    s_mul_i32 s14, s15, {4*1152}
    s_add_u32 s13, s13, s14              ; x offset
    """)
    wait_flags(a,11,32,4,L16,sh=7)
    a.L(P+"C_go")
    rt(a,4,14)
    ACC=16; FB=28; NR=25
    def ld(f):
        r=FB+4*(f%NR)
        a.I(f"buffer_load_dwordx4 v[{r}:{r+3}], v{L16}, s[20:23], s12 offen offset:{(f&1)*2048} sc1")
        if f&1==1: a.I("s_add_u32 s12, s12, 4096")
    for f in range(NR): ld(f)
    for kl in range(32):
        issued=min(32,NR+kl)+(2 if kl>7 else 0)
        a.I(f"s_waitcnt vmcnt({issued-kl-1})")
        r=FB+4*(kl%NR)
        for tau in range(3):
            d=ACC+tau*4
            c="0" if kl==0 else vr(d,4)
            a.I(f"v_mfma_f32_16x16x32_bf16 {vr(d,4)}, {wreg(kl,tau)}, {vr(r,4)}, {c}")
        if NR+kl<32: ld(NR+kl)
        if kl==7:
            a.I("""buffer_load_dwordx4 v[8:11], v2, s[24:27], s13 offen sc1
            buffer_load_dwordx2 v[12:13], v2, s[24:27], s13 offen offset:16 sc1""")
    for i in range(3): a.I(f"ds_write_b128 v3, {vr(ACC+4*i,4)} offset:{1024*i}")
    a.I(f"""s_waitcnt vmcnt(0) lgkmcnt(0)
    s_barrier
    s_cmp_lg_u32 s5, 0
    s_cbranch_scc1 {P}C_next""")
    for w in range(1,4):
        for tau in range(3):
            a.I(f"ds_read_b128 {vr(ACC+(w*3+tau)*4,4)}, v{L16} offset:{w*3072+tau*1024}")
    a.I("s_waitcnt lgkmcnt(0)\ns_barrier")
    for p in range(6):
        x=8+p; d=ACC+2*p
        a.I(f"""v_pk_add_f32 v[{d}:{d+1}], v[{d}:{d+1}], v[{d+12}:{d+13}]
        v_pk_add_f32 v[{d+24}:{d+25}], v[{d+24}:{d+25}], v[{d+36}:{d+37}]
        v_lshlrev_b32 v14, 16, v{x}
        v_and_b32 v15, 0xffff0000, v{x}
        v_pk_add_f32 v[{d}:{d+1}], v[{d}:{d+1}], v[{d+24}:{d+25}]
        v_pk_add_f32 v[14:15], v[14:15], v[{d}:{d+1}]
        v_cvt_pk_bf16_f32 v{x}, v14, v15""")
    a.I(f"""s_add_u32 s13, s13, {xdst}
    buffer_store_dwordx4 v[8:11], v2, s[20:23], s13 offen sc1
    buffer_store_dwordx2 v[12:13], v2, s[20:23], s13 offen offset:16 sc1
    s_lshl_b32 s11, s6, 7
    s_lshl_b32 s12, s39, 2
    s_add_u32 s11, s11, s12
    s_add_u32 s11, s11, {FLAGS+XFLAG}
    s_waitcnt vmcnt(0)""")
    post_flag(a,11,14)
    rt(a,5,14)
    a.I(f"s_branch {P}C_nf")
    a.L(P+"C_next")
    a.I("s_barrier")
    a.L(P+"C_nf")
    a.I(f"""s_add_u32 s6, s6, {3 if NC3 else 2}
    s_cmp_lt_u32 s6, 64
    s_cbranch_scc1 {P}C_loop
    s_mov_b32 s41, 0
    s_branch {P}L5""")
```

```python
from common import *
N5=640; N4=1296; N6=56
B5=0; B4=B5+N5; B6=B4+N4; NT=B6+N6

def others(a, P):
    a.L(P+"O")
    a.I(f"""s_lshl_b32 s45, s44, 2
    s_add_u32 s45, s45, s5               ; ow 0..191
    v_lshrrev_b32 v1, 4, v0
    v_and_b32 v2, 15, v0
    v_lshlrev_b32 v3, 4, v0
    v_mov_b32 v4, 0
    v_mov_b32 v5, 0
    v_mov_b32 v6, 0
    v_mov_b32 v7, 0
    v_mov_b32 v8, -1
    v_mov_b32 v9, -1
    v_mov_b32 v10, -1
    v_mov_b32 v11, -1""")
    def fill(base,n,reg):
        l=a.lab("fl")
        a.I("s_mov_b32 s3, s45")
        a.L(l)
        a.I(f"""s_cmp_ge_u32 s3, {n}
        s_cbranch_scc1 {l}d
        s_lshl_b32 s6, s3, 10
        s_add_u32 s6, s6, {base}
        buffer_store_dwordx4 v[{reg}:{reg+3}], v3, s[20:23], s6 offen sc1
        s_add_u32 s3, s3, 192
        s_branch {l}""")
        a.L(l+"d")
    fill(FLAGS,FLAGB//1024,4); fill(PART,288,8); fill(MEMB,36,8); fill(MEMB+0x10000,2,4); fill(LOFF+FLAGS,FLAGB//1024,4)
    a.I(f"""s_cmp_lg_u32 s45, 100
    s_cbranch_scc1 {P}O_nm
    s_load_dwordx2 s[8:9], s[0:1], {KA['mem0']}
    v_lshrrev_b32 v12, 2, v2
    v_lshlrev_b32 v12, 1, v12
    v_and_b32 v13, 1, v0
    v_add_u32 v12, v12, v13
    v_mul_u32_u24 v17, 1152, v12
    v_bfe_u32 v12, v0, 1, 1
    v_lshl_add_u32 v18, v12, 6, v17
    v_lshl_add_u32 v18, v1, 3, v18
    v_lshl_add_u32 v17, v1, 5, v17
    v_lshl_add_u32 v17, v12, 2, v17
    s_mov_b32 s30, 0x05040100
    s_mov_b32 s31, 0x07060302
    s_waitcnt lgkmcnt(0)""")
    srd(a,80,8,9216)
    for k in range(8):
        a.I(f"""buffer_load_dwordx2 v[{24+4*k}:{25+4*k}], v18, s[80:83], 0 offen offset:{128*k}
        buffer_load_dwordx2 v[{26+4*k}:{27+4*k}], v18, s[80:83], 0 offen offset:{128*k+32}""")
    for j in range(4): a.I(f"buffer_load_dword v{56+j}, v17, s[80:83], 0 offen offset:{1024+8*j}")
    a.I(f"s_mov_b32 s9, {MEMB+4*9216}\ns_waitcnt vmcnt(0)")
    for k in range(8):
        b=24+4*k
        a.I(f"""v_perm_b32 v60, v{b+2}, v{b}, s30
        v_perm_b32 v61, v{b+2}, v{b}, s31
        v_perm_b32 v62, v{b+3}, v{b+1}, s30
        v_perm_b32 v63, v{b+3}, v{b+1}, s31
        buffer_store_dwordx4 v[60:63], v3, s[20:23], s9 offen sc1
        s_add_u32 s9, s9, 1024""")
    a.I(f"buffer_store_dwordx4 v[56:59], v3, s[20:23], s9 offen sc1")
    a.L(P+"O_nm")
    a.I(f"""s_load_dwordx4 s[12:15], s[0:1], {KA['wr']}
    s_waitcnt vmcnt(0) lgkmcnt(0)
    s_barrier
    s_cmp_lg_u32 s5, 0
    s_cbranch_scc1 {P}O_t""")
    add_dbg(a,DB_INIT,12)
    a.L(P+"O_t")
    rt(a,1,12)
    srd(a,56,12,2048*578)
    srd(a,80,14,2048*578)
    if int(os.environ.get("PRET",1)):
        fill(XA,2304,4); fill(LOFF+XIN,2304,4); fill(LOFF+XA,2304,4)
    a.I(f"s_sub_u32 s46, s45, 192")
    a.L("P_end")
    a.I(f"""s_mov_b64 exec, -1
    s_add_u32 s46, s46, 192
    s_mov_b32 s3, s46
    s_cmp_lt_u32 s3, {B4}
    s_cbranch_scc1 P_T5
    s_cmp_lt_u32 s3, {B6}
    s_cbranch_scc1 P_T4
    s_cmp_lt_u32 s3, {NT}
    s_cbranch_scc1 P_T6
    s_waitcnt vmcnt(0)
    s_barrier
    s_cmp_lg_u32 s5, 0
    s_cbranch_scc1 {P}O_d""")
    add_dbg(a,DB_TAB,12)
    a.L(P+"O_d")
    rt(a,2,12)
    a.I(f"""s_cmp_lt_u32 s44, {3*ND}
    s_cbranch_scc1 {P}D
    s_cmp_lt_u32 s44, {3*ND+3*NE}
    s_cbranch_scc1 {P}E
    s_cmp_ge_u32 s44, {24 if NC3 else 99}
    s_cbranch_scc1 {P}C
    s_add_u32 s40, s44, {(72 if NC3 else 48)-3*ND-3*NE}
    s_mov_b32 s41, 1
    s_branch {P}L5""")
    a.L("P_T4")
    a.I(f"""s_sub_u32 s3, s3, {B4}
    s_cmp_ge_u32 s3, 648
    s_cselect_b32 s38, 1, 0          ; inv?
    s_cselect_b32 s39, 648, 0
    s_sub_u32 s3, s3, s39            ; f""")
    sdiv(a,32,3,18)
    a.I(f"""s_mul_i32 s33, s32, 18
    s_sub_u32 s33, s3, s33           ; ks
    s_lshl_b32 s34, s33, 5
    v_lshl_add_u32 v3, v1, 3, s34
    s_mov_b32 s40, {-(-(1<<32)//576)}
    s_mov_b32 s41, 0x3ae38e39        ; 1/576
    s_cmp_eq_u32 s38, 1
    s_cbranch_scc1 P_T4i
    s_lshl_b32 s34, s32, 4
    v_add_u32 v4, s34, v2            ; c (fixed)""")
    def elem(dst, d, c, wgt):
        a.I(f"""v_cmp_eq_u32 vcc, 1, v{c}
        v_lshrrev_b32 v30, 1, v{c}
        v_and_b32 v31, 1, v{c}
        v_mul_u32_u24 v31, 144, v31
        v_mov_b32 v32, 288
        v_cndmask_b32 v30, v30, v32, vcc
        v_cndmask_b32 v31, v31, 0, vcc
        v_mad_u32_u24 v30, v30, v{d}, v31
        v_mul_hi_u32 v31, v30, s40
        v_mul_u32_u24 v31, 576, v31
        v_sub_u32 v30, v30, v31
        v_cvt_f32_u32 v30, v30
        v_mul_f32 v30, s41, v30
        v_cos_f32 v{dst}, v30""")
        if wgt:
            a.I(f"""v_cmp_gt_u32 vcc, 2, v{c}
            v_add_f32 v31, v{dst}, v{dst}
            v_cndmask_b32 v{dst}, v31, v{dst}, vcc""")
    for t in range(8):
        a.I(f"v_add_u32 v5, {t}, v3")
        elem(8+t,5,4,False)
    a.I(f"s_mov_b32 s35, {FIMG}\ns_branch P_T4s")
    a.L("P_T4i")
    sdiv(a,36,32,3)
    a.I(f"""s_mul_i32 s37, s36, 3
    s_sub_u32 s37, s32, s37          ; tau
    s_mul_i32 s36, s36, 48
    s_lshl_b32 s37, s37, 2
    s_add_u32 s36, s36, s37
    v_lshrrev_b32 v4, 2, v2
    v_mul_u32_u24 v4, 12, v4
    v_and_b32 v5, 3, v2
    v_add3_u32 v4, v4, v5, s36       ; d (fixed)
    v_mov_b32 v34, 288""")
    for t in range(8):
        a.I(f"v_add_u32 v5, {t}, v3")
        elem(8+t,4,5,True)
    a.I(f"s_mov_b32 s35, {FINV}")
    a.L("P_T4s")
    a.I("s_nop 1")
    for p in range(4):
        a.I(f"v_cvt_pk_bf16_f32 v{20+p}, v{8+2*p}, v{9+2*p}")
    a.I("""s_lshl_b32 s3, s3, 10
    s_add_u32 s35, s35, s3
    v_lshlrev_b32 v4, 4, v0
    buffer_store_dwordx4 v[20:23], v4, s[20:23], s35 offen sc1
    s_branch P_end""")
    a.L("P_T5")
    a.I(f"""s_lshr_b32 s32, s3, 7        ; kg
    s_lshr_b32 s33, s3, 6
    s_and_b32 s33, s33, 1          ; hf
    s_lshr_b32 s34, s3, 3
    s_and_b32 s34, s34, 7          ; q
    s_and_b32 s35, s3, 7
    s_lshl_b32 s36, s32, 6
    v_add_u32 v3, s36, v0          ; kd
    v_lshlrev_b32 v4, 1, v3
    s_lshl_b32 s36, s33, 5
    s_lshl_b32 s37, s34, 2
    s_add_u32 s36, s36, s37
    s_lshl_b32 s36, s36, 5         ; 32*(32hf+4q)
    s_lshl_b32 s37, s35, 2
    s_add_u32 s36, s36, s37        ; ks0
    s_mul_i32 s36, s36, 578""")
    for i in range(4):
        for k in range(4):
            a.I(f"""buffer_load_ushort v{8+4*k+i}, v4, s[56:59], s36 offen offset:{578*k}
            buffer_load_ushort v{24+4*k+i}, v4, s[80:83], s36 offen offset:{578*k}""")
        if i<3: a.I(f"s_add_u32 s36, s36, {32*578}")
    a.I(f"""v_lshlrev_b32 v5, 13, v3
    s_lshl_b32 s36, s34, 10
    s_lshl_b32 s37, s33, 9
    s_add_u32 s36, s36, s37
    s_lshl_b32 s37, s35, 6
    s_add_u32 s36, s36, s37
    s_add_u32 s36, s36, {WFI}
    v_cmp_gt_u32 vcc, 289, v3
    s_and_saveexec_b64 s[48:49], vcc
    s_waitcnt vmcnt(0)""")
    for r in range(16):
        a.I(f"v_lshl_or_b32 v{8+r}, v{24+r}, 16, v{8+r}")
    for k in range(4):
        a.I(f"buffer_store_dwordx4 v[{8+4*k}:{11+4*k}], v5, s[20:23], s36 offen offset:{16*k} sc1")
    a.I("s_branch P_end")
    a.L("P_T6")
    a.I(f"""s_sub_u32 s3, s3, {B6}
    v_and_b32 v3, 31, v0           ; l&31
    v_lshrrev_b32 v4, 5, v0        ; hf
    v_bfe_u32 v5, v3, 2, 1
    v_lshlrev_b32 v5, 5, v5
    v_lshrrev_b32 v6, 3, v3
    v_lshl_add_u32 v5, v6, 2, v5
    v_and_b32 v6, 3, v3
    v_add_u32 v5, v5, v6
    s_mov_b32 s41, 0x3a000000      ; 1/2048
    v_lshlrev_b32 v7, 4, v0
    s_cmp_ge_u32 s3, 54
    s_cbranch_scc1 P_end
    s_cmp_ge_u32 s3, 32
    s_cbranch_scc1 P_T6c
    s_cmp_ge_u32 s3, 16
    s_cbranch_scc1 P_T6b""")
    def cs(dst, ang, off):
        a.I(f"""v_add_u32 v30, {off}, v{ang}
        v_and_b32 v30, 0x7ff, v30
        v_cvt_f32_u32 v30, v30
        v_mul_f32 v30, s41, v30
        v_cos_f32 v{dst}, v30""")
    a.I("""s_lshl_b32 s32, s3, 1
    v_lshl_add_u32 v8, v4, 5, s32
    v_mul_u32_u24 v9, v8, v3
    v_add_u32 v10, v9, v3""")
    cs(12,9,0); cs(13,10,0); cs(14,9,1536); cs(15,10,1536)
    a.I(f"""s_lshl_b32 s3, s3, 10
    s_add_u32 s3, s3, {TW1}
    s_nop 0
    buffer_store_dwordx4 v[12:15], v7, s[20:23], s3 offen sc1
    s_branch P_end""")
    a.L("P_T6b")
    import struct
    sc=struct.unpack('<I',struct.pack('<f',1.0/(2048*576)))[0]
    a.I(f"""s_sub_u32 s3, s3, 16
    s_lshr_b32 s32, s3, 3
    s_lshl_b32 s32, s32, 4
    v_add_u32 v8, s32, v5          ; s2
    s_and_b32 s33, s3, 1
    s_lshl_b32 s33, s33, 1         ; r&3
    s_bfe_u32 s34, s3, 0x20001     ; (u>>1)&3 = r>>2
    s_lshl_b32 s34, s34, 3
    s_add_u32 s33, s33, s34
    v_lshl_add_u32 v11, v4, 2, s33 ; k1
    v_mul_u32_u24 v9, v8, v11
    v_add_u32 v10, v9, v8""")
    cs(12,9,0); cs(13,10,0); cs(14,9,1536); cs(15,10,1536)
    a.I(f"""s_mov_b32 s35, {sc:#x}
    s_nop 0
    v_mul_f32 v12, s35, v12
    v_mul_f32 v13, s35, v13
    v_mul_f32 v14, s35, v14
    v_mul_f32 v15, s35, v15
    s_lshl_b32 s3, s3, 10
    s_add_u32 s3, s3, {TW2}
    buffer_store_dwordx4 v[12:15], v7, s[20:23], s3 offen sc1
    s_branch P_end""")
    a.L("P_T6c")
    a.I(f"""s_sub_u32 s3, s3, 32
    s_cmp_ge_u32 s3, 6
    s_cbranch_scc1 P_T6d
    s_lshr_b32 s32, s3, 1
    s_mov_b32 s36, 0
    s_cmp_eq_u32 s32, 1
    s_cselect_b32 s36, 1536, s36
    s_cmp_eq_u32 s32, 2
    s_cselect_b32 s36, 512, s36
    s_and_b32 s33, s3, 1
    s_lshl_b32 s33, s33, 4
    v_lshl_add_u32 v8, v4, 2, s33     ; 16k+4hf
    v_lshlrev_b32 v9, 6, v3           ; a*64""")
    for t in range(8):
        a.I(f"""v_add_u32 v10, {(t&3)+8*(t>>2)}, v8
        v_mul_u32_u24 v10, v10, v9""")
        cs(12+t,10,"s36")
    a.I("s_branch P_T6s")
    a.L("P_T6d")
    a.I(f"""s_sub_u32 s32, s3, 6
    s_cmp_ge_u32 s32, 8
    s_cselect_b32 s36, 1536, 0
    s_bfe_u32 s33, s32, 0x10002       ; phi
    s_lshl_b32 s33, s33, 4
    v_add_u32 v9, s33, v5             ; a
    v_lshlrev_b32 v9, 5, v9           ; a*32
    s_and_b32 s34, s32, 3
    s_lshl_b32 s34, s34, 3
    v_lshl_add_u32 v8, v4, 5, s34     ; 32hf+8ks""")
    for t in range(8):
        a.I(f"""v_add_u32 v10, {t}, v8
        v_mul_u32_u24 v10, v10, v9""")
        cs(12+t,10,"s36")
    a.L("P_T6s")
    a.I("s_nop 1")
    for p in range(4):
        a.I(f"v_cvt_pk_bf16_f32 v{20+p}, v{12+2*p}, v{13+2*p}")
    a.I(f"""s_lshl_b32 s3, s3, 10
    s_add_u32 s3, s3, {CST}
    buffer_store_dwordx4 v[20:23], v7, s[20:23], s3 offen sc1""")
    a.I("s_branch P_end")
```

```python
import os
from asmb import *
LOFF=0x6000000
KV=0x0
KVM=KV+0x100000+4096
OBUF=0x4000000; XA=0x5000000; ZF=0x5300000; ZO=0x5600000; FLAGS=0x5900000; XIN=0x5C00000
OFLAG=0x40000; XFLAG=0x80000; EFLAG=0x82000; DFLAG=0x82800; FFLAG=0x83000; FLAGB=0x84000
SH=0xC000000
FIMG=SH; FINV=SH+0x100000; WFI=SH+0x200000
TW1=SH+0x500000; TW2=TW1+0x4000; CST=TW1+0x8000
PART=SH+0x600000; MEMB=SH+0x700000; WOC=SH+0x800000
DBGW=0xF000000
WS_SIZE=0x10000000
XBYTES=2048*576*2
KA=dict(x=0,mem0=8,Wq=16,Wk=24,Wv=32,Wo=40,seg=48,bx=56,wr=64,wi=72,out=80,dbg=88,ws=96)

def kernel_begin(a, name):
    a.raw(f".text\n.globl {name}\n.p2align 8\n.type {name},@function\n{name}:")

def kernel_desc(name, vgpr, sgpr=96, accum=None):
    if accum is None: accum=(vgpr+3)//4*4
    return f""".section .rodata,"a"
.p2align 6
.amdhsa_kernel {name}
  .amdhsa_next_free_vgpr {vgpr}
  .amdhsa_next_free_sgpr {sgpr}
  .amdhsa_accum_offset {accum}
  .amdhsa_group_segment_fixed_size 0
  .amdhsa_kernarg_size 104
  .amdhsa_user_sgpr_count 2
  .amdhsa_user_sgpr_kernarg_segment_ptr 1
  .amdhsa_system_sgpr_workgroup_id_x 1
.end_amdhsa_kernel"""

def srd(a, d, ptr, size):
    a.I(f"""s_mov_b32 s{d}, s{ptr}
    s_and_b32 s{d+1}, s{ptr+1}, 0xffff
    s_mov_b32 s{d+2}, {size}
    s_mov_b32 s{d+3}, 0x00020000""")

def sdiv(a, q, x, d, tmp=None, maxx=1<<16):
    M=-(-(1<<32)//d)
    assert maxx*d <= (1<<32)
    a.I(f"s_mul_hi_u32 s{q}, s{x}, {M}")

DB_OVF=8; DB_INIT=10; DB_TAB=11; DB_L4=16; DB_L5=32
NB=4; NG=4; ND=3; NE=4; NOTH=48
def spin_tail(a, loop, out, sleep=0):
    import os
    if sleep: a.I(f"s_sleep {min(127,sleep*int(os.environ.get('SLM',1)))}")
    a.I(f"""s_sub_u32 s94, s94, 1
    s_cbranch_scc0 {loop}
    s_mov_b32 s94, 0""")
    if out: a.I(f"s_branch {out}")
def wait_dbg(a, word, target, v, sleep=4, layer=False):
    l=a.lab("wd")
    if layer: a.I(f"s_lshl_b32 s9, s95, 2\ns_add_u32 s9, s9, {4*word}\nv_mov_b32 v{v}, s9")
    else: a.I(f"v_mov_b32 v{v}, {4*word}")
    a.L(l)
    a.I(f"""global_load_dword v{v+1}, v{v}, s[28:29] sc1
    s_waitcnt vmcnt(0)
    v_readfirstlane_b32 s9, v{v+1}
    s_cmp_ge_u32 s9, {target}
    s_cbranch_scc1 {l}d""")
    spin_tail(a,l,None,sleep)
    a.L(l+"d")
def add_dbg(a, word, v, layer=False):
    if layer: a.I(f"s_lshl_b32 s9, s95, 2\ns_add_u32 s9, s9, {4*word}\nv_mov_b32 v{v}, s9")
    else: a.I(f"v_mov_b32 v{v}, {4*word}")
    a.I(f"""v_mov_b32 v{v+1}, 1
    s_mov_b64 exec, 1
    global_atomic_add v{v}, v{v+1}, s[28:29]
    s_mov_b64 exec, -1""")
def wait_flags(a, soff, n, v, vl16, sleep=4, sh=2, pw=1):
    l=a.lab("wf")
    import os
    sleep=int(os.environ.get("FSL",2))
    a.I(f"s_cmp_lg_u32 s5, {pw}\ns_cbranch_scc1 {l}d")
    if sh<4: a.I(f"v_lshrrev_b32 v{v}, {4-sh}, v{vl16}")
    else: a.I(f"v_lshlrev_b32 v{v}, {sh-4}, v{vl16}")
    if n>64: a.I(f"v_add_u32 v{v+2}, {64<<sh}, v{v}\nv_min_u32 v{v+2}, {(n-1)<<sh}, v{v+2}")
    else: a.I(f"v_min_u32 v{v}, {(n-1)<<sh}, v{v}")
    a.L(l)
    a.I(f"buffer_load_dword v{v+1}, v{v}, s[20:23], s{soff} offen sc1")
    if n>64: a.I(f"buffer_load_dword v{v+3}, v{v+2}, s[20:23], s{soff} offen sc1")
    a.I("s_waitcnt vmcnt(0)")
    if n>64: a.I(f"v_and_b32 v{v+1}, v{v+1}, v{v+3}")
    a.I(f"""v_cmp_ne_u32 vcc, 1, v{v+1}
    s_cbranch_vccz {l}d""")
    spin_tail(a,l,None,sleep)
    a.L(l+"d")
    a.I("s_barrier")
def post_flag(a, soff, v):
    a.I(f"""v_mov_b32 v{v}, 1
    s_mov_b64 exec, 1
    buffer_store_dword v{v}, off, s[20:23], s{soff} sc1
    s_mov_b64 exec, -1""")
def next_layer(a):
    a.I(f"""s_add_u32 s95, s95, 1
    s_add_u32 s20, s20, {LOFF}
    s_addc_u32 s21, s21, 0
    s_mov_b32 s22, {WS_SIZE-LOFF}
    s_add_u32 s24, s20, {XIN}
    s_addc_u32 s25, s21, 0""")
def lane(a, v):
    a.I(f"v_mbcnt_lo_u32_b32 v{v}, -1, 0\nv_mbcnt_hi_u32_b32 v{v}, -1, v{v}")

NC3=int(os.environ.get('NC3',2))
S3=int(os.environ.get('S3',52))
RT=bool(os.environ.get("RT"))
def rt(a, slot, v, lay="s95"):
    if not RT: return
    a.I(f"""s_memrealtime s[98:99]
    s_memtime s[100:101]
    s_lshl_b32 s8, s4, 7
    s_lshl_b32 s9, {lay}, 6
    s_add_u32 s8, s8, s9
    s_add_u32 s8, s8, {DBGW+0x10000+4*slot}
    s_waitcnt lgkmcnt(0)
    v_mov_b32 v{v}, s98
    s_mov_b64 exec, 1
    buffer_store_dword v{v}, off, s[84:87], s8
    s_add_u32 s8, s8, 0x8000
    s_nop 0
    v_mov_b32 v{v}, s100
    buffer_store_dword v{v}, off, s[84:87], s8
    s_mov_b64 exec, -1""")
```

```python
from common import *
from bstage import ln_addr, ln_load, ln_compute, XF_TH, XF_SIZE, XF_KS
import struct
from rawload import *
def f2u(x): return struct.unpack('<I',struct.pack('<f',x))[0]
SCL=f2u(128**-0.5*1.4426950408889634)
LDS_LA=163840
BUDGET=400000
import os
BST=os.environ.get('BST','sc1')
BRB=os.environ.get('BRB','')

class LQ:
    def __init__(self,a): self.a=a; self.q=[]; self.t=[]; self.done=0; self.now=0
    def op(self,text,tag=None):
        self.a.I(text); self.q.append(tag); self.t.append(self.now)
    def idx(self,*tags): return max(max(i for i,t in enumerate(self.q) if t==tag) for tag in tags)
    def needs(self,*tags): return self.idx(*tags)>=self.done
    def wait(self,*tags,age=None):
        idx=self.idx(*tags)
        if idx<self.done: return
        if age is not None:
            while idx+1<len(self.q) and self.now-self.t[idx+1]>=age: idx+=1
        n=len(self.q)-1-idx
        assert n<=15, n
        self.a.I(f"s_waitcnt lgkmcnt({n})"); self.done=idx+1
    def all(self):
        self.a.I("s_waitcnt lgkmcnt(0)"); self.done=len(self.q)

def softmax(a, S1, S2, Sm, T, sC, fill=None):
    f=fill or (lambda k: None)
    a.I(f"""v_max3_f32 v{T}, v{S1}, v{S1+1}, v{S1+2}
    v_pk_add_f32 v[{Sm}:{Sm+1}], v[{Sm}:{Sm+1}], v[{Sm+2}:{Sm+3}]
    v_max3_f32 v{T}, v{T}, v{S1+3}, v{Sm}
    v_max3_f32 v{T+1}, v{S2}, v{S2+1}, v{S2+2}
    v_max3_f32 v{T}, v{T}, v{Sm+1}, v{S2+3}
    v_max_f32 v{T}, v{T}, v{T+1}
    v_mov_b32 v{T+1}, v{T}""")
    a.I(f"v_mov_b32 v{Sm+2}, 0\nv_mov_b32 v{Sm+3}, 0")
    f(0)
    a.I(f"""v_permlane16_swap_b32 v{T}, v{T+1}
    v_max_f32 v{T}, v{T}, v{T+1}
    v_mov_b32 v{T+1}, v{T}""")
    f(1)
    a.I(f"""v_permlane32_swap_b32 v{T}, v{T+1}
    v_max_f32 v{T}, v{T}, v{T+1}
    v_mul_f32 v{T}, s{sC}, v{T}""")
    regs=[S1,S1+1,S1+2,S1+3,S2,S2+1,S2+2,S2+3,Sm,Sm+1]
    for r in regs: a.I(f"v_fma_f32 v{r}, v{r}, s{sC}, -v{T}")
    for r in regs: a.I(f"v_exp_f32 v{r}, v{r}")
    a.I(f"""v_cvt_pk_bf16_f32 v{S1}, v{S1}, v{S1+1}
    v_cvt_pk_bf16_f32 v{S1+1}, v{S1+2}, v{S1+3}
    v_cvt_pk_bf16_f32 v{S1+2}, v{S2}, v{S2+1}
    v_cvt_pk_bf16_f32 v{S1+3}, v{S2+2}, v{S2+3}
    v_cvt_pk_bf16_f32 v{Sm}, v{Sm}, v{Sm+1}
    v_mov_b32 v{Sm+1}, 0""")

def pv(a, Px, Pm, VF, VM, ONES, O0, O1, SUM, OUT):
    a.I(f"""v_mfma_f32_16x16x32_bf16 v[{SUM}:{SUM+3}], v[{ONES}:{ONES+3}], v[{Px}:{Px+3}], 0
    v_mfma_f32_16x16x32_bf16 v[{SUM}:{SUM+3}], v[{ONES}:{ONES+3}], v[{Pm}:{Pm+3}], v[{SUM}:{SUM+3}]
    v_mfma_f32_16x16x32_bf16 v[{O0}:{O0+3}], v[{VF}:{VF+3}], v[{Px}:{Px+3}], 0
    v_mfma_f32_16x16x32_bf16 v[{O1}:{O1+3}], v[{VF+4}:{VF+7}], v[{Px}:{Px+3}], 0
    v_mfma_f32_16x16x32_bf16 v[{O0}:{O0+3}], v[{VM}:{VM+3}], v[{Pm}:{Pm+3}], v[{O0}:{O0+3}]
    v_mfma_f32_16x16x32_bf16 v[{O1}:{O1+3}], v[{VM+2}:{VM+5}], v[{Pm}:{Pm+3}], v[{O1}:{O1+3}]
    v_rcp_f32 v{SUM}, v{SUM}
    v_rcp_f32 v{SUM+1}, v{SUM+1}
    v_pk_mul_f32 v[{O0}:{O0+1}], v[{O0}:{O0+1}], v[{SUM}:{SUM+1}]
    v_pk_mul_f32 v[{O0+2}:{O0+3}], v[{O0+2}:{O0+3}], v[{SUM}:{SUM+1}]
    v_pk_mul_f32 v[{O1}:{O1+1}], v[{O1}:{O1+1}], v[{SUM}:{SUM+1}]
    v_pk_mul_f32 v[{O1+2}:{O1+3}], v[{O1+2}:{O1+3}], v[{SUM}:{SUM+1}]
    v_cvt_pk_bf16_f32 v{OUT}, v{O0}, v{O0+1}
    v_cvt_pk_bf16_f32 v{OUT+1}, v{O0+2}, v{O0+3}
    v_cvt_pk_bf16_f32 v{OUT+2}, v{O1}, v{O1+1}
    v_cvt_pk_bf16_f32 v{OUT+3}, v{O1+2}, v{O1+3}""")

def stamp(a, P, i, on):
    if on: a.I(f"""s_memtime s[66:67]
    s_waitcnt lgkmcnt(0)
    s_sub_u32 s68, s66, s69
    s_add_u32 s{70+i}, s{70+i}, s68
    s_mov_b32 s69, s66""")

def role_b(a, P):
    flg=FLAGS
    L16=0; GO=1; LO=2; DEL=3; IDX=4
    QS=XF_SIZE+64-(XF_SIZE%64); QS=43008
    BTK=40960
    def wreg(ti,ks):
        f=ks*6+ti
        return ar(4*f,4) if f<64 else vr(80+4*(f-64),4)
    a.L(P+"B")
    a.I(f"""s_sub_u32 s8, s4, 32""")
    sdiv(a,6,8,NB)
    a.I(f"""s_mul_i32 s7, s6, {NB}
    s_sub_u32 s7, s8, s7
    v_mov_b32 v10, s5""")
    ln_addr(a,"v10",0,GO,LO,12)
    a.I(f"""v_and_b32 v10, 15, v0
    v_lshrrev_b32 v11, 2, v10
    v_lshlrev_b32 v11, 3, v11
    v_and_b32 v12, 3, v10
    v_add_u32 v11, v11, v12
    v_lshrrev_b32 v12, 4, v0
    v_lshlrev_b32 v12, 3, v12
    v_sub_u32 v{DEL}, v11, v12
    v_mov_b32 v{IDX}, 0x4444
    v_mov_b32 v11, 0xeeee
    v_and_b32 v12, 2, v0
    v_cmp_eq_u32 vcc, 2, v12
    v_cndmask_b32 v{IDX}, v{IDX}, v11, vcc
    v_lshlrev_b32 v{L16}, 4, v0""")
    def wt(ti,ks):
        f=ks*6+ti
        return ('a',4*f) if f<64 else ('v',80+4*(f-64))
    a.I(f"""v_lshrrev_b32 v20, 6, v{L16}          ; a
    v_bfe_u32 v21, v{L16}, 4, 2            ; piece
    v_lshlrev_b32 v8, 13, v20
    v_lshl_add_u32 v8, v21, 4, v8
    v_and_b32 v22, 3, v20
    v_lshrrev_b32 v23, 8, v{L16}
    v_lshl_add_u32 v22, v23, 3, v22
    v_lshlrev_b32 v22, 6, v22
    v_lshl_add_u32 v22, v21, 4, v22
    s_lshl_b32 s9, s5, 12
    v_add_u32 v9, s9, v22
    v_add_u32 v10, s9, v{L16}
    s_lshl_b32 s30, s6, 8
    s_lshl_b32 s9, s5, 6
    s_add_u32 s30, s30, s9""")
    chunks=[]
    for k in range(9):
        for mat in range(3):
            g=[wt(2*mat+t,2*k+hb) for t in range(2) for hb in range(2)]
            chunks.append(dict(srd=SQ+4*mat, voff=[8]*4, soff=[(30,(64*k+16*i)*8192) for i in range(4)], grp=g,
                rd=[((g[2*t+hb][0],g[2*t+hb][1]+2*rho),9,hb*2048+rho*256+t*8) for t in range(2) for hb in range(2) for rho in range(2)]))
    rawload(a,chunks,10,flags="")
    a.I("s_barrier")
    wait_dbg(a,DB_INIT,NOTH,8)
    a.L(P+"B_layer")
    rt(a,1,8)
    a.I(f"""s_mov_b32 s10, s7            ; s_q
    s_mov_b32 s11, -1                    ; s_a
    s_mov_b32 s12, {QS}
    s_mov_b32 s13, {QS+24576}
    s_mov_b32 s14, {SCL}
    s_waitcnt vmcnt(0)""")
    a.L(P+"B_loop")
    a.I(f"""s_cmp_ge_u32 s10, 64
    s_cbranch_scc1 {P}B_attn""")
    X=8; T=44
    a.I(f"""s_cmp_eq_u32 s95, 0
    s_cbranch_scc1 {P}B_x
    s_lshl_b32 s15, s10, 4
    s_add_u32 s15, s15, {FLAGS+EFLAG}""")
    wait_flags(a,15,3,8,L16,sleep=2)
    a.L(P+"B_x")
    if RT:
        a.I(f"s_cmp_lg_u32 s10, s7\ns_cbranch_scc1 {P}B_x2"); rt(a,2,8); a.L(P+"B_x2")
    a.I(f"s_mul_i32 s15, s10, {32*1152}")
    ln_load(a,X,GO,24,"s15","sc1")
    a.I(f"""s_lshl_b32 s16, s6, 21
    s_lshl_b32 s17, s10, 12
    s_add_u32 s17, s17, s16
    s_lshl_b32 s18, s5, 10
    s_add_u32 s17, s17, s18
    s_add_u32 s17, s17, {KVM}
    v_mov_b32 v44, -1
    v_mov_b32 v45, -1
    v_mov_b32 v46, -1
    v_mov_b32 v47, -1
    buffer_store_dwordx4 v[44:47], v{L16}, s[20:23], s17 offen sc1
    s_waitcnt vmcnt(1)""")
    ln_compute(a,X,T,LO,36,37)
    a.I("s_waitcnt lgkmcnt(0)\ns_barrier")
    ACC=32; FR=8
    def rd(ks):
        for th in range(2):
            r=FR+((ks%3)*2+th)*4
            a.I(f"ds_read_b128 v[{r}:{r+3}], v7 offset:{th*XF_TH+ks*XF_KS}")
    acc=lambda ti,th: ACC+(ti*2+th)*4
    def gemm(tis):
        rd(0); rd(1)
        for ks in range(18):
            if ks+2<18: rd(ks+2)
            a.I(f"s_waitcnt lgkmcnt({min(2,17-ks)*2})")
            for ti in tis:
                for th in range(2):
                    d=acc(ti,th); r=vr(FR+((ks%3)*2+th)*4,4)
                    c="0" if ks==0 else vr(d,4)
                    if ti<4: a.I(f"v_mfma_f32_16x16x32_bf16 {vr(d,4)}, {wreg(ti,ks)}, {r}, {c}")
                    else:    a.I(f"v_mfma_f32_16x16x32_bf16 {vr(d,4)}, {r}, {wreg(ti,ks)}, {c}")
    a.I(f"""s_lshl_b32 s17, s10, 14
    s_add_u32 s17, s17, s16
    s_add_u32 s17, s17, {KV}
    s_add_u32 s18, s18, s17              ; + w*1024  (K)
    s_lshl_b32 s19, s5, 11
    s_add_u32 s19, s19, s17
    s_add_u32 s19, s19, 8192             ; V + w*2048
    s_lshl_b32 s38, s5, 10
    s_add_u32 s38, s38, s12
    v_add_u32 v5, s38, v{L16}
    s_lshl_b32 s38, s5, 11
    s_add_u32 s38, s38, s12
    v_add_u32 v6, s38, v{L16}
    s_add_u32 s39, s18, 4096
    v_lshrrev_b32 v7, 8, v{L16}
    v_lshl_add_u32 v7, v7, 4, v{L16}""")
    gemm((2,3,4,5))
    def qk(m,ob):
        for th in range(2):
            o=ob+th*4; d0=acc(2*m,th); d1=acc(2*m+1,th)
            a.I(f"""v_cvt_pk_bf16_f32 v{o}, v{d0}, v{d0+1}
            v_cvt_pk_bf16_f32 v{o+1}, v{d1}, v{d1+1}
            v_cvt_pk_bf16_f32 v{o+2}, v{d0+2}, v{d0+3}
            v_cvt_pk_bf16_f32 v{o+3}, v{d1+2}, v{d1+3}""")
            if m==1: a.I(f"buffer_store_dwordx4 v[{o}:{o+3}], v{L16}, s[20:23], s{18 if th==0 else 39} offen sc1")
            a.I(f"ds_write_b128 v5, v[{o}:{o+3}] offset:{m*8192+th*4096}")
    qk(1,32)
    for tau in range(2):
        o=40+tau*4; d0=acc(4+tau,0); d1=acc(4+tau,1)
        a.I(f"""v_cvt_pk_bf16_f32 v{o}, v{d0}, v{d0+1}
        v_cvt_pk_bf16_f32 v{o+1}, v{d0+2}, v{d0+3}
        v_cvt_pk_bf16_f32 v{o+2}, v{d1}, v{d1+1}
        v_cvt_pk_bf16_f32 v{o+3}, v{d1+2}, v{d1+3}
        buffer_store_dwordx4 v[{o}:{o+3}], v{L16}, s[20:23], s19 offen offset:{tau*1024} sc1
        ds_write_b128 v6, v[{o}:{o+3}] offset:{16384+tau*1024}""")
    a.I("s_waitcnt lgkmcnt(0)")
    gemm((0,1))
    a.I(f"""s_waitcnt vmcnt(0)
    s_barrier
    s_cmp_lg_u32 s5, 0
    s_cbranch_scc1 {P}B_q
    s_lshl_b32 s17, s6, 6
    s_add_u32 s17, s17, s10
    s_lshl_b32 s17, s17, 7
    s_add_u32 s17, s17, {flg}""")
    post_flag(a,17,8)
    a.L(P+"B_q")
    a.I("s_nop 3")
    qk(0,8)
    a.I("s_waitcnt lgkmcnt(0)\ns_barrier")
    a.L(P+"B_attn")
    if RT:
        a.I(f"s_cmp_lg_u32 s10, s7\ns_cbranch_scc1 {P}B_a2"); rt(a,3,8); a.L(P+"B_a2")
    a.I(f"""s_cmp_lt_i32 s11, 0
    s_cbranch_scc1 {P}B_next
    s_lshl_b32 s16, s11, 5
    s_add_u32 s16, s16, s6
    s_lshl_b32 s17, s6, 21
    s_lshl_b32 s18, s11, 12
    s_add_u32 s17, s17, s18
    s_add_u32 s17, s17, {KVM}
    s_lshl_b32 s18, s5, 10
    s_add_u32 s18, s18, s17
    v_add_u32 v6, s13, v{L16}
    s_lshl_b32 s38, s5, 11
    v_add_u32 v7, s38, v6""")
    KM=8; VM=16; VF=20; QF=28; KF=44; S1=60; S2=64; Sm=68; ON=72; T=78; O0=44; O1=48
    a.I(f"""ds_read_b128 v[{VF}:{VF+3}], v7 offset:16384
    ds_read_b128 v[{VF+4}:{VF+7}], v7 offset:17408""")
    for i in range(4): a.I(f"v_mov_b32 v{ON+i}, 0x3f803f80")
    a.I(f"""s_lshl_b32 s38, s5, 9
    v_lshrrev_b32 v5, 1, v{L16}
    v_add_u32 v5, s38, v5""")
    a.L(P+"B_poll")
    a.I(f"""buffer_load_dwordx4 v[{KM}:{KM+3}], v{L16}, s[20:23], s18 offen sc1
    s_waitcnt vmcnt(0)
    v_max3_u32 v{T}, v{KM}, v{KM+1}, v{KM+2}
    v_max_u32 v{T}, v{T}, v{KM+3}
    v_cmp_eq_u32 vcc, -1, v{T}
    s_cbranch_vccz {P}B_go""")
    spin_tail(a,P+"B_poll",None,sleep=2)
    a.L(P+"B_go")
    rt(a,4,77)
    a.I(f"""ds_write_b64 v5, v[{KM}:{KM+1}] offset:{BTK}
    v_mov_b64 v[{VM}:{VM+1}], v[{KM+2}:{KM+3}]
    v_and_b32 v{T}, 0x200, v{L16}
    v_bfe_u32 v{T+1}, v{L16}, 8, 1
    v_lshl_add_u32 v{T}, v{T+1}, 6, v{T}
    v_bfe_u32 v{T+1}, v{L16}, 6, 2
    v_lshl_add_u32 v{T}, v{T+1}, 3, v{T}
    v_bfe_u32 v{T+1}, v{L16}, 4, 2
    v_lshl_add_u32 v{T}, v{T+1}, 7, v{T}
    s_waitcnt lgkmcnt(0)
    s_barrier""")
    for sg_ in range(2):
        for rho in range(2):
            a.I(f"ds_read_b64_tr_b16 v[{KM+4*sg_+2*rho}:{KM+4*sg_+2*rho+1}], v{T} offset:{BTK+sg_*1024+rho*32}")
    a.I(f"""s_lshl_b32 s17, s16, 13
    s_lshl_b32 s18, s5, 11
    s_add_u32 s17, s17, s18
    s_add_u32 s17, s17, {OBUF}
    v_mov_b32 v76, 0xff800000
    v_mov_b32 v{VM+2}, v{VM+1}
    v_mov_b32 v{VM+3}, 0""")
    for tq in range(2):
        for ks in range(4): a.I(f"ds_read_b128 v[{QF+4*ks}:{QF+4*ks+3}], v6 offset:{tq*4096+ks*1024}")
        for i in range(4): a.I(f"v_mov_b32 v{Sm+i}, 0")
        for tk in range(2):
            S=(S1,S2)[tk]
            for ks in range(4): a.I(f"ds_read_b128 v[{KF+4*ks}:{KF+4*ks+3}], v6 offset:{8192+tk*4096+ks*1024}")
            a.I("s_waitcnt lgkmcnt(0)")
            for ks in range(4):
                c="0" if ks==0 else vr(S,4)
                a.I(f"v_mfma_f32_16x16x32_bf16 {vr(S,4)}, {vr(KF+4*ks,4)}, {vr(QF+4*ks,4)}, {c}")
            a.I("s_nop 3")
        for sg_ in range(2):
            a.I(f"v_smfmac_f32_16x16x64_bf16 {vr(Sm,4)}, {vr(KM+4*sg_,4)}, {vr(QF+8*sg_,8)}, v{IDX}")
        for tk in range(2):
            S=(S1,S2)[tk]
            for r in range(4):
                a.I(f"""v_cmp_le_i32 vcc, {r+4*(tk-tq)}, v{DEL}
                v_cndmask_b32 v{S+r}, v76, v{S+r}, vcc""")
        softmax(a,S1,S2,Sm,T,14)
        pv(a,S1,Sm,VF,VM,ON,O0,O1,S2,52+4*tq)
        a.I(f"buffer_store_dwordx4 v[{52+4*tq}:{55+4*tq}], v{L16}, s[20:23], s17 offen offset:{tq*1024} sc1")
        if tq==0: a.I("s_nop 1")
    a.I(f"""s_waitcnt vmcnt(0)
    s_barrier
    s_cmp_lg_u32 s5, 0
    s_cbranch_scc1 {P}B_next
    s_lshl_b32 s17, s16, 7
    s_add_u32 s17, s17, {flg+OFLAG}
    v_mov_b32 v8, 1
    s_mov_b64 exec, 1
    buffer_store_dword v8, v{L16}, s[20:23], s17 offen sc1
    s_mov_b64 exec, -1""")
    a.L(P+"B_next")
    rt(a,5,8)
    a.I(f"""s_mov_b32 s11, s10
    s_add_u32 s10, s10, {NB}
    s_mov_b32 s38, s12
    s_mov_b32 s12, s13
    s_mov_b32 s13, s38
    s_cmp_lt_u32 s11, 64
    s_cbranch_scc1 {P}B_loop
    s_cmp_eq_u32 s95, 1
    s_cbranch_scc1 {P}Efin""")
    next_layer(a)
    a.I(f"s_branch {P}B_layer")

def role_c(a, P):
    flg=FLAGS+OFLAG; xdst=XA
    L16=0
    def wreg(kl,tau):
        f=kl*3+tau
        return ar(4*f,4) if f<64 else vr(128+4*(f-64),4)
    a.L(P+"C")
    lane(a,0)
    a.I(f"""s_and_b32 s8, s4, 31
    s_cmp_ge_u32 s4, 224
    s_cselect_b32 s9, 8, 0
    s_sub_u32 s8, s8, s9
    s_mov_b32 s39, s8
    s_sub_u32 s9, s4, 160
    s_lshr_b32 s9, s9, 5
    s_cmp_eq_u32 s9, 2
    s_cselect_b32 s6, {63 if NC3==2 else 2}, s9
    s_mul_i32 s40, s9, 24
    s_add_u32 s40, s40, s8
    s_cmp_ge_u32 s8, 12
    s_cselect_b32 s9, 1, 0
    s_mov_b32 s15, s9                    ; theta
    s_mul_i32 s9, s9, 12
    s_sub_u32 s7, s8, s9                 ; cb
    v_and_b32 v1, 7, v0
    v_lshlrev_b32 v1, 2, v1
    v_and_b32 v10, 15, v0
    v_lshrrev_b32 v11, 2, v10
    v_lshlrev_b32 v11, 3, v11
    v_and_b32 v12, 3, v10
    v_add_u32 v11, v11, v12
    v_mul_u32_u24 v2, 1152, v11
    v_lshrrev_b32 v12, 4, v0
    v_mul_u32_u24 v12, 24, v12
    v_add_u32 v2, v2, v12
    v_lshlrev_b32 v{L16}, 4, v0
    s_mul_i32 s9, s5, 3072
    v_add_u32 v3, s9, v{L16}
    s_mul_i32 s30, s5, {1024*1152}
    s_mul_i32 s9, s7, 96
    s_add_u32 s30, s30, s9
    s_lshl_b32 s9, s5, 12
    v_add_u32 v9, s9, v{L16}
    v_bfe_u32 v20, v{L16}, 6, 2
    v_lshrrev_b32 v21, 8, v{L16}
    v_lshl_add_u32 v20, v21, 3, v20
    v_mul_u32_u24 v20, 96, v20
    v_bfe_u32 v21, v{L16}, 4, 2
    v_mul_u32_u24 v21, 24, v21
    v_add3_u32 v8, v20, v21, s9
    v_lshrrev_b32 v20, 4, v{L16}""")
    for i in range(3):
        a.I(f"""v_add_u32 v21, {64*i}, v20
        v_mul_u32_u24 v22, 171, v21
        v_lshrrev_b32 v22, 10, v22
        v_mul_u32_u24 v23, 6, v22
        v_sub_u32 v23, v21, v23
        v_mul_u32_u24 v22, 1152, v22
        v_lshl_add_u32 v{5+i}, v23, 4, v22""")
    def wt(kl,tau):
        f=kl*3+tau
        return ('a',4*f) if f<64 else ('v',128+4*(f-64))
    chunks=[]
    for kl in range(32):
        g=[wt(kl,t) for t in range(3)]
        chunks.append(dict(srd=SQ+12, voff=[5,6,7], soff=[(30,32*kl*1152)]*3, grp=g,
            rd=[((g[t][0],g[t][1]+2*rho),8,rho*384+t*8) for t in range(3) for rho in range(2)]))
    if os.environ.get("CDEL"): wait_dbg(a,DB_TAB,NOTH,10,sleep=16)
    rawload(a,chunks,9,flags="")
    a.I("s_barrier")
    wait_dbg(a,DB_INIT,NOTH,8)
    rt(a,1,14)
    a.L(P+"C_loop")
    a.I(f"""s_lshl_b32 s10, s6, 5
    s_lshl_b32 s11, s5, 3
    s_add_u32 s10, s10, s11              ; s*32+8w
    s_lshl_b32 s11, s6, 12
    s_add_u32 s11, s11, {flg}
    s_lshl_b32 s12, s10, 13
    s_add_u32 s12, s12, {OBUF}
    s_lshl_b32 s14, s15, 10
    s_add_u32 s12, s12, s14
    s_mul_i32 s13, s6, {32*1152}
    s_mul_i32 s14, s7, 96
    s_add_u32 s13, s13, s14
    s_mul_i32 s14, s15, {4*1152}
    s_add_u32 s13, s13, s14              ; x offset
    """)
    wait_flags(a,11,32,4,L16,sh=7)
    a.L(P+"C_go")
    rt(a,4,14)
    ACC=16; FB=28; NR=25
    def ld(f):
        r=FB+4*(f%NR)
        a.I(f"buffer_load_dwordx4 v[{r}:{r+3}], v{L16}, s[20:23], s12 offen offset:{(f&1)*2048} sc1")
        if f&1==1: a.I("s_add_u32 s12, s12, 4096")
    for f in range(NR): ld(f)
    for kl in range(32):
        issued=min(32,NR+kl)+(2 if kl>7 else 0)
        a.I(f"s_waitcnt vmcnt({issued-kl-1})")
        r=FB+4*(kl%NR)
        for tau in range(3):
            d=ACC+tau*4
            c="0" if kl==0 else vr(d,4)
            a.I(f"v_mfma_f32_16x16x32_bf16 {vr(d,4)}, {wreg(kl,tau)}, {vr(r,4)}, {c}")
        if NR+kl<32: ld(NR+kl)
        if kl==7:
            a.I("""buffer_load_dwordx4 v[8:11], v2, s[24:27], s13 offen sc1
            buffer_load_dwordx2 v[12:13], v2, s[24:27], s13 offen offset:16 sc1""")
    for i in range(3): a.I(f"ds_write_b128 v3, {vr(ACC+4*i,4)} offset:{1024*i}")
    a.I(f"""s_waitcnt vmcnt(0) lgkmcnt(0)
    s_barrier
    s_cmp_lg_u32 s5, 0
    s_cbranch_scc1 {P}C_next""")
    for w in range(1,4):
        for tau in range(3):
            a.I(f"ds_read_b128 {vr(ACC+(w*3+tau)*4,4)}, v{L16} offset:{w*3072+tau*1024}")
    a.I("s_waitcnt lgkmcnt(0)\ns_barrier")
    for p in range(6):
        x=8+p; d=ACC+2*p
        a.I(f"""v_pk_add_f32 v[{d}:{d+1}], v[{d}:{d+1}], v[{d+12}:{d+13}]
        v_pk_add_f32 v[{d+24}:{d+25}], v[{d+24}:{d+25}], v[{d+36}:{d+37}]
        v_lshlrev_b32 v14, 16, v{x}
        v_and_b32 v15, 0xffff0000, v{x}
        v_pk_add_f32 v[{d}:{d+1}], v[{d}:{d+1}], v[{d+24}:{d+25}]
        v_pk_add_f32 v[14:15], v[14:15], v[{d}:{d+1}]
        v_cvt_pk_bf16_f32 v{x}, v14, v15""")
    a.I(f"""s_add_u32 s13, s13, {xdst}
    buffer_store_dwordx4 v[8:11], v2, s[20:23], s13 offen sc1
    buffer_store_dwordx2 v[12:13], v2, s[20:23], s13 offen offset:16 sc1
    s_lshl_b32 s11, s6, 7
    s_lshl_b32 s12, s39, 2
    s_add_u32 s11, s11, s12
    s_add_u32 s11, s11, {FLAGS+XFLAG}
    s_waitcnt vmcnt(0)""")
    post_flag(a,11,14)
    rt(a,5,14)
    a.I(f"s_branch {P}C_nf")
    a.L(P+"C_next")
    a.I("s_barrier")
    a.L(P+"C_nf")
    a.I(f"""s_add_u32 s6, s6, {3 if NC3==1 else 2}
    s_cmp_lt_u32 s6, {63 if NC3==2 else 64}
    s_cbranch_scc1 {P}C_loop
    s_mov_b32 s41, 0
    s_branch {P}L5""")
```

```python
from chaindefs import *
from rawload import *

def chain_setup(a, P, dbg=False):
    def T(i):
        if dbg: a.I(f"s_memtime s[50:51]\ns_waitcnt lgkmcnt(0)\ns_sub_u32 s{96+i}, s50, s88")
    flg=FLAGS
    a.L(P+"A")
    T(0)
    a.I(f"""v_and_b32 v10, 15, v0
    v_lshrrev_b32 v11, 4, v0
    v_mov_b32 v{IDX}, 0x4444
    v_mov_b32 v12, 0xeeee
    v_and_b32 v13, 2, v0
    v_cmp_eq_u32 vcc, 2, v13
    v_cndmask_b32 v{IDX}, v{IDX}, v12, vcc
    s_lshl_b32 s8, s5, 9
    v_lshrrev_b32 v12, 3, v10
    v_lshl_add_u32 v13, v12, 8, s8
    v_and_b32 v12, 7, v10
    v_lshl_add_u32 v13, v12, 4, v13
    v_lshl_add_u32 v13, v11, 2, v13
    v_add_u32 v13, {TQ}, v13
    v_lshl_add_u32 v14, v0, 3, s8
    v_add_u32 v14, {TK}, v14
    v_lshl_or_b32 v{PK1}, v14, 16, v13
    v_lshrrev_b32 v12, 1, v11
    v_lshlrev_b32 v13, 8, v12
    v_lshlrev_b32 v14, 9, v12
    v_and_b32 v12, 1, v11
    v_lshl_add_u32 v13, v12, 6, v13
    v_lshl_add_u32 v14, v12, 6, v14
    v_bfe_u32 v12, v0, 3, 1
    v_lshl_add_u32 v13, v12, 7, v13
    v_bfe_u32 v12, v0, 2, 1
    v_lshl_add_u32 v13, v12, 4, v13
    v_and_b32 v12, 1, v0
    v_lshl_add_u32 v13, v12, 3, v13
    v_add_u32 v13, {TQ}, v13
    v_bfe_u32 v12, v0, 2, 2
    v_lshl_add_u32 v14, v12, 3, v14
    v_and_b32 v12, 3, v0
    v_lshl_add_u32 v14, v12, 7, v14
    v_add_u32 v14, {TK}, v14
    v_lshl_or_b32 v{PK2}, v14, 16, v13
    v_lshrrev_b32 v12, 1, v11
    v_lshlrev_b32 v13, 4, v12
    v_bfe_u32 v12, v0, 1, 2
    v_lshl_add_u32 v13, v12, 2, v13
    v_and_b32 v12, 1, v11
    v_lshl_add_u32 v13, v12, 1, v13
    v_and_b32 v12, 1, v0
    v_add_u32 v13, v13, v12
    v_lshl_add_u32 v13, v13, 4, s8
    v_add_u32 v13, {OL}, v13
    s_lshr_b32 s9, s4, 3
    s_mul_i32 s9, s9, 18
    s_and_b32 s10, s4, 7
    s_add_u32 s9, s9, s10
    s_lshl_b32 s10, s5, 3
    s_add_u32 s9, s9, s10                ; 18*(h>>3)+(h&7)+8w
    s_lshr_b32 s10, s4, 1
    s_mul_i32 s10, s10, 18
    s_and_b32 s11, s4, 1
    s_add_u32 s10, s10, s11
    s_add_u32 s10, s10, 16               ; 18*(h>>1)+16+(h&1)
    s_cmp_lt_u32 s5, 2
    s_cselect_b32 s40, s9, s10           ; u
    s_cselect_b32 s41, 1, 0
    s_cmp_eq_u32 s5, 2
    s_cselect_b32 s9, 1, 0
    s_cmp_lt_u32 s4, 8
    s_cselect_b32 s10, 1, 0
    s_and_b32 s9, s9, s10
    s_or_b32 s41, s41, s9
    s_min_u32 s40, s40, 71""")
    sdiv(a,42,40,18)
    a.I(f"""s_mul_i32 s9, s42, 18
    s_sub_u32 s43, s40, s9               ; lambda
    v_and_b32 v18, 7, v10
    s_cmp_ge_u32 s43, 16
    s_cbranch_scc1 {P}A_u8
    s_lshl_b32 s44, s42, 7
    s_and_b32 s9, s43, 1
    s_lshl_b32 s9, s9, 5
    s_add_u32 s44, s44, s9
    s_lshr_b32 s9, s43, 3
    s_lshl_b32 s9, s9, 6
    s_add_u32 s44, s44, s9
    v_lshl_add_u32 v14, v18, 2, s44
    s_bfe_u32 s9, s43, 0x20001
    v_mov_b32 v15, s9                    ; g_src
    s_branch {P}A_uj""")
    a.L(P+"A_u8")
    a.I(f"""s_lshl_b32 s44, s42, 4
    s_add_u32 s44, s44, 512
    v_and_b32 v12, 3, v10
    v_lshl_add_u32 v14, v12, 2, s44
    s_sub_u32 s9, s43, 16
    s_lshl_b32 s9, s9, 1
    v_lshrrev_b32 v15, 2, v18
    v_add_u32 v15, s9, v15""")
    a.L(P+"A_uj")
    a.I("""v_and_b32 v12, 2, v11
    v_add_u32 v14, v14, v12              ; c = c0 + 2*(g>>1)""")
    a.I(f"""v_lshrrev_b32 v16, 4, v14
    v_lshlrev_b32 v16, 8, v16            ; (c>>4)*256
    v_lshl_add_u32 v16, v15, 6, v16
    v_bfe_u32 v12, v14, 1, 1
    v_lshl_add_u32 v16, v12, 5, v16
    v_and_b32 v12, 1, v11
    v_lshl_add_u32 v16, v12, 4, v16
    v_bfe_u32 v12, v14, 2, 2
    v_lshl_add_u32 v16, v12, 2, v16
    v_lshl_or_b32 v{PK3}, v16, 16, v13
    v_lshrrev_b32 v12, 3, v0
    v_lshlrev_b32 v13, 12, v12
    v_and_b32 v12, 7, v0
    v_lshl_add_u32 v13, v12, 4, v13
    v_lshrrev_b32 v12, 5, v0
    v_lshlrev_b32 v14, 12, v12
    v_and_b32 v12, 31, v0
    v_lshl_add_u32 v14, v12, 2, v14
    v_mov_b32 v{PK4}, v13
    v_mov_b32 v19, v14
    ; Asel -> v[20:23]
    v_mov_b32 v12, 0x3f80
    v_mov_b32 v13, 0x3f800000
    v_and_b32 v14, 4, v10
    v_cmp_eq_u32 vcc, 4, v14
    v_cndmask_b32 v12, v12, v13, vcc
    v_and_b32 v14, 2, v10
    v_cmp_eq_u32 vcc, 0, v14
    v_cndmask_b32 v12, 0, v12, vcc
    v_lshrrev_b32 v13, 3, v10
    v_lshlrev_b32 v13, 1, v13
    v_and_b32 v14, 1, v10
    v_add_u32 v13, v13, v14
    v_cmp_eq_u32 vcc, 0, v13
    v_cndmask_b32 v20, 0, v12, vcc
    v_cmp_eq_u32 vcc, 1, v13
    v_cndmask_b32 v21, 0, v12, vcc
    v_cmp_eq_u32 vcc, 2, v13
    v_cndmask_b32 v22, 0, v12, vcc
    v_cmp_eq_u32 vcc, 3, v13
    v_cndmask_b32 v23, 0, v12, vcc
    v_lshlrev_b32 v{KVR}, 4, v0
    ds_write_b128 v{KVR}, v[20:23] offset:{SPARE}
    s_mul_i32 s9, s5, {WLW}
    s_add_u32 s45, s9, {WLB}
    v_add_u32 v{WL}, s45, v{KVR}
    s_mul_i32 s32, s5, {18*4096}
    s_lshl_b32 s9, s4, 7
    s_add_u32 s32, s32, s9
    s_add_u32 s32, s32, {PART}
    s_add_u32 s11, s32, {8*4096}
    s_add_u32 s12, s32, {16*4096}
    s_lshl_b32 s33, s40, 12
    s_add_u32 s33, s33, {PART}
    s_mov_b32 s35, {SCL}
    s_mov_b32 s48, {SCL}
    s_mov_b32 s49, {SCL}
    s_lshl_b32 s9, s4, 2
    s_add_u32 s9, s9, s5
    s_lshl_b32 s47, s9, 12
    s_add_u32 s47, s47, {WOC}
    s_lshl_b32 s54, s4, 2
    s_add_u32 s54, s54, {HINT}
    s_and_b32 s55, s4, 7
    s_lshl_b32 s55, s55, 8
    s_add_u32 s55, s55, {HINT}""")
    T(1)
    VA,VN,VO,V8,TRV,TRN,TR8,VB,TVL=8,9,12,13,14,15,16,17,18
    a.I(f"""v_lshrrev_b32 v20, 2, v0             ; a
    v_and_b32 v21, 3, v0                 ; piece / c4
    v_and_b32 v22, 3, v20
    v_lshlrev_b32 v22, 4, v22
    v_add_u32 v22, v22, v11              ; 16*(a&3)+(a>>2)
    v_lshlrev_b32 v{VA}, 13, v22
    v_lshl_add_u32 v{VA}, v21, 4, v{VA}
    v_lshlrev_b32 v{VN}, 13, v20
    v_lshl_add_u32 v{VN}, v21, 4, v{VN}""")
    def rowO(dst,x,t):
        a.I(f"""v_bfe_u32 v{t}, v{x}, 3, 1
        v_lshlrev_b32 v{dst}, 2, v{t}
        v_bfe_u32 v{t}, v{x}, 2, 1
        v_lshl_add_u32 v{dst}, v{t}, 1, v{dst}
        v_bfe_u32 v{t}, v{x}, 1, 1
        v_lshl_add_u32 v{dst}, v{t}, 3, v{dst}
        v_and_b32 v{t}, 1, v{x}
        v_add_u32 v{dst}, v{dst}, v{t}""")
    rowO(22,20,23)
    a.I(f"""v_mul_u32_u24 v{VO}, 1152, v22
    v_lshl_add_u32 v{VO}, v21, 4, v{VO}
    v_lshrrev_b32 v24, 1, v0""")
    rowO(22,24,23)
    a.I(f"""v_lshrrev_b32 v23, 5, v0
    v_lshl_add_u32 v22, v23, 4, v22
    v_mul_u32_u24 v{V8}, 1152, v22
    v_and_b32 v23, 1, v0
    v_lshl_add_u32 v{V8}, v23, 4, v{V8}
    ; 8gb+r
    v_and_b32 v22, 3, v20
    v_lshl_add_u32 v22, v11, 3, v22
    s_lshl_b32 s9, s5, 12
    s_add_u32 s9, s9, {KVL}
    v_lshlrev_b32 v23, 6, v22
    v_lshl_add_u32 v24, v21, 4, v23
    v_add_u32 v{TRV}, s9, v24
    v_add_u32 v{TVL}, s45, v24
    v_lshl_add_u32 v24, v21, 3, v23
    v_add_u32 v{TRN}, s9, v24
    v_lshlrev_b32 v23, 5, v22
    v_lshl_add_u32 v24, v21, 3, v23
    v_add_u32 v{TR8}, s9, v24
    v_add_u32 v{VB}, s9, v{KVR}
    s_lshl_b32 s30, s4, 8
    s_lshl_b32 s9, s5, 6
    s_add_u32 s30, s30, s9               ; h*256 + w*64
    s_mul_i32 s31, s4, 147456
    s_lshl_b32 s9, s5, 5
    s_add_u32 s36, s31, s9
    s_lshl_b32 s9, s5, 8
    s_add_u32 s31, s31, s9""")
    chunks=[]
    TMP=[('v',24),('v',32)]
    def off(rt,k): return (rt[0],rt[1]+k)
    for j in range(9):
        for mat in range(3):
            k=KAP[j]; u=[('p',j,2*mat),('p',j,2*mat+1)]
            c=dict(srd=SQ+4*mat, voff=[VA if k<8 else VN]*4, soff=[(30,(64*k+(4*i if k<8 else 16*i))*8192) for i in range(4)])
            if u[1] in LDSU:
                s1=LDSU.index(u[1])+1
                dst=[TMP[0] if u[0] in LDSU else regof(u[0]), TMP[1]]
                base=(s1-1)*2048
                c.update(grp=None, m0=(45,base), rd=[(off(dst[t],4*hb+2*rho),TVL,base+hb*2048+rho*256+t*8) for t in range(2) for hb in range(2) for rho in range(2)])
                c['wb']=[(off(dst[t],4*hb),WL,base+t*2048+hb*1024) for t in range(2) for hb in range(2) if u[t] in LDSU]
            else:
                dst=[regof(u[0]),regof(u[1])]
                c.update(grp=[off(dst[i>>1],4*(i&1)) for i in range(4)], rd=[(off(dst[t],4*hb+2*rho),TRV,hb*2048+rho*256+t*8) for t in range(2) for hb in range(2) for rho in range(2)])
            chunks.append(c)
    dst=[regof(('o',8,0)),regof(('o',8,1))]
    chunks.append(dict(srd=SQ+12, voff=[V8]*4, soff=[(36,32*i*1152+1024) for i in range(4)], grp=[off(dst[i>>1],4*(i&1)) for i in range(4)],
        rd=[(off(dst[kp],4*hb+2*rho),TR8,kp*2048+hb*1024+rho*128) for kp in range(2) for hb in range(2) for rho in range(2)]))
    for tp in range(4):
        for kp in range(2):
            u=[('o',2*tp,kp),('o',2*tp+1,kp)]
            dst=[('v',40),('v',48)] if u[0] in L2U else [regof(u[0]),regof(u[1])]
            chunks.append(dict(srd=SQ+12, voff=[VO]*4, soff=[(31,(64*kp+16*i)*1152+64*tp) for i in range(4)], grp=[off(dst[i>>1],4*(i&1)) for i in range(4)],
                rd=[(off(dst[t],4*hb+2*rho),TRN,hb*2048+rho*256+t*32) for t in range(2) for hb in range(2) for rho in range(2)]))
    rawload(a,chunks,VB,flags=os.environ.get("CFL",""),maxout=int(os.environ.get("CMO",56)))
    T(2)
    a.I(f"v_mov_b32 v{L16}, v{KVR}")
    for i in range(4): a.I(f"buffer_store_dwordx4 v[{40+4*i}:{43+4*i}], v{L16}, s[20:23], s47 offen offset:{1024*i}")
    wait_dbg(a,DB_INIT,NOTH,8,sleep=1)
    a.I(f"""v_bfe_u32 v8, v{L16}, 2, 5
    v_mov_b32 v9, 128
    v_cmp_eq_u32 vcc, 0, v8
    v_cndmask_b32 v8, v8, v9, vcc""")
    a.L(P+"A_bw")
    a.I(f"""global_load_dword v9, v8, s[28:29] sc1
    s_waitcnt vmcnt(0)
    v_readlane_b32 s9, v9, 0
    s_mov_b32 s10, 0
    s_cmp_ge_u32 s9, 32
    s_cbranch_scc1 {P}A_bd
    s_mov_b32 s10, 1""")
    for x in range(1,8): a.I(f"v_readlane_b32 s8, v9, {x}\ns_add_u32 s9, s9, s8")
    a.I(f"""s_cmp_ge_u32 s9, 256
    s_cbranch_scc1 {P}A_bd""")
    spin_tail(a,P+"A_bw",None,sleep=1)
    a.L(P+"A_bd")
    T(3)
    a.I(f"""s_mov_b32 s6, 0
    s_mov_b32 s36, 63
    s_mov_b32 s14, {MEMB}
    s_mov_b32 s44, 0
    s_lshl_b32 s46, s5, 11
    s_lshr_b32 s52, s5, 1
    s_lshl_b32 s52, s52, 12
    s_add_u32 s58, s52, 2048
    s_cmp_eq_u32 s5, 3
    s_cselect_b32 s52, 8192, s52
    s_cselect_b32 s58, 8192, s58
    s_cmp_eq_u32 s5, 1
    s_cselect_b32 s40, 1, 0
    s_cmp_eq_u32 s41, 0
    s_cselect_b32 s40, 2, s40""")
    a.L(P+"A_layer")
    a.I(f"""s_lshl_b32 s37, s4, 13
    s_add_u32 s37, s37, {flg}
    s_add_u32 s37, s37, s44
    s_lshl_b32 s38, s4, 21
    s_add_u32 s38, s38, s44
    s_lshl_b32 s9, s5, 10
    s_add_u32 s57, s38, s9
    s_add_u32 s57, s57, {KVM-4096}
    s_add_u32 s38, s38, s46
    s_add_u32 s39, s46, {KVL}
    v_add_u32 v{KVR}, {KVL}, v{L16}
    s_waitcnt vmcnt(0) lgkmcnt(0)
    s_barrier""")
    rt(a,1,9)
    a.L(P+"A_f0")
    a.I(f"""buffer_load_dword v9, off, s[20:23], s37 sc1
    s_waitcnt vmcnt(0)
    v_readfirstlane_b32 s9, v9
    s_cmp_eq_u32 s9, 1
    s_cbranch_scc1 {P}A_f0d""")
    spin_tail(a,P+"A_f0",None,sleep=1)
    a.L(P+"A_f0d")
    T(4)
    rt(a,2,9)
    a.I("s_mov_b32 m0, s39\ns_nop 0")
    for j in range(2): a.I(f"buffer_load_dwordx4 v{L16}, s[20:23], s38 offen offset:{1024*j} sc1 lds")
    a.I(f"""s_add_u32 s37, s37, 128
    s_xor_b32 s39, s39, 8192
    s_add_u32 s53, s38, 8192
    s_add_u32 s38, s38, 16384
    s_mov_b32 s56, 0
    s_mov_b32 s59, {MEMB+4*9216}
    s_add_u32 s34, s46, {MEMB+4*9216+1024}
    s_cmp_eq_u32 s10, 0
    s_cbranch_scc0 {P}S_entry
    s_branch {P}F_entry""")

from chainloop import chain_loop

def gen_mega(a, name, dbg=False):
    P="M_"
    kernel_begin(a,name)
    a.I(f"""s_cmp_ge_u32 s2, 256
    s_cbranch_scc1 {P}end
    s_load_dwordx2 s[16:17], s[0:1], {KA['ws']}
    s_load_dwordx2 s[28:29], s[0:1], {KA['dbg']}
    s_load_dwordx2 s[18:19], s[0:1], {KA['x']}
    s_load_dwordx4 s[8:11], s[0:1], {KA['Wq']}
    s_load_dwordx4 s[12:15], s[0:1], {KA['Wv']}
    s_getreg_b32 s3, hwreg(HW_REG_XCC_ID, 0, 4)
    v_lshrrev_b32 v1, 6, v0
    v_and_b32 v0, 63, v0
    v_readfirstlane_b32 s5, v1
    s_mov_b32 s94, {BUDGET}
    s_mov_b32 s90, 0
    s_mov_b32 s91, 0
    s_mov_b32 s92, 0
    s_mov_b32 s93, 0""")
    if dbg: a.I("s_memtime s[88:89]")
    a.I("s_waitcnt lgkmcnt(0)")
    srd(a,20,16,WS_SIZE)
    srd(a,84,16,WS_SIZE)
    a.I("s_mov_b32 s95, 0")
    srd(a,24,18,XBYTES)
    weight_srds(a)
    def prefetch():
        a.I(f"""s_cmp_eq_u32 s3, 0
        s_cbranch_scc1 {P}el_done
        s_mov_b32 s10, s2
        v_lshlrev_b32 v1, 4, v0""")
        a.L(P+"pf")
        a.I(f"""s_mul_i32 s8, s10, 3
        s_add_u32 s8, s8, s5
        s_sub_u32 s8, s8, 1
        s_lshl_b32 s8, s8, 10""")
        for t in range(6):
            for m in range(4):
                a.I(f"buffer_load_dwordx4 v[64:67], v1, s[{SQ+4*m}:{SQ+4*m+3}], s8 offen ; nowarn")
            a.I(f"s_add_u32 s8, s8, {768*1024}")
        a.I(f"""s_cmp_lg_u32 s3, 7
        s_cbranch_scc1 {P}el_done
        s_cmp_lg_u32 s10, s2
        s_cbranch_scc1 {P}el_done
        s_xor_b32 s10, s2, 1
        s_branch {P}pf""")
    a.I(f"""v_mov_b32 v4, {SPARE}
    s_and_b32 s3, s3, 7
    s_lshl_b32 s3, s3, 2
    s_lshr_b32 s3, {os.environ.get("XPERM","0x43210765")}, s3
    s_and_b32 s3, s3, 7
    s_cmp_lg_u32 s5, 0
    s_cbranch_scc1 {P}el_pf
    s_lshl_b32 s6, s3, 2
    s_cselect_b32 s6, s6, 128
    v_mov_b32 v2, s6
    v_mov_b32 v3, 1
    s_mov_b64 exec, 1
    global_atomic_add v5, v2, v3, s[28:29] sc0
    s_mov_b64 exec, -1
    s_waitcnt vmcnt(0)
    v_readfirstlane_b32 s7, v5
    s_lshl_b32 s4, s3, 5
    s_add_u32 s4, s4, s7
    s_cmp_lt_u32 s7, 32
    s_cbranch_scc1 {P}el_pub
    v_mov_b32 v2, 32
    s_mov_b64 exec, 1
    global_atomic_add v5, v2, v3, s[28:29] sc0
    s_waitcnt vmcnt(0)
    s_mov_b64 exec, -1
    v_readfirstlane_b32 s7, v5
    v_and_b32 v2, 7, v0
    v_lshlrev_b32 v2, 2, v2
    v_mov_b32 v3, 128
    v_cmp_eq_u32 vcc, 0, v2
    v_cndmask_b32 v2, v2, v3, vcc""")
    a.L(P+"el_w")
    a.I(f"""global_load_dword v5, v2, s[28:29] sc1
    s_waitcnt vmcnt(0)
    s_mov_b32 s8, 0""")
    for x in range(8):
        a.I(f"v_readlane_b32 s{40+x}, v5, {x}\ns_add_u32 s8, s8, s{40+x}")
    a.I(f"""s_cmp_ge_u32 s8, 256
    s_cbranch_scc1 {P}el_s""")
    spin_tail(a,P+"el_w",None,sleep=2)
    a.L(P+"el_s")
    a.I("s_mov_b32 s4, 255")
    for x in range(8):
        a.I(f"""s_min_u32 s9, s{40+x}, 32
        s_sub_u32 s10, 32, s9
        s_add_u32 s11, s9, s7
        s_add_u32 s11, s11, {32*x}
        s_cmp_lt_u32 s7, s10
        s_cselect_b32 s4, s11, s4
        s_cselect_b32 s7, 0x10000, s7
        s_sub_u32 s7, s7, s10""")
    a.L(P+"el_pub")
    a.I(f"""v_mov_b32 v5, s4
    ds_write_b32 v4, v5
    s_waitcnt lgkmcnt(0)
    s_branch {P}el_done""")
    a.L(P+"el_pf")
    prefetch()
    a.L(P+"el_done")
    a.I(f"""s_barrier
    ds_read_b32 v5, v4
    s_waitcnt lgkmcnt(0)
    v_readfirstlane_b32 s4, v5
    s_barrier""")
    rt(a,0,5)
    a.I(f"""s_cmp_lt_u32 s4, 32
    s_cbranch_scc1 {P}A
    s_cmp_lt_u32 s4, 160
    s_cbranch_scc1 {P}B""")
    a.I(f"""s_sub_u32 s44, s4, 208
    s_cmp_ge_u32 s4, 224
    s_cbranch_scc1 {P}O
    s_and_b32 s8, s4, 31
    s_cmp_lt_u32 s8, 24
    s_cbranch_scc1 {P}C
    s_sub_u32 s44, s8, 24
    s_cmp_ge_u32 s4, 192
    s_cselect_b32 s9, 8, 0
    s_add_u32 s44, s44, s9
    s_branch {P}O""")
    a.L(P+"end")
    a.I("s_endpgm")
    import prep, bstage
    chain_setup(a,P,dbg)
    chain_loop(a,P+"F","",dbg)
    chain_loop(a,P+"S","sc1",False)
    role_b(a,P)
    role_c(a,P)
    prep.others(a,P)
    bstage.role_d(a,P)
    bstage.role_e(a,P)
    bstage.block_l5(a,P)
    return (name, f"; @launch grid=(256,1,1) block=(256,1,1) lds={LDS_LA}", kernel_desc(name, 512, 102, accum=256))
```

```python
from chaindefs import *
import os
G=lambda n,d: int(os.environ.get(n,d))
D_LATE=G("DLATE",18)
D_E0=G("DE0",2)
D_NR=G("DNR",0)
U_LL=G("ULL",2)
U_LC=G("ULC",18)
HCHK=G("HCHK",11)
HPOLL=[int(x) for x in os.environ.get("HPOLL","0,1,2,3,6,8,10").split(",")]
U_R=G("UR",6)
UBB=G("UBB",7)
HINT_ON=G("HINT",0)
SBD=G("SBD",2)
DSC=G("DSC",6)
AGE=G("AGE",5)
LEAD=G("LEAD",6)
APL=G("APL",0)
G2=G("G2",1)
R2=G("R2",1)
D_E1=G("DE1",3)
D_G=G("DG",6)

def chain_loop(a, P, st, dbg):
    EPOS=[int(x) for x in os.environ.get("EPOS","").split(",") if x]
    def EM(i):
        if dbg and i in EPOS: k=EPOS.index(i); a.I(f"s_memtime s[{60+2*k}:{61+2*k}]")
    def E(i):
        if EPOS: return
        if dbg and 100 in dbg: a.I(f"s_memtime s[{60+2*i}:{61+2*i}]")
    cnt=lambda r: a.I(f"s_add_u32 s{r}, s{r}, 1") if dbg else None
    q=LQ(a)
    BUF=[1,0,1,0,1,0,1,0]+[(j+1)%3 if False else None for j in range(8,NL)]
    BUF=[1,0,1,0,1,2,0,1,2,0,1,2,0,1,2]
    BUF=[j%3 for j in range(NL)]
    NXT={}
    for j in range(NL):
        n=[k for k in range(j+1,NL) if BUF[k]==BUF[j]]
        if n: NXT[j]=n[0]
    def stg_read(j):
        b=STG+8*BUF[j]
        q.op(f"ds_read_b128 v[{b}:{b+3}], v{WL} offset:{(j+1)*2048}",('w',j))
        q.op(f"ds_read_b128 v[{b+4}:{b+7}], v{WL} offset:{(j+1)*2048+1024}",('w',j))
    def z2(r): return f"v_mov_b64 v[{r}:{r+1}], 0"
    def pace(n,r):
        for i in range(n): a.I(f"v_mov_b32 v{r}, 0\ns_nop 2" if not os.environ.get("NOPACE") else "s_nop 3")
    PB=W(3); LP=W(1)
    out=[]
    a.L(P+"_entry")
    if dbg:
        a.I("s_memtime s[18:19]\ns_waitcnt lgkmcnt(0)\ns_mov_b32 s69, s18")
        if 100 not in dbg:
            for i in range(12): a.I(f"s_mov_b32 s{70+i}, 0")
    a.I(f"""s_lshl_b32 s42, s5, 1
    s_lshl_b32 s42, 3, s42
    s_mov_b32 s43, 0
    s_branch {P}_ent""")
    def zero_qk():
        for r in range(AQ,AQ+16,2): a.I(z2(r))
    a.L(P+"_g0")
    E(13)
    a.L(P+"_g")
    GA=STG+1; GB=STG+2; CK=STG+3
    G0=STG+16; G1=STG+20
    def g_issue(x=""):
        a.I(f"""buffer_load_dwordx4 {vr(G0,4)}, v{GA}, s[20:23], s59 offen sc1{x}
        buffer_load_dwordx4 {vr(G1,4)}, v{GB}, s[20:23], s59 offen sc1{x}""")
    a.I(f"""v_add_u32 v{GA}, s52, v{L16}
    v_add_u32 v{GB}, s58, v{L16}""")
    pace(D_G,CK)
    g_issue()
    a.I("s_waitcnt vmcnt(4)")
    zero_qk()
    pace(G("GS",4),CK)
    for k in range(G2-1):
        g_issue(" ; nowarn"); pace(G("GS2",3),CK)
    a.L(P+"_ga")
    if G2: g_issue(" ; nowarn")
    a.I(f"""s_waitcnt vmcnt({2*G2+1})
    v_max3_u32 v{CK}, v{G0}, v{G0+1}, v{G0+2} ; nowarn
    v_max_u32 v{CK}, v{CK}, v{G0+3} ; nowarn
    ds_write_b128 v{GA}, {vr(G0,4)} offset:{MEML} ; nowarn
    s_waitcnt vmcnt({2*G2})
    v_max3_u32 v{CK}, v{CK}, v{G1}, v{G1+1} ; nowarn
    v_max3_u32 v{CK}, v{CK}, v{G1+2}, v{G1+3} ; nowarn
    ds_write_b128 v{GB}, {vr(G1,4)} offset:{MEML} ; nowarn
    v_cmpx_eq_u32 vcc, -1, v{CK}""")
    cnt(93)
    a.I(f"s_cbranch_execnz {P}_gr")
    a.L(P+"_gd")
    a.I(f"""s_mov_b64 exec, -1
    s_waitcnt lgkmcnt(0)""")
    def gool():
        a.L(P+"_gr")
        if not G2: g_issue(" ; nowarn")
        a.I(f"""s_sub_u32 s94, s94, 1
        s_cbranch_scc0 {P}_ga
        s_mov_b32 s94, 0
        s_branch {P}_gd""")
    out.append(gool)
    a.L(P+"_top")
    E(14)
    a.I("s_barrier")
    E(0)
    q=LQ(a)
    accof=lambda nm: AQ+4*nm
    KX={}
    SM=STG+4
    def kx_read(f,dst): q.op(f"ds_read_b128 v[{dst}:{dst+3}], v{KVR} offset:{f*1024}",('kx',f))
    def a_read(j): q.op(f"ds_read_b128 {vr(W(j%4),4)}, v{L16} offset:{MEML+1024*KAP[j]}",('a',j))
    vm=[]
    def vop(t,tag): a.I(t); vm.append(tag)
    def vwait(tag):
        idx=max(i for i,t in enumerate(vm) if t==tag)
        a.I(f"s_waitcnt vmcnt({len(vm)-1-idx})")
    late=f"buffer_load_dwordx4 v{L16}, s[20:23], s34 offen sc1 lds"
    rback=f"ds_read_b128 {vr(LP,4)}, v{PK4} offset:{MEML+1024}"
    def chk3():
        a.I(f"s_or_b64 vcc, vcc, s[8:9]\ns_cbranch_scc1 {P}_lr")
        a.L(f"{P}_ld")
        def ool():
            r=LP
            a.L(f"{P}_lr")
            a.I(f"""v_cmp_eq_u32 vcc, -1, v{r}
            v_cmp_eq_u32 s[8:9], -1, v{r+1}
            s_or_b64 vcc, vcc, s[8:9]
            v_cmp_eq_u32 s[8:9], -1, v{r+2}
            s_or_b64 vcc, vcc, s[8:9]
            v_cmp_eq_u32 s[8:9], -1, v{r+3}
            s_or_b64 vcc, vcc, s[8:9]
            s_cbranch_scc0 {P}_ld""")
            cnt(90)
            a.I(f"""s_sub_u32 s94, s94, 1
            s_cbranch_scc1 {P}_lx
            s_add_u32 m0, s46, {MEML+1024}
            s_nop 0
            {late}
            s_waitcnt vmcnt(0)
            {rback}
            s_waitcnt lgkmcnt(0)
            s_branch {P}_lr""")
            a.L(f"{P}_lx")
            a.I(f"s_mov_b32 s94, 0\ns_branch {P}_ld")
        out.append(ool)
    c=U_LC; r=U_R
    T_=[]
    def task(name,kind,cost,e,d,fn,after=()):
        T_.append(dict(name=name,kind=kind,cost=cost,e=e,d=d,fn=(fn if callable(fn) else (lambda t=fn: a.I(t))),after=list(after)))
    def half(j,h):
        b=STG+8*BUF[j]+4*h
        q.op(f"ds_read_b128 v[{b}:{b+3}], v{WL} offset:{(j+1)*2048+1024*h}",('w',j))
    PRV={v:k for k,v in NXT.items()}
    task('gw','s',4,4,5,lambda: a.I(f"s_waitcnt vmcnt({len(vm)})"))
    for j in range(1,NL):
        e=LIDX[PRV[j]] if j in PRV else 0
        af=['gw'] if j==2 else []
        task(f'w{j}a','ds',DSC,e,LIDX[j]-LEAD-1,(lambda j=j: half(j,0)),af)
        task(f'w{j}b','ds',DSC,e,LIDX[j]-LEAD,(lambda j=j: half(j,1)),[f'w{j}a'])
    task('late','vm',12,U_LL,U_LL,lambda: vop(late,'late'))
    rk=G("UK",10); UP=G("UP",12)
    task('m0v','s',4,max(U_LL+1,r-3),r-1,"s_mov_b32 m0, s45",['late']+(['c3'] if r>c+7 else []))
    task('V0','vm',12,r,r+1,lambda: ((q.wait('pb') if G("LATEPUB",0) else None), vop(f"buffer_load_dwordx4 v{L16}, s[20:23], s53 offen sc1 lds",'V')),['m0v']+(['pb1'] if G("LATEPUB",0) else []))
    task('V1','vm',12,r+2,r+3,lambda: vop(f"buffer_load_dwordx4 v{L16}, s[20:23], s53 offen offset:1024 sc1 lds",'V'),['V0'])
    LATEPUB=G("LATEPUB",0)
    if LATEPUB:
        PB2=W(2)
        task('pba','v',4,17,18,f"v_lshrrev_b32 v{PB2+2}, 16, v{PK1}")
        task('pb0','ds',DSC,18,19,lambda: q.op(f"ds_read_b64 v[{PB2}:{PB2+1}], v{PB2+2}",'pb'),['pba'])
        task('pb1','ds',DSC,18,20,lambda: q.op(f"ds_read_b64 v[{PB2+2}:{PB2+3}], v{WL}",'pb'),['pb0'])
        task('pub','vm',16,UP,UP+1,lambda: (q.wait('pb'), vop(f"buffer_store_dwordx4 {vr(PB2,4)}, v{L16}, s[20:23], s57 offen sc1",'pub')),['pb1','c3'])
        task('a3','ds',DSC,0,10,lambda: a_read(3))
    else:
        task('pub','vm',12,UP,UP+1,lambda: vop(f"buffer_store_dwordx4 {vr(PB,4)}, v{L16}, s[20:23], s57 offen sc1",'pub'))
        task('a3','ds',DSC,UP+1,13,lambda: a_read(3),['pub'])
    task('fl','s',12,3,rk-1,lambda: (a.I(f"s_cmp_eq_u32 s56, 1\ns_cbranch_scc0 {P}_fw"), a.L(P+"_fd")))
    task('m0k','s',4,rk-3,rk-1,"s_mov_b32 m0, s39",['V1']+(['c3'] if rk>c+7 else []))
    task('K0','vm',12,rk,rk+2,lambda: vop(f"buffer_load_dwordx4 v{L16}, s[20:23], s38 offen sc1 lds",'K'),['fl','m0k'])
    task('K1','vm',12,rk+2,rk+5,lambda: vop(f"buffer_load_dwordx4 v{L16}, s[20:23], s38 offen offset:1024 sc1 lds",'K'),['K0'])
    task('a4','ds',DSC,5,16,lambda: a_read(4))
    task('pk4','v',4,2,c-1,f"v_add_u32 v{PK4}, s46, v{L16}")
    task('rb','ds',DSC+4,c,c,lambda: (vwait('late'), q.op(rback,'rb')),['pk4'])
    task('rbw','s',4,c+4,c+4,lambda: q.wait('rb'),['rb'])
    task('c1','v',4,c+4,c+4,f"v_cmp_u_f32 vcc, v{LP}, v{LP+1}",['rbw'])
    task('c2','v',4,c+5,c+5,f"v_cmp_u_f32 s[8:9], v{LP+2}, v{LP+3}",['c1'])
    task('c3','s',12,c+7,c+7,lambda: (chk3(), a.I("s_barrier"), a_read(5)),['c2']+(['K1'] if rk<=c+7 else [])+(['V1'] if r<=c+7 else []))
    task('a6','ds',DSC,c+8,max(c+8,26),lambda: a_read(6),['c3']+(['pub'] if LATEPUB else []))
    task('a7','ds',DSC,max(c+8,23),max(c+8,27),lambda: a_read(7),['c3'])
    task('a8','ds',DSC,29,29,lambda: a_read(8),['a7','a6'])
    QF=AQ; KM0=W(1); KM1=W(2); S1=W(3); S2=W(0)
    VF=STG+16; VM=AV; ON=AV+4; T=STG+2
    SORD=[0,1,4,5,2,3,6,7]
    KXR=[STG+0,STG+8,STG+12,STG+16,STG+20,STG+0,STG+8,STG+12]
    for n_,f in enumerate(SORD): KX[f]=KXR[n_]
    S0=54
    for n_,e in enumerate((LIDX[12],LIDX[13],LIDX[13],LIDX[14],LIDX[14],S0,S0+1,S0+2)):
        task(f'kx{n_}','ds',DSC,e,(49 if n_<5 else e),(lambda f=SORD[n_]: kx_read(f,KX[f])))
    def chain(names,e0,ops,after=(),gap=1,slack=0):
        prev=list(after)
        for k,t in enumerate(ops):
            task(f'{names}{k}','v',4,e0+k*gap,e0+k*gap+slack,t,prev); prev=[f'{names}{k}']
        return prev
    def post3(A): return [f"v_add_f32 v{A}, v{A}, v{A+2}", f"v_add_f32 v{A+1}, v{A+1}, v{A+3}"]
    QW=G("QW",42); B2A=G("B2A",47); KW=G("KW",49); B2B=G("B2B",56)
    task('tqw','v',4,c+9,35,f"v_and_b32 v{PK4}, 0xffff, v{PK1}",['c3'])
    def sched(names,pairs,after=()):
        prev=list(after)
        for k,(e,t) in enumerate(pairs):
            task(f'{names}{k}','v',4,e,e,t,prev); prev=[f'{names}{k}']
        return prev
    qa=post3(AQ); qb=post3(AQ+4); ka=post3(AK); kb=post3(AK+4)
    pq=sched('q',[(37,qa[0]),(38,qa[1]),(39,f"v_cvt_pk_bf16_f32 v{AQ}, v{AQ}, v{AQ+1}"),(39,qb[0]),(40,qb[1]),(41,f"v_cvt_pk_bf16_f32 v{AQ+1}, v{AQ+4}, v{AQ+5}")])
    task('tq','ds',DSC,QW,QW,lambda: q.op(f"ds_write2_b32 v{PK4}, v{AQ}, v{AQ+1} offset0:0 offset1:32",'tq'),pq+['tqw'])
    pk=sched('k',[(42,f"v_and_b32 v{SM+2}, 0xffff, v{PK2}"),(43,f"v_lshrrev_b32 v{SM+1}, 16, v{PK1}"),(44,ka[0]),(45,ka[1]),(46,f"v_cvt_pk_bf16_f32 v{AK}, v{AK}, v{AK+1}"),
                  (47,kb[0]),(47,kb[1]),(48,f"v_cvt_pk_bf16_f32 v{AK+1}, v{AK+4}, v{AK+5}")])
    task('b2a','s',8,B2A,B2A,lambda: (q.wait('tq'), E(4), a.I("s_barrier")),['tq'])
    def qf(ks,rho): q.op(f"ds_read_b64_tr_b16 v[{QF+4*ks+2*rho}:{QF+4*ks+2*rho+1}], v{SM+2} offset:{ks*512+rho*32}",('qf',ks))
    def km(sg_,rho):
        d=(KM0,KM1)[sg_]+2*rho
        q.op(f"ds_read_b64_tr_b16 v[{d}:{d+1}], v{SM+3} offset:{sg_*1024+rho*32}",('km',sg_))
    task('tk','ds',DSC,KW,KW,lambda: q.op(f"ds_write_b64 v{SM+1}, v[{AK}:{AK+1}]",'tk'),pk)
    for ks in range(4):
        for rho in range(2):
            e=(B2A+1 if ks<2 else KW+1)
            task(f'qf{ks}{rho}','ds',DSC,e,[B2A+1,B2A+2,B2A+3,B2A+3,B2A+4,B2A+5,B2A+5,B2A+6][2*ks+rho],(lambda ks=ks,rho=rho: qf(ks,rho)),['b2a']+(['tk'] if ks>=2 else []))
    task('tkr','v',4,49,53,f"v_lshrrev_b32 v{SM+3}, 16, v{PK2}")
    task('b2b','s',8,B2B,B2B,lambda: (q.wait('tk'), E(5), a.I("s_barrier")),['tk'])
    for sg_ in range(2):
        for rho in range(2):
            task(f'km{sg_}{rho}','ds',DSC,B2B,B2B+sg_+rho*(1-sg_),(lambda sg_=sg_,rho=rho: km(sg_,rho)),['b2b','tkr'])
    task('z0','v',4,KW+1,S0+4,z2(SM),['tk'])
    task('z1','v',4,B2B+1,S0+6,z2(SM+2),['km11','qf31'])
    vops=post3(AV)+post3(AV+4)+[f"v_cvt_pk_bf16_f32 v{AV}, v{AV}, v{AV+1}", f"v_cvt_pk_bf16_f32 v{AV+1}, v{AV+4}, v{AV+5}",
          f"v_mov_b32 v{VM+2}, v{VM+1}", f"v_mov_b32 v{VM+3}, 0", f"v_mov_b32 v{ON}, 0x3f803f80"]
    prev=[]
    for k,t in enumerate(vops):
        task(f'v{k}','v',4,S0+1,S0+9,t,prev); prev=[f'v{k}']
    VPOS=G('VPOS',1)
    if VPOS==0:
      task('vf0','ds',DSC+4,S0+8,S0+9,lambda: (vwait('V'), q.op(f"ds_read_b128 v[{VF}:{VF+3}], v{WL}",'vf')))
      task('vf1','ds',DSC,S0+8,S0+9,lambda: q.op(f"ds_read_b128 v[{VF+4}:{VF+7}], v{WL} offset:1024",'vf'),['vf0'])
    task('mx0','v',4,S0+8,S0+8,f"v_max3_f32 v{T}, v{S1}, v{S1+1}, v{S1+2}")
    task('cmp','s',4,S0+4,S0+9,"s_cmp_eq_u32 s6, s36")
    M=[]
    for u in U1+UD:
        _,j,nm=u
        tg=[('a',j)]
        if u in LDSU:
            jj=LDSU.index(u); b=STG+8*BUF[jj]; B=f"v[{b}:{b+7}]"; tg.append(('w',jj))
        else: B=rtxt(u)
        M.append((f"v_smfmac_f32_16x16x64_bf16 {vr(accof(nm),4)}, {vr(W(j%4),4)}, {B}, v{IDX}",tg,8))
    for f in SORD:
        tk=f>>2; ks=f&3; Sx=(S1,S2)[tk]
        M.append((f"v_mfma_f32_16x16x32_bf16 {vr(Sx,4)}, {vr(KX[f],4)}, {vr(QF+4*ks,4)}, {'0' if ks==0 else vr(Sx,4)}",[('qf',ks),('kx',f)],4))
    M.append((f"v_smfmac_f32_16x16x64_bf16 {vr(SM,4)}, {vr(KM0,4)}, {vr(QF,8)}, v{IDX}",[('km',0)],8))
    M.append((f"v_smfmac_f32_16x16x64_bf16 {vr(SM,4)}, {vr(KM1,4)}, {vr(QF+8,8)}, v{IDX}",[('km',1)],8))
    q.now=-4
    a_read(0); half(0,0); half(0,1); a_read(1); a_read(2)
    a.I(f"s_add_u32 m0, s46, {MEML+1024}")
    q.wait(('a',0))
    did=set(); over=0
    for i,(txt,_,vs) in enumerate(M):
        q.now=i
        a.I(txt)
        EM(i)
        if i==0: E(1)
        if i==29: E(2)
        if i==45: E(3)
        tg=M[i+1][1] if i+1<len(M) else []
        used=0
        if tg and q.needs(*tg):
            q.wait(*tg,age=AGE); used=4
        rdy=lambda t: t['name'] not in did and t['e']<=i and all(x in did for x in t['after'])
        vmust=any(t['kind']=='v' and t['name'] not in did and t['d']<=i for t in T_)
        lim=8 if vmust else 12
        while True:
            cand=sorted([t for t in T_ if rdy(t) and t['kind']!='v'],key=lambda t:t['d'])
            pick=[t for t in cand if t['d']<=i] or [t for t in cand if used+t['cost']<=lim]
            if not pick: break
            t=pick[0]; t['fn'](); did.add(t['name']); used+=t['cost']
        while True:
            cand=sorted([t for t in T_ if rdy(t) and t['kind']=='v'],key=lambda t:t['d'])
            pick=[t for t in cand if t['d']<=i] or ([t for t in cand] if max(used,vs)+4<=12 else [])
            if not pick: break
            t=pick[0]; t['fn'](); did.add(t['name']); used=max(used,vs)+4
        over+=max(0,used-12)
    assert len(did)==len(T_), [t['name'] for t in T_ if t['name'] not in did]
    if os.environ.get("VERB"): print("overflow estimate", over)
    E(6)
    a.I(f"s_cbranch_scc1 {P}_fin")
    E(7)
    a.I(f"""v_max3_f32 v{T}, v{T}, v{S1+3}, v{S2}
    v_max3_f32 v{T}, v{T}, v{S2+1}, v{S2+2}
    v_max_f32 v{T}, v{T}, v{S2+3}
    v_add_f32 v{SM}, v{SM}, v{SM+2}
    v_add_f32 v{SM+1}, v{SM+1}, v{SM+3}
    v_max3_f32 v{T}, v{T}, v{SM}, v{SM+1}
    v_mov_b32 v{T+1}, v{T}
    v_mov_b32 v{ON+1}, v{ON}
    {z2(SM+2)}
    v_permlane16_swap_b32 v{T}, v{T+1}
    v_max_f32 v{T}, v{T}, v{T+1}
    v_mov_b32 v{T+1}, v{T}
    v_mov_b64 v[{ON+2}:{ON+3}], v[{ON}:{ON+1}]
    v_and_b32 v{STG}, 0xffff, v{PK3}
    v_permlane32_swap_b32 v{T}, v{T+1}
    v_max_f32 v{T}, v{T}, v{T+1}
    v_mul_f32 v{T}, s35, v{T}""")
    for r in (S1,S1+2,S2,S2+2,SM):
        a.I(f"v_pk_fma_f32 v[{r}:{r+1}], v[{r}:{r+1}], s[48:49], v[{T}:{T+1}] op_sel_hi:[1,1,0] neg_lo:[0,0,1] neg_hi:[0,0,1]")
    if VPOS==1:
        vwait('V')
        q.op(f"ds_read_b128 v[{VF}:{VF+3}], v{WL}",'vf')
        q.op(f"ds_read_b128 v[{VF+4}:{VF+7}], v{WL} offset:1024",'vf')
    for r in (S1,S1+1,S1+2,S1+3,S2,S2+1,S2+2,S2+3): a.I(f"v_exp_f32 v{r}, v{r}")
    a.I(f"""v_cvt_pk_bf16_f32 v{S1}, v{S1}, v{S1+1}
    v_cvt_pk_bf16_f32 v{S1+1}, v{S1+2}, v{S1+3}
    v_cvt_pk_bf16_f32 v{S1+2}, v{S2}, v{S2+1}
    v_cvt_pk_bf16_f32 v{S1+3}, v{S2+2}, v{S2+3}
    v_exp_f32 v{SM}, v{SM}""")
    q.wait('vf')
    E(8)
    O0=W(1); O1=W(2); SUM=S2; Px=S1
    L2R=[AQ,AK]
    ACC={8:W(0), 0:W(2), 1:STG+4, 2:STG+8, 3:W(3), 4:AV, 5:AV+4, 6:STG+16, 7:STG+20}
    OA=[W(1),STG+0]; AD=STG+12
    l2=lambda k: vop(f"buffer_load_dwordx4 v[{AQ+4*k}:{AQ+4*k+3}], v{L16}, s[20:23], s47 offen offset:{1024*k}",'l2')
    a.I(f"""v_mfma_f32_16x16x32_bf16 {vr(O0,4)}, {vr(VF,4)}, {vr(Px,4)}, 0
    v_exp_f32 v{SM+1}, v{SM+1}
    v_mfma_f32_16x16x32_bf16 {vr(O1,4)}, {vr(VF+4,4)}, {vr(Px,4)}, 0
    v_cvt_pk_bf16_f32 v{SM}, v{SM}, v{SM+1}
    v_mov_b32 v{SM+1}, 0
    v_mfma_f32_16x16x32_bf16 {vr(SUM,4)}, {vr(ON,4)}, {vr(Px,4)}, 0""")
    l2(0)
    a.I(f"v_mfma_f32_16x16x32_bf16 {vr(SUM,4)}, {vr(ON,4)}, {vr(SM,4)}, {vr(SUM,4)}")
    q.op(f"ds_write_b64 v{WL}, v[{VM}:{VM+1}]",'vmw')
    a.I(f"v_mfma_f32_16x16x32_bf16 {vr(O0,4)}, {vr(VM,4)}, {vr(SM,4)}, {vr(O0,4)}")
    l2(1)
    a.I(f"""v_mfma_f32_16x16x32_bf16 {vr(O1,4)}, {vr(VM+2,4)}, {vr(SM,4)}, {vr(O1,4)}
    s_and_b32 s7, s6, 1
    v_rcp_f32 v{SUM}, v{SUM}
    {z2(W(3))}
    {z2(W(3)+2)}
    v_mul_f32 v{O0}, v{O0}, v{SUM}
    v_mul_f32 v{O0+1}, v{O0+1}, v{SUM}
    v_mul_f32 v{O0+2}, v{O0+2}, v{SUM}
    v_mul_f32 v{O0+3}, v{O0+3}, v{SUM}
    v_pk_mul_f32 v[{O1}:{O1+1}], v[{O1}:{O1+1}], v[{SUM}:{SUM+1}] op_sel_hi:[1,0]
    v_pk_mul_f32 v[{O1+2}:{O1+3}], v[{O1+2}:{O1+3}], v[{SUM}:{SUM+1}] op_sel_hi:[1,0]
    v_cvt_pk_bf16_f32 v{O0}, v{O0}, v{O0+1}
    v_cvt_pk_bf16_f32 v{O0+1}, v{O0+2}, v{O0+3}
    v_cvt_pk_bf16_f32 v{O0+2}, v{O1}, v{O1+1}
    v_cvt_pk_bf16_f32 v{O0+3}, v{O1+2}, v{O1+3}""")
    q.op(f"ds_write_b128 v{STG}, {vr(O0,4)}",'ow')
    for r in (W(0),W(0)+2,W(2),W(2)+2,STG+4,STG+6,STG+8,STG+10,AV,AV+2,AV+4,AV+6,STG+16,STG+18,STG+20,STG+22): a.I(z2(r))
    a.I("s_add_u32 s6, s6, 1")
    q.all()
    E(9)
    a.I("s_barrier\ns_mov_b32 s56, s41")
    E(10)
    q.op(f"ds_read_b128 {vr(OA[0],4)}, v{L16} offset:{OL}",'oa0')
    q.op(f"ds_read_b128 {vr(OA[1],4)}, v{L16} offset:{OL+1024}",'oa1')
    if HINT_ON:
        a.I("s_mov_b64 exec, s[42:43]")
        vop(f"buffer_store_dword v{AD+3}, v{AD+2}, s[20:23], s54 offen {st}",'hp')
        a.I("s_mov_b64 exec, -1")
    def post(t):
        d=ACC[t]; o=d if t==8 else ACC[(t//4)*4]+(t%4)
        return [f"v_add_f32 v{d}, v{d}, v{d+2}", f"v_add_f32 v{d+1}, v{d+1}, v{d+3}", f"v_cvt_pk_bf16_f32 v{o}, v{d}, v{d+1}"]
    AS=ACC[1]; RD=ACC[2]; C7=AD
    RA=[AQ,AQ+4,AK,AK+4]
    RB=[W(0),W(1),W(2),STG+16]
    def p7_issue(x="",RR=RA):
        for j in range(4):
            a.I(f"buffer_load_dwordx4 {vr(RR[j],4)}, v{L16}, s[20:23], s33 offen offset:{1024*j} sc1{x}")
    adr=[f"v_bfe_u32 v{AD+1}, v{L16}, 2, 7", f"v_lshrrev_b32 v{AD+2}, 9, v{L16}", f"v_lshrrev_b32 v{PK4}, 7, v{L16}", f"v_and_b32 v{AD}, 0x70, v{L16}",
         f"v_lshl_add_u32 v{AD+2}, v{AD+2}, 12, v{AD+1}", f"v_lshl_add_u32 v{PK4}, v{PK4}, 12, v{AD}", f"v_xor_b32 v{KVR}, 8192, v{KVR}"]
    if APL==0:
        l2(2); a.I("\n".join(adr[:4]))
    elif APL==1:
        a.I("\n".join(adr[:4]))
    elif APL==2:
        l2(2); a.I("\n".join(adr[:2])); l2(3); a.I("\n".join(adr[2:4]))
    for i,u in enumerate(UO):
        _,t,kp=u; n=i>>1
        if i==0: q.wait('oa0')
        if i==1: q.wait('oa1')
        if u==L2U[0]: vwait('l2')
        B=vr(L2R[L2U.index(u)],8) if u in L2U else rtxt(u)
        a.I(f"v_smfmac_f32_16x16x64_bf16 {vr(ACC[t],4)}, {vr(OA[kp],4)}, {B}, v{IDX}")
        if HINT_ON and i in HPOLL: vop(f"buffer_load_dword v{AD}, v{AD+1}, s[20:23], s55 offen sc1 ; nowarn",'poll')
        bk={3:["s_mov_b32 s13, s14","s_and_b32 s14, s6, 3"],4:["s_mul_i32 s14, s14, 9216",f"s_add_u32 s14, s14, {MEMB}"],
            6:["s_mov_b32 s59, s14","s_add_u32 s34, s46, s14"],7:["s_add_u32 s34, s34, 1024","s_add_u32 s37, s37, 128"],
            8:["s_xor_b32 s39, s39, 8192","s_add_u32 s53, s38, 8192"],10:[("s_add_u32 s38, s38, 16384" if not G("KVHOT",0) else "s_nop 0"),"s_add_u32 s57, s57, 4096"]}
        for x in bk.get(i,[]): a.I(x)
        if i==5: vop(f"buffer_store_dword v{ACC[8]}, v{AD+2}, s[20:23], s12 offen {st}",'st8')
        if i==13: vop(f"buffer_store_dwordx4 {vr(ACC[0],4)}, v{PK4}, s[20:23], s32 offen {st}",'stA')
        if i==0: E(11)
        if i==1 and APL==1: l2(2)
        if i==2 and APL<2: l2(3)
        if i<3: a.I(adr[4+i])
        if i==9: a.I(f"ds_read_b128 {vr(AS,4)}, v{L16} offset:{SPARE}")
        if i==HCHK+1:
            if HINT_ON: a.I(f"s_cbranch_vccnz {P}_hw")
            a.L(P+"_hd")
        if i==15: a.I("s_cmp_eq_u32 s40, 0")
        if kp==1 and n>=1:
            p=post(TORD[n-1]); a.I(p[0]); a.I(p[1])
        if kp==0 and n>=2:
            a.I(post(TORD[n-2])[2])
            if TORD[n-2] in (8,0,4): a.I(f"v_bfi_b32 v{ACC[TORD[n-2]]}, 1, s7, v{ACC[TORD[n-2]]}")
        if HINT_ON and i==HCHK: a.I(f"v_cmp_ne_u32 vcc, s6, v{AD} ; nowarn")
    a.I(post(6)[2])
    a.I(f"v_lshrrev_b32 v{AD+2}, 16, v{PK3}\nv_mov_b32 v{AD+3}, -1")
    for x in post(7): a.I(x)
    stB=f"buffer_store_dwordx4 {vr(ACC[4],4)}, v{PK4}, s[20:23], s11 offen {st}"
    E(12)
    def fetch_pub():
        a.I("s_waitcnt lgkmcnt(0)")
        if not LATEPUB: a.I(f"""v_lshrrev_b32 v{STG}, 16, v{PK1}
        ds_read_b64 v[{PB}:{PB+1}], v{STG}
        ds_read_b64 v[{PB+2}:{PB+3}], v{WL}""")
        a.I(f"""s_load_dword s41, s[16:17], s37 offset:128 glc""")
        for r in range(AV,AV+8,2): a.I(z2(r))
    def p7_check(base,RR=RA):
        for j in range(4):
            c="0" if j==0 else vr(RD,4); r=RR[j]
            a.I(f"s_waitcnt vmcnt({base+3-j})")
            a.I(f"v_mfma_f32_16x16x32_bf16 {vr(RD,4)}, {vr(AS,4)}, {vr(r,4)}, {c} ; nowarn")
            if j==0: a.I(f"v_xor_b32 v{C7}, s7, v{r} ; nowarn")
            else: a.I(f"v_bitop3_b32 v{C7}, v{C7}, v{r}, s7 bitop3:0xf6 ; nowarn")
        a.I(f"v_and_b32 v{C7}, 1, v{C7}\nv_cmp_ne_u32 vcc, 0, v{C7}")
    def p7_fin():
        a.I(f"""v_add_f32_dpp v{RD}, v{RD}, v{RD} row_ror:8 row_mask:0xf bank_mask:0xf
        v_add_f32_dpp v{RD+1}, v{RD+1}, v{RD+1} row_ror:8 row_mask:0xf bank_mask:0xf
        v_cvt_pk_bf16_f32 v{RD+2}, v{RD}, v{RD+1}
        buffer_store_dword v{RD+2}, v{AD+2}, s[20:23], s59 offen {st}""")
    repo=f"buffer_store_dword v{AD+3}, v{AD+2}, s[20:23], s13 offen {st}"
    def reduce(tag, two, mid, ctr, after=None, xb=1):
        x=1 if after else 0
        p7_issue()
        mid()
        if two: p7_issue("",RB)
        if after: after()
        n=4 if two else 0
        p7_check(n+x)
        a.I(f"s_cbranch_vccnz {P}_rr{tag}")
        a.L(f"{P}_rd{tag}")
        p7_fin()
        def reissue(RR):
            cnt(ctr)
            a.I("s_mov_b64 exec, vcc")
            p7_issue("",RR)
            a.I("s_mov_b64 exec, -1")
        def ool():
            a.L(f"{P}_rr{tag}")
            reissue(RA)
            if two:
                p7_check(n+x*xb,RB)
                a.I(f"s_nop 5\ns_cbranch_vccz {P}_rd{tag}")
                a.L(f"{P}_rl{tag}")
                reissue(RB)
                p7_check(n)
                a.I(f"s_nop 5\ns_cbranch_vccz {P}_rd{tag}")
                reissue(RA)
                p7_check(n,RB)
                a.I(f"""s_nop 5
                s_cbranch_vccz {P}_rd{tag}
                s_sub_u32 s94, s94, 1
                s_cbranch_scc0 {P}_rl{tag}""")
            else:
                p7_check(0)
                a.I(f"""s_nop 5
                s_cbranch_vccz {P}_rd{tag}
                s_sub_u32 s94, s94, 1
                s_cbranch_scc0 {P}_rr{tag}""")
            a.I(f"s_mov_b32 s94, 0\ns_nop 7\ns_branch {P}_rd{tag}")
        out.append(ool)
    a.I(f"s_cbranch_scc0 {P}_ne")
    pace(D_E0,RD)
    if G("SBM",1): reduce("e", R2, lambda: (a.I(stB), fetch_pub(), pace(D_E1,RD)), 92, lambda: None, 0)
    else: reduce("e", R2, lambda: pace(D_E1,RD), 92, lambda: (a.I(stB), fetch_pub()))
    E(13)
    a.I(f"s_barrier\n{repo}\ns_branch {P}_g")
    a.L(P+"_ne")
    pace(D_E0+SBD,RD); a.I(stB)
    fetch_pub()
    pace(D_NR,RD)
    a.I(f"""s_cmp_eq_u32 s40, 1
    s_cbranch_scc1 {P}_lt
    s_barrier
    s_branch {P}_g0""")
    a.L(P+"_lt")
    if G("LPRE",0):
        pace(G("DLP",10),RD)
        reduce("l", G("L2S",0), lambda: a.I("s_barrier"), 92)
    else:
        a.I("s_barrier")
        reduce("l", 0, lambda: None, 92)
    E(13)
    a.I(repo)
    if G("L2S",0): a.I("s_waitcnt vmcnt(2)")
    zero_qk()
    a.I(f"s_branch {P}_top")
    a.L(P+"_ent")
    fetch_pub()
    a.I(f"""s_cmp_eq_u32 s5, 1
    s_cbranch_scc0 {P}_g""")
    zero_qk()
    a.I(f"s_branch {P}_top")
    for f in out: f()
    a.L(P+"_hw")
    cnt(91)
    a.I(f"""buffer_load_dword v{AD}, v{AD+1}, s[20:23], s55 offen sc1 ; nowarn
    v_cmp_ne_u32 vcc, s6, v{AD} ; nowarn
    s_cbranch_vccz {P}_hd
    s_sub_u32 s94, s94, 1
    s_cbranch_scc0 {P}_hw
    s_mov_b32 s94, 0
    s_branch {P}_hd""")
    a.L(P+"_fw")
    a.I(f"""s_cmp_ge_u32 s6, s36
    s_cbranch_scc1 {P}_fd""")
    a.L(P+"_fw2")
    cnt(91)
    a.I(f"""buffer_load_dword v{L16}, off, s[20:23], s37 sc1
    s_waitcnt vmcnt(0)
    v_readfirstlane_b32 s56, v{L16}
    v_mbcnt_lo_u32_b32 v{L16}, -1, 0
    v_mbcnt_hi_u32_b32 v{L16}, -1, v{L16}
    v_lshlrev_b32 v{L16}, 4, v{L16}
    s_cmp_eq_u32 s56, 1
    s_cbranch_scc1 {P}_fd""")
    spin_tail(a,P+"_fw2",P+"_fd",sleep=1)
    a.L(P+"_fin")
    a.I(f"""v_lshrrev_b32 v{AQ+4}, 16, v{PK1}
    ds_read_b64 v[{AQ}:{AQ+1}], v{AQ+4}
    v_mov_b64 v[{AQ+2}:{AQ+3}], v[{VM}:{VM+1}]
    s_waitcnt lgkmcnt(0)
    s_add_u32 s57, s57, 4096
    buffer_store_dwordx4 {vr(AQ,4)}, v{L16}, s[20:23], s57 offen sc1""")
    rt(a,3,48)
    a.I(f"""s_mov_b32 s95, 1
    s_cmp_lg_u32 s44, 0
    s_cbranch_scc1 M_Efin""")
    if dbg and 100 in dbg:
        a.I(f"""s_waitcnt lgkmcnt(0)
        s_lshl_b32 s9, s4, 2
        s_add_u32 s9, s9, s5
        s_lshl_b32 s9, s9, 7
        s_add_u32 s9, s9, {DBGW}
        s_nop 7
        v_mov_b32 v48, 0""")
        for i in range(16): a.I(f"v_mov_b32 v{8+i}, s{60+2*i}")
        a.I(f"""s_memrealtime s[60:61]
        s_waitcnt lgkmcnt(0)""")
        a.L(P+"_cal")
        a.I(f"""s_memrealtime s[62:63]
        s_memtime s[64:65]
        s_waitcnt lgkmcnt(0)
        s_cmp_eq_u32 s62, s60
        s_cbranch_scc1 {P}_cal
        v_mov_b32 v24, s62
        v_mov_b32 v25, s64""")
        a.I("s_mov_b64 exec, 1")
        for i in range(5): a.I(f"buffer_store_dwordx4 v[{8+4*i}:{11+4*i}], v48, s[20:23], s9 offen offset:{16*i}")
    elif dbg:
        a.I(f"""s_memtime s[62:63]
        s_waitcnt lgkmcnt(0)
        s_lshl_b32 s9, s4, 2
        s_add_u32 s9, s9, s5
        s_lshl_b32 s9, s9, 7
        s_add_u32 s9, s9, {DBGW}
        s_nop 7
        v_mov_b32 v8, s88
        v_mov_b32 v9, s18
        v_mov_b32 v10, s62
        v_mov_b32 v11, s91
        v_mov_b32 v12, s92
        v_mov_b32 v13, s93
        v_mov_b32 v14, s90
        v_mov_b32 v15, s60
        v_mov_b32 v48, 0""")
        for i in range(12): a.I(f"v_mov_b32 v{16+i}, s{96+i if i<5 else 70+i}")
        a.I("s_mov_b64 exec, 1")
        for i in range(5): a.I(f"buffer_store_dwordx4 v[{8+4*i}:{11+4*i}], v48, s[20:23], s9 offen offset:{16*i}")
    a.I(f"""s_mov_b64 exec, -1
    s_add_u32 s36, s36, 63
    s_mov_b32 s44, {LOFF}
    s_branch M_A_layer""")
```

```python
from common import *
from bstage import ln_addr, ln_load, ln_compute, XF_TH, XF_SIZE, XF_KS
import struct
from rawload import *
def f2u(x): return struct.unpack('<I',struct.pack('<f',x))[0]
SCL=f2u(128**-0.5*1.4426950408889634)
LDS_LA=163840
BUDGET=400000
import os
BST=os.environ.get('BST','sc1')
BRB=os.environ.get('BRB','')

class LQ:
    def __init__(self,a): self.a=a; self.q=[]; self.t=[]; self.done=0; self.now=0
    def op(self,text,tag=None):
        self.a.I(text); self.q.append(tag); self.t.append(self.now)
    def idx(self,*tags): return max(max(i for i,t in enumerate(self.q) if t==tag) for tag in tags)
    def needs(self,*tags): return self.idx(*tags)>=self.done
    def wait(self,*tags,age=None):
        idx=self.idx(*tags)
        if idx<self.done: return
        if age is not None:
            while idx+1<len(self.q) and self.now-self.t[idx+1]>=age: idx+=1
        n=len(self.q)-1-idx
        assert n<=15, n
        self.a.I(f"s_waitcnt lgkmcnt({n})"); self.done=idx+1
    def all(self):
        self.a.I("s_waitcnt lgkmcnt(0)"); self.done=len(self.q)

def softmax(a, S1, S2, Sm, T, sC, fill=None):
    f=fill or (lambda k: None)
    a.I(f"""v_max3_f32 v{T}, v{S1}, v{S1+1}, v{S1+2}
    v_pk_add_f32 v[{Sm}:{Sm+1}], v[{Sm}:{Sm+1}], v[{Sm+2}:{Sm+3}]
    v_max3_f32 v{T}, v{T}, v{S1+3}, v{Sm}
    v_max3_f32 v{T+1}, v{S2}, v{S2+1}, v{S2+2}
    v_max3_f32 v{T}, v{T}, v{Sm+1}, v{S2+3}
    v_max_f32 v{T}, v{T}, v{T+1}
    v_mov_b32 v{T+1}, v{T}""")
    a.I(f"v_mov_b32 v{Sm+2}, 0\nv_mov_b32 v{Sm+3}, 0")
    f(0)
    a.I(f"""v_permlane16_swap_b32 v{T}, v{T+1}
    v_max_f32 v{T}, v{T}, v{T+1}
    v_mov_b32 v{T+1}, v{T}""")
    f(1)
    a.I(f"""v_permlane32_swap_b32 v{T}, v{T+1}
    v_max_f32 v{T}, v{T}, v{T+1}
    v_mul_f32 v{T}, s{sC}, v{T}""")
    regs=[S1,S1+1,S1+2,S1+3,S2,S2+1,S2+2,S2+3,Sm,Sm+1]
    for r in regs: a.I(f"v_fma_f32 v{r}, v{r}, s{sC}, -v{T}")
    for r in regs: a.I(f"v_exp_f32 v{r}, v{r}")
    a.I(f"""v_cvt_pk_bf16_f32 v{S1}, v{S1}, v{S1+1}
    v_cvt_pk_bf16_f32 v{S1+1}, v{S1+2}, v{S1+3}
    v_cvt_pk_bf16_f32 v{S1+2}, v{S2}, v{S2+1}
    v_cvt_pk_bf16_f32 v{S1+3}, v{S2+2}, v{S2+3}
    v_cvt_pk_bf16_f32 v{Sm}, v{Sm}, v{Sm+1}
    v_mov_b32 v{Sm+1}, 0""")

def pv(a, Px, Pm, VF, VM, ONES, O0, O1, SUM, OUT):
    a.I(f"""v_mfma_f32_16x16x32_bf16 v[{SUM}:{SUM+3}], v[{ONES}:{ONES+3}], v[{Px}:{Px+3}], 0
    v_mfma_f32_16x16x32_bf16 v[{SUM}:{SUM+3}], v[{ONES}:{ONES+3}], v[{Pm}:{Pm+3}], v[{SUM}:{SUM+3}]
    v_mfma_f32_16x16x32_bf16 v[{O0}:{O0+3}], v[{VF}:{VF+3}], v[{Px}:{Px+3}], 0
    v_mfma_f32_16x16x32_bf16 v[{O1}:{O1+3}], v[{VF+4}:{VF+7}], v[{Px}:{Px+3}], 0
    v_mfma_f32_16x16x32_bf16 v[{O0}:{O0+3}], v[{VM}:{VM+3}], v[{Pm}:{Pm+3}], v[{O0}:{O0+3}]
    v_mfma_f32_16x16x32_bf16 v[{O1}:{O1+3}], v[{VM+2}:{VM+5}], v[{Pm}:{Pm+3}], v[{O1}:{O1+3}]
    v_rcp_f32 v{SUM}, v{SUM}
    v_rcp_f32 v{SUM+1}, v{SUM+1}
    v_pk_mul_f32 v[{O0}:{O0+1}], v[{O0}:{O0+1}], v[{SUM}:{SUM+1}]
    v_pk_mul_f32 v[{O0+2}:{O0+3}], v[{O0+2}:{O0+3}], v[{SUM}:{SUM+1}]
    v_pk_mul_f32 v[{O1}:{O1+1}], v[{O1}:{O1+1}], v[{SUM}:{SUM+1}]
    v_pk_mul_f32 v[{O1+2}:{O1+3}], v[{O1+2}:{O1+3}], v[{SUM}:{SUM+1}]
    v_cvt_pk_bf16_f32 v{OUT}, v{O0}, v{O0+1}
    v_cvt_pk_bf16_f32 v{OUT+1}, v{O0+2}, v{O0+3}
    v_cvt_pk_bf16_f32 v{OUT+2}, v{O1}, v{O1+1}
    v_cvt_pk_bf16_f32 v{OUT+3}, v{O1+2}, v{O1+3}""")

def stamp(a, P, i, on):
    if on: a.I(f"""s_memtime s[66:67]
    s_waitcnt lgkmcnt(0)
    s_sub_u32 s68, s66, s69
    s_add_u32 s{70+i}, s{70+i}, s68
    s_mov_b32 s69, s66""")

def role_b(a, P):
    flg=FLAGS
    L16=0; GO=1; LO=2; DEL=3; IDX=4
    QS=XF_SIZE+64-(XF_SIZE%64); QS=43008
    BTK=40960
    def wreg(ti,ks):
        f=ks*6+ti
        return ar(4*f,4) if f<64 else vr(80+4*(f-64),4)
    a.L(P+"B")
    a.I(f"""s_sub_u32 s8, s4, 32""")
    sdiv(a,6,8,NB)
    a.I(f"""s_mul_i32 s7, s6, {NB}
    s_sub_u32 s7, s8, s7
    v_mov_b32 v10, s5""")
    ln_addr(a,"v10",0,GO,LO,12)
    a.I(f"""v_and_b32 v10, 15, v0
    v_lshrrev_b32 v11, 2, v10
    v_lshlrev_b32 v11, 3, v11
    v_and_b32 v12, 3, v10
    v_add_u32 v11, v11, v12
    v_lshrrev_b32 v12, 4, v0
    v_lshlrev_b32 v12, 3, v12
    v_sub_u32 v{DEL}, v11, v12
    v_mov_b32 v{IDX}, 0x4444
    v_mov_b32 v11, 0xeeee
    v_and_b32 v12, 2, v0
    v_cmp_eq_u32 vcc, 2, v12
    v_cndmask_b32 v{IDX}, v{IDX}, v11, vcc
    v_lshlrev_b32 v{L16}, 4, v0""")
    def wt(ti,ks):
        f=ks*6+ti
        return ('a',4*f) if f<64 else ('v',80+4*(f-64))
    a.I(f"""v_lshrrev_b32 v20, 6, v{L16}          ; a
    v_bfe_u32 v21, v{L16}, 4, 2            ; piece
    v_lshlrev_b32 v8, 13, v20
    v_lshl_add_u32 v8, v21, 4, v8
    v_and_b32 v22, 3, v20
    v_lshrrev_b32 v23, 8, v{L16}
    v_lshl_add_u32 v22, v23, 3, v22
    v_lshlrev_b32 v22, 6, v22
    v_lshl_add_u32 v22, v21, 4, v22
    s_lshl_b32 s9, s5, 12
    v_add_u32 v9, s9, v22
    v_add_u32 v10, s9, v{L16}
    s_lshl_b32 s30, s6, 8
    s_lshl_b32 s9, s5, 6
    s_add_u32 s30, s30, s9""")
    chunks=[]
    for k in range(9):
        for mat in range(3):
            g=[wt(2*mat+t,2*k+hb) for t in range(2) for hb in range(2)]
            chunks.append(dict(srd=SQ+4*mat, voff=[8]*4, soff=[(30,(64*k+16*i)*8192) for i in range(4)], grp=g,
                rd=[((g[2*t+hb][0],g[2*t+hb][1]+2*rho),9,hb*2048+rho*256+t*8) for t in range(2) for hb in range(2) for rho in range(2)]))
    rawload(a,chunks,10,flags="")
    a.I("s_barrier")
    wait_dbg(a,DB_INIT,NOTH,8)
    a.L(P+"B_layer")
    rt(a,1,8)
    a.I(f"""s_mov_b32 s10, s7            ; s_q
    s_mov_b32 s11, -1                    ; s_a
    s_mov_b32 s12, {QS}
    s_mov_b32 s13, {QS+24576}
    s_mov_b32 s14, {SCL}
    s_waitcnt vmcnt(0)""")
    a.L(P+"B_loop")
    a.I(f"""s_cmp_ge_u32 s10, 64
    s_cbranch_scc1 {P}B_attn""")
    X=8; T=44
    a.I(f"""s_cmp_eq_u32 s95, 0
    s_cbranch_scc1 {P}B_x
    s_lshl_b32 s15, s10, 4
    s_add_u32 s15, s15, {FLAGS+EFLAG}""")
    wait_flags(a,15,3,8,L16,sleep=2)
    a.L(P+"B_x")
    if RT:
        a.I(f"s_cmp_lg_u32 s10, s7\ns_cbranch_scc1 {P}B_x2"); rt(a,2,8); a.L(P+"B_x2")
    a.I(f"s_mul_i32 s15, s10, {32*1152}")
    ln_load(a,X,GO,24,"s15","sc1")
    a.I(f"""s_lshl_b32 s16, s6, 21
    s_lshl_b32 s17, s10, 12
    s_add_u32 s17, s17, s16
    s_lshl_b32 s18, s5, 10
    s_add_u32 s17, s17, s18
    s_add_u32 s17, s17, {KVM}
    v_mov_b32 v44, -1
    v_mov_b32 v45, -1
    v_mov_b32 v46, -1
    v_mov_b32 v47, -1
    buffer_store_dwordx4 v[44:47], v{L16}, s[20:23], s17 offen sc1
    s_waitcnt vmcnt(1)""")
    ln_compute(a,X,T,LO,36,37)
    a.I("s_waitcnt lgkmcnt(0)\ns_barrier")
    ACC=32; FR=8
    def rd(ks):
        for th in range(2):
            r=FR+((ks%3)*2+th)*4
            a.I(f"ds_read_b128 v[{r}:{r+3}], v7 offset:{th*XF_TH+ks*XF_KS}")
    acc=lambda ti,th: ACC+(ti*2+th)*4
    def gemm(tis):
        rd(0); rd(1)
        for ks in range(18):
            if ks+2<18: rd(ks+2)
            a.I(f"s_waitcnt lgkmcnt({min(2,17-ks)*2})")
            for ti in tis:
                for th in range(2):
                    d=acc(ti,th); r=vr(FR+((ks%3)*2+th)*4,4)
                    c="0" if ks==0 else vr(d,4)
                    if ti<4: a.I(f"v_mfma_f32_16x16x32_bf16 {vr(d,4)}, {wreg(ti,ks)}, {r}, {c}")
                    else:    a.I(f"v_mfma_f32_16x16x32_bf16 {vr(d,4)}, {r}, {wreg(ti,ks)}, {c}")
    a.I(f"""s_lshl_b32 s17, s10, 14
    s_add_u32 s17, s17, s16
    s_add_u32 s17, s17, {KV}
    s_add_u32 s18, s18, s17              ; + w*1024  (K)
    s_lshl_b32 s19, s5, 11
    s_add_u32 s19, s19, s17
    s_add_u32 s19, s19, 8192             ; V + w*2048
    s_lshl_b32 s38, s5, 10
    s_add_u32 s38, s38, s12
    v_add_u32 v5, s38, v{L16}
    s_lshl_b32 s38, s5, 11
    s_add_u32 s38, s38, s12
    v_add_u32 v6, s38, v{L16}
    s_add_u32 s39, s18, 4096
    v_lshrrev_b32 v7, 8, v{L16}
    v_lshl_add_u32 v7, v7, 4, v{L16}""")
    gemm((2,3,4,5))
    def qk(m,ob):
        for th in range(2):
            o=ob+th*4; d0=acc(2*m,th); d1=acc(2*m+1,th)
            a.I(f"""v_cvt_pk_bf16_f32 v{o}, v{d0}, v{d0+1}
            v_cvt_pk_bf16_f32 v{o+1}, v{d1}, v{d1+1}
            v_cvt_pk_bf16_f32 v{o+2}, v{d0+2}, v{d0+3}
            v_cvt_pk_bf16_f32 v{o+3}, v{d1+2}, v{d1+3}""")
            if m==1: a.I(f"buffer_store_dwordx4 v[{o}:{o+3}], v{L16}, s[20:23], s{18 if th==0 else 39} offen sc1")
            a.I(f"ds_write_b128 v5, v[{o}:{o+3}] offset:{m*8192+th*4096}")
    qk(1,32)
    for tau in range(2):
        o=40+tau*4; d0=acc(4+tau,0); d1=acc(4+tau,1)
        a.I(f"""v_cvt_pk_bf16_f32 v{o}, v{d0}, v{d0+1}
        v_cvt_pk_bf16_f32 v{o+1}, v{d0+2}, v{d0+3}
        v_cvt_pk_bf16_f32 v{o+2}, v{d1}, v{d1+1}
        v_cvt_pk_bf16_f32 v{o+3}, v{d1+2}, v{d1+3}
        buffer_store_dwordx4 v[{o}:{o+3}], v{L16}, s[20:23], s19 offen offset:{tau*1024} sc1
        ds_write_b128 v6, v[{o}:{o+3}] offset:{16384+tau*1024}""")
    a.I("s_waitcnt lgkmcnt(0)")
    gemm((0,1))
    a.I(f"""s_waitcnt vmcnt(0)
    s_barrier
    s_cmp_lg_u32 s5, 0
    s_cbranch_scc1 {P}B_q
    s_lshl_b32 s17, s6, 6
    s_add_u32 s17, s17, s10
    s_lshl_b32 s17, s17, 7
    s_add_u32 s17, s17, {flg}""")
    post_flag(a,17,8)
    a.L(P+"B_q")
    a.I("s_nop 3")
    qk(0,8)
    a.I("s_waitcnt lgkmcnt(0)\ns_barrier")
    a.L(P+"B_attn")
    if RT:
        a.I(f"s_cmp_lg_u32 s10, s7\ns_cbranch_scc1 {P}B_a2"); rt(a,3,8); a.L(P+"B_a2")
    a.I(f"""s_cmp_lt_i32 s11, 0
    s_cbranch_scc1 {P}B_next
    s_lshl_b32 s16, s11, 5
    s_add_u32 s16, s16, s6
    s_lshl_b32 s17, s6, 21
    s_lshl_b32 s18, s11, 12
    s_add_u32 s17, s17, s18
    s_add_u32 s17, s17, {KVM}
    s_lshl_b32 s18, s5, 10
    s_add_u32 s18, s18, s17
    v_add_u32 v6, s13, v{L16}
    s_lshl_b32 s38, s5, 11
    v_add_u32 v7, s38, v6""")
    KM=8; VM=16; VF=20; QF=28; KF=44; S1=60; S2=64; Sm=68; ON=72; T=78; O0=44; O1=48
    a.I(f"""ds_read_b128 v[{VF}:{VF+3}], v7 offset:16384
    ds_read_b128 v[{VF+4}:{VF+7}], v7 offset:17408""")
    for i in range(4): a.I(f"v_mov_b32 v{ON+i}, 0x3f803f80")
    a.I(f"""s_lshl_b32 s38, s5, 9
    v_lshrrev_b32 v5, 1, v{L16}
    v_add_u32 v5, s38, v5""")
    a.L(P+"B_poll")
    a.I(f"""buffer_load_dwordx4 v[{KM}:{KM+3}], v{L16}, s[20:23], s18 offen sc1
    s_waitcnt vmcnt(0)
    v_max3_u32 v{T}, v{KM}, v{KM+1}, v{KM+2}
    v_max_u32 v{T}, v{T}, v{KM+3}
    v_cmp_eq_u32 vcc, -1, v{T}
    s_cbranch_vccz {P}B_go""")
    spin_tail(a,P+"B_poll",None,sleep=2)
    a.L(P+"B_go")
    rt(a,4,77)
    a.I(f"""ds_write_b64 v5, v[{KM}:{KM+1}] offset:{BTK}
    v_mov_b64 v[{VM}:{VM+1}], v[{KM+2}:{KM+3}]
    v_and_b32 v{T}, 0x200, v{L16}
    v_bfe_u32 v{T+1}, v{L16}, 8, 1
    v_lshl_add_u32 v{T}, v{T+1}, 6, v{T}
    v_bfe_u32 v{T+1}, v{L16}, 6, 2
    v_lshl_add_u32 v{T}, v{T+1}, 3, v{T}
    v_bfe_u32 v{T+1}, v{L16}, 4, 2
    v_lshl_add_u32 v{T}, v{T+1}, 7, v{T}
    s_waitcnt lgkmcnt(0)
    s_barrier""")
    for sg_ in range(2):
        for rho in range(2):
            a.I(f"ds_read_b64_tr_b16 v[{KM+4*sg_+2*rho}:{KM+4*sg_+2*rho+1}], v{T} offset:{BTK+sg_*1024+rho*32}")
    a.I(f"""s_lshl_b32 s17, s16, 13
    s_lshl_b32 s18, s5, 11
    s_add_u32 s17, s17, s18
    s_add_u32 s17, s17, {OBUF}
    v_mov_b32 v76, 0xff800000
    v_mov_b32 v{VM+2}, v{VM+1}
    v_mov_b32 v{VM+3}, 0""")
    for tq in range(2):
        for ks in range(4): a.I(f"ds_read_b128 v[{QF+4*ks}:{QF+4*ks+3}], v6 offset:{tq*4096+ks*1024}")
        for i in range(4): a.I(f"v_mov_b32 v{Sm+i}, 0")
        for tk in range(2):
            S=(S1,S2)[tk]
            for ks in range(4): a.I(f"ds_read_b128 v[{KF+4*ks}:{KF+4*ks+3}], v6 offset:{8192+tk*4096+ks*1024}")
            a.I("s_waitcnt lgkmcnt(0)")
            for ks in range(4):
                c="0" if ks==0 else vr(S,4)
                a.I(f"v_mfma_f32_16x16x32_bf16 {vr(S,4)}, {vr(KF+4*ks,4)}, {vr(QF+4*ks,4)}, {c}")
            a.I("s_nop 3")
        for sg_ in range(2):
            a.I(f"v_smfmac_f32_16x16x64_bf16 {vr(Sm,4)}, {vr(KM+4*sg_,4)}, {vr(QF+8*sg_,8)}, v{IDX}")
        for tk in range(2):
            S=(S1,S2)[tk]
            for r in range(4):
                a.I(f"""v_cmp_le_i32 vcc, {r+4*(tk-tq)}, v{DEL}
                v_cndmask_b32 v{S+r}, v76, v{S+r}, vcc""")
        softmax(a,S1,S2,Sm,T,14)
        pv(a,S1,Sm,VF,VM,ON,O0,O1,S2,52+4*tq)
        a.I(f"buffer_store_dwordx4 v[{52+4*tq}:{55+4*tq}], v{L16}, s[20:23], s17 offen offset:{tq*1024} sc1")
        if tq==0: a.I("s_nop 1")
    a.I(f"""s_waitcnt vmcnt(0)
    s_barrier
    s_cmp_lg_u32 s5, 0
    s_cbranch_scc1 {P}B_next
    s_lshl_b32 s17, s16, 7
    s_add_u32 s17, s17, {flg+OFLAG}
    v_mov_b32 v8, 1
    s_mov_b64 exec, 1
    buffer_store_dword v8, v{L16}, s[20:23], s17 offen sc1
    s_mov_b64 exec, -1""")
    a.L(P+"B_next")
    rt(a,5,8)
    a.I(f"""s_mov_b32 s11, s10
    s_add_u32 s10, s10, {NB}
    s_mov_b32 s38, s12
    s_mov_b32 s12, s13
    s_mov_b32 s13, s38
    s_cmp_lt_u32 s11, 64
    s_cbranch_scc1 {P}B_loop
    s_cmp_eq_u32 s95, 1
    s_cbranch_scc1 {P}Efin""")
    next_layer(a)
    a.I(f"s_branch {P}B_layer")

def role_c(a, P):
    flg=FLAGS+OFLAG; xdst=XA
    L16=0
    def wreg(kl,tau):
        f=kl*3+tau
        return ar(4*f,4) if f<64 else vr(128+4*(f-64),4)
    a.L(P+"C")
    lane(a,0)
    a.I(f"""s_and_b32 s8, s4, 31
    s_cmp_ge_u32 s4, 224
    s_cselect_b32 s9, 8, 0
    s_sub_u32 s8, s8, s9
    s_mov_b32 s39, s8
    s_sub_u32 s9, s4, 160
    s_lshr_b32 s9, s9, 5
    s_cmp_eq_u32 s9, 2
    s_cselect_b32 s6, {S3+2}, s9
    s_mul_i32 s40, s9, 24
    s_add_u32 s40, s40, s8
    s_cmp_ge_u32 s8, 12
    s_cselect_b32 s9, 1, 0
    s_mov_b32 s15, s9                    ; theta
    s_mul_i32 s9, s9, 12
    s_sub_u32 s7, s8, s9                 ; cb
    v_and_b32 v1, 7, v0
    v_lshlrev_b32 v1, 2, v1
    v_and_b32 v10, 15, v0
    v_lshrrev_b32 v11, 2, v10
    v_lshlrev_b32 v11, 3, v11
    v_and_b32 v12, 3, v10
    v_add_u32 v11, v11, v12
    v_mul_u32_u24 v2, 1152, v11
    v_lshrrev_b32 v12, 4, v0
    v_mul_u32_u24 v12, 24, v12
    v_add_u32 v2, v2, v12
    v_lshlrev_b32 v{L16}, 4, v0
    s_mul_i32 s9, s5, 3072
    v_add_u32 v3, s9, v{L16}
    s_mul_i32 s30, s5, {1024*1152}
    s_mul_i32 s9, s7, 96
    s_add_u32 s30, s30, s9
    s_lshl_b32 s9, s5, 12
    v_add_u32 v9, s9, v{L16}
    v_bfe_u32 v20, v{L16}, 6, 2
    v_lshrrev_b32 v21, 8, v{L16}
    v_lshl_add_u32 v20, v21, 3, v20
    v_mul_u32_u24 v20, 96, v20
    v_bfe_u32 v21, v{L16}, 4, 2
    v_mul_u32_u24 v21, 24, v21
    v_add3_u32 v8, v20, v21, s9
    v_lshrrev_b32 v20, 4, v{L16}""")
    for i in range(3):
        a.I(f"""v_add_u32 v21, {64*i}, v20
        v_mul_u32_u24 v22, 171, v21
        v_lshrrev_b32 v22, 10, v22
        v_mul_u32_u24 v23, 6, v22
        v_sub_u32 v23, v21, v23
        v_mul_u32_u24 v22, 1152, v22
        v_lshl_add_u32 v{5+i}, v23, 4, v22""")
    def wt(kl,tau):
        f=kl*3+tau
        return ('a',4*f) if f<64 else ('v',128+4*(f-64))
    chunks=[]
    for kl in range(32):
        g=[wt(kl,t) for t in range(3)]
        chunks.append(dict(srd=SQ+12, voff=[5,6,7], soff=[(30,32*kl*1152)]*3, grp=g,
            rd=[((g[t][0],g[t][1]+2*rho),8,rho*384+t*8) for t in range(3) for rho in range(2)]))
    if os.environ.get("CDEL"): wait_dbg(a,DB_TAB,NOTH,10,sleep=16)
    rawload(a,chunks,9,flags="")
    a.I("s_barrier")
    wait_dbg(a,DB_TAB,NOTH,8)
    rt(a,1,14)
    a.L(P+"C_loop")
    a.I(f"""s_lshl_b32 s10, s6, 5
    s_lshl_b32 s11, s5, 3
    s_add_u32 s10, s10, s11              ; s*32+8w
    s_lshl_b32 s11, s6, 12
    s_add_u32 s11, s11, {flg}
    s_lshl_b32 s12, s10, 13
    s_add_u32 s12, s12, {OBUF}
    s_lshl_b32 s14, s15, 10
    s_add_u32 s12, s12, s14
    s_mul_i32 s13, s6, {32*1152}
    s_mul_i32 s14, s7, 96
    s_add_u32 s13, s13, s14
    s_mul_i32 s14, s15, {4*1152}
    s_add_u32 s13, s13, s14              ; x offset
    """)
    wait_flags(a,11,32,4,L16,sh=7)
    a.L(P+"C_go")
    rt(a,4,14)
    ACC=16; FB=28; NR=25
    def ld(f):
        r=FB+4*(f%NR)
        a.I(f"buffer_load_dwordx4 v[{r}:{r+3}], v{L16}, s[20:23], s12 offen offset:{(f&1)*2048} sc1")
        if f&1==1: a.I("s_add_u32 s12, s12, 4096")
    for f in range(NR): ld(f)
    for kl in range(32):
        issued=min(32,NR+kl)+(2 if kl>7 else 0)
        a.I(f"s_waitcnt vmcnt({issued-kl-1})")
        r=FB+4*(kl%NR)
        for tau in range(3):
            d=ACC+tau*4
            c="0" if kl==0 else vr(d,4)
            a.I(f"v_mfma_f32_16x16x32_bf16 {vr(d,4)}, {wreg(kl,tau)}, {vr(r,4)}, {c}")
        if NR+kl<32: ld(NR+kl)
        if kl==7:
            a.I("""buffer_load_dwordx4 v[8:11], v2, s[24:27], s13 offen sc1
            buffer_load_dwordx2 v[12:13], v2, s[24:27], s13 offen offset:16 sc1""")
    for i in range(3): a.I(f"ds_write_b128 v3, {vr(ACC+4*i,4)} offset:{1024*i}")
    a.I(f"""s_waitcnt vmcnt(0) lgkmcnt(0)
    s_barrier
    s_cmp_lg_u32 s5, 0
    s_cbranch_scc1 {P}C_next""")
    for w in range(1,4):
        for tau in range(3):
            a.I(f"ds_read_b128 {vr(ACC+(w*3+tau)*4,4)}, v{L16} offset:{w*3072+tau*1024}")
    a.I("s_waitcnt lgkmcnt(0)\ns_barrier")
    for p in range(6):
        x=8+p; d=ACC+2*p
        a.I(f"""v_pk_add_f32 v[{d}:{d+1}], v[{d}:{d+1}], v[{d+12}:{d+13}]
        v_pk_add_f32 v[{d+24}:{d+25}], v[{d+24}:{d+25}], v[{d+36}:{d+37}]
        v_lshlrev_b32 v14, 16, v{x}
        v_and_b32 v15, 0xffff0000, v{x}
        v_pk_add_f32 v[{d}:{d+1}], v[{d}:{d+1}], v[{d+24}:{d+25}]
        v_pk_add_f32 v[14:15], v[14:15], v[{d}:{d+1}]
        v_cvt_pk_bf16_f32 v{x}, v14, v15""")
    a.I(f"""s_add_u32 s13, s13, {xdst}
    buffer_store_dwordx4 v[8:11], v2, s[20:23], s13 offen sc1
    buffer_store_dwordx2 v[12:13], v2, s[20:23], s13 offen offset:16 sc1
    s_lshl_b32 s11, s6, 7
    s_lshl_b32 s12, s39, 2
    s_add_u32 s11, s11, s12
    s_add_u32 s11, s11, {FLAGS+XFLAG}
    s_waitcnt vmcnt(0)""")
    post_flag(a,11,14)
    rt(a,5,14)
    a.I(f"s_branch {P}C_nf")
    a.L(P+"C_next")
    a.I("s_barrier")
    a.L(P+"C_nf")
    a.I(f"""s_cmp_ge_u32 s6, {S3}
    s_addc_u32 s6, s6, 2
    s_cmp_lt_u32 s6, 64
    s_cbranch_scc1 {P}C_loop
    s_mov_b32 s41, 0
    s_branch {P}L5""")
```

```python
from common import *
NFIN=53
XF_KS=4*272
XF_TH=72*272
XF_SIZE=2*XF_TH

def xlane_sum(a, x, t, op="v_add_f32"):
    a.I(f"""{op}_dpp v{x}, v{x}, v{x} quad_perm:[1,0,3,2] row_mask:0xf bank_mask:0xf
    {op}_dpp v{x}, v{x}, v{x} quad_perm:[2,3,0,1] row_mask:0xf bank_mask:0xf
    {op}_dpp v{x}, v{x}, v{x} row_half_mirror row_mask:0xf bank_mask:0xf""")

def rbf(a, x):
    a.I(f"""v_cvt_pk_bf16_f32 v{x}, v{x}, v{x}
    v_and_b32 v{x}, 0xffff0000, v{x}""")

def ln_addr(a, vw, vlane, vgoff, vloff, t, ldsbase=0):
    a.I(f"""v_lshrrev_b32 v{t}, 3, v{vlane}          ; rho
    v_lshl_add_u32 v{vgoff}, {vw}, 3, v{t}
    v_mul_u32_u24 v{vgoff}, 1152, v{vgoff}
    v_and_b32 v{t+1}, 7, v{vlane}                  ; c
    v_lshl_add_u32 v{vgoff}, v{t+1}, 4, v{vgoff}
    v_lshrrev_b32 v{vloff}, 2, v{t}                ; theta
    v_mul_u32_u24 v{vloff}, {XF_TH}, v{vloff}
    v_mul_u32_u24 v{t+1}, 272, v{t+1}
    v_add_u32 v{vloff}, v{vloff}, v{t+1}
    v_and_b32 v{t}, 3, v{t}
    v_lshl_add_u32 v{t}, {vw}, 2, v{t}             ; n
    v_lshl_add_u32 v{vloff}, v{t}, 4, v{vloff}""")

def ln_load(a, X, vgoff, srdx, soff, flags=""):
    for j in range(9):
        a.I(f"buffer_load_dwordx4 v[{X+4*j}:{X+4*j+3}], v{vgoff}, s[{srdx}:{srdx+3}], {soff} offen offset:{128*j} {flags}")

def ln_compute(a, X, T, vloff, sA, sB, redo=None, sR=None):
    assert T%2==0
    l=a.lab("ln")
    a.L(l)
    a.I(f"""s_mov_b32 s{sA}, 0x3f803f80
    s_mov_b32 s{sB}, 0x3ae38e39
    v_mov_b32 v{T}, 0
    v_mov_b32 v{T+1}, 0""")
    for i in range(36):
        a.I(f"v_dot2_f32_bf16 v{T+(i&1)}, v{X+i}, s{sA}, v{T+(i&1)}")
    a.I(f"v_add_f32 v{T}, v{T}, v{T+1}")
    if redo:
        a.I(f"""v_cmp_u_f32 vcc, v{T}, v{T}
        s_cbranch_vccz {l}k
        s_cmp_eq_u32 s{sR}, 1
        s_cbranch_scc1 {l}k
        s_mov_b32 s{sR}, 1""")
        redo()
        a.I(f"s_waitcnt vmcnt(0)\ns_branch {l}")
        a.L(l+"k")
        a.I("s_nop 1")
    xlane_sum(a,T,T+1)
    a.I(f"""v_mul_f32 v{T}, s{sB}, v{T}
    v_mov_b32 v{T+2}, v{T}""")
    rbf(a,T+2)
    a.I(f"""v_mov_b32 v{T+3}, v{T+2}
    v_sub_f32 v{T}, v{T}, v{T+2}
    v_mov_b32 v{T+4}, 0
    v_mov_b32 v{T+5}, 0""")
    for i in range(36):
        u=T+6+2*(i&1)
        a.I(f"""v_lshlrev_b32 v{u}, 16, v{X+i}
        v_and_b32 v{u+1}, 0xffff0000, v{X+i}
        v_pk_add_f32 v[{u}:{u+1}], v[{u}:{u+1}], v[{T+2}:{T+3}] neg_lo:[0,1] neg_hi:[0,1]
        v_pk_fma_f32 v[{T+4}:{T+5}], v[{u}:{u+1}], v[{u}:{u+1}], v[{T+4}:{T+5}]
        v_cvt_pk_bf16_f32 v{X+i}, v{u}, v{u+1}""")
    a.I(f"v_add_f32 v{T+4}, v{T+4}, v{T+5}")
    xlane_sum(a,T+4,T+5)
    a.I(f"""v_mul_f32 v{T+4}, s{sB}, v{T+4}
    v_fma_f32 v{T+4}, -v{T}, v{T}, v{T+4}
    v_max_f32 v{T+4}, 0, v{T+4}""")
    rbf(a,T+4)
    a.I(f"v_add_f32 v{T+4}, 0x3727c5ac, v{T+4}")
    rbf(a,T+4)
    a.I(f"v_sqrt_f32 v{T+4}, v{T+4}")
    rbf(a,T+4)
    a.I(f"""v_rcp_f32 v{T+4}, v{T+4}
    s_nop 0
    v_mov_b32 v{T+5}, v{T+4}""")
    for j in range(9):
        for k in range(4):
            i=4*j+k
            u=T+6+2*(i&1)
            a.I(f"""v_lshlrev_b32 v{u}, 16, v{X+i}
            v_and_b32 v{u+1}, 0xffff0000, v{X+i}
            v_pk_mul_f32 v[{u}:{u+1}], v[{u}:{u+1}], v[{T+4}:{T+5}]
            v_cvt_pk_bf16_f32 v{X+i}, v{u}, v{u+1}""")
        a.I(f"ds_write_b128 v{vloff}, v[{X+4*j}:{X+4*j+3}] offset:{8*272*j}")

def load_54(a, vl16, srdw, sb):
    a.I(f"""s_add_u32 s{sb+1}, s{sb}, 18432
    s_add_u32 s{sb+2}, s{sb}, 36864""")
    for ks in range(18):
        for tau in range(3):
            r=(ks*3+tau)*4
            a.I(f"buffer_load_dwordx4 a[{r}:{r+3}], v{vl16}, s[{srdw}:{srdw+3}], s{sb+tau} offen offset:{(ks&3)*1024} sc1")
        if ks&3==3:
            for tau in range(3): a.I(f"s_add_u32 s{sb+tau}, s{sb+tau}, 4096")

def role_d(a, P):
    a.L(P+"D")
    lane(a,0)
    sdiv(a,3,44,3)
    a.I(f"""s_mul_i32 s43, s3, 3
    s_sub_u32 s43, s44, s43              ; cg
    v_mov_b32 v1, s5""")
    ln_addr(a,"v1",0,2,3,4)
    a.I(f"""v_lshlrev_b32 v6, 4, v0
    v_bfe_u32 v7, v0, 1, 3
    v_lshlrev_b32 v7, 13, v7
    v_and_b32 v8, 1, v0
    v_lshl_add_u32 v7, v8, 6, v7
    v_lshrrev_b32 v8, 4, v0
    v_lshl_add_u32 v7, v8, 4, v7
    v_lshl_add_u32 v10, v8, 4, v6
    s_mov_b32 s40, s3""")
    wait_dbg(a,DB_TAB,NOTH,8)
    a.I(f"""s_lshl_b32 s7, s43, 2
    s_add_u32 s7, s7, s5
    s_mul_i32 s10, s7, {54*1024}
    s_add_u32 s10, s10, {FIMG}""")
    load_54(a,6,84,10)
    a.L(P+"D_loop")
    a.I(f"""s_lshl_b32 s14, s3, 7
    s_add_u32 s14, s14, {FLAGS+XFLAG}
    s_mov_b32 s15, 0""")
    wait_flags(a,14,24,8,6)
    rt(a,4,8)
    a.I(f"""s_mul_i32 s6, s3, {32*1152}
    s_add_u32 s6, s6, {XA}""")
    X=16
    ln_load(a,X,2,20,"s6","sc1")
    a.I("s_waitcnt vmcnt(0)")
    ln_compute(a,X,52,3,12,13,lambda: (wait_flags(a,14,24,8,6,minv=2,wg=False), ln_load(a,X,2,20,"s6","sc1")),15)
    a.I("s_waitcnt lgkmcnt(0)\ns_barrier")
    ACC=64; FR=16
    def rd(ks):
        for th in range(2):
            r=FR+((ks%4)*2+th)*4
            a.I(f"ds_read_b128 v[{r}:{r+3}], v10 offset:{th*XF_TH+ks*XF_KS}")
    for ks in range(3): rd(ks)
    for ks in range(18):
        if ks+3<18: rd(ks+3)
        a.I(f"s_waitcnt lgkmcnt({min(3,17-ks)*2})")
        for th in range(2):
            for tau in range(3):
                d=ACC+(th*3+tau)*4; r=FR+((ks%4)*2+th)*4; w=(ks*3+tau)*4
                c="0" if ks==0 else f"v[{d}:{d+3}]"
                a.I(f"v_mfma_f32_16x16x32_bf16 v[{d}:{d+3}], v[{r}:{r+3}], a[{w}:{w+3}], {c}")
    a.I(f"""s_mul_i32 s8, s7, {48*4096}
    s_lshl_b32 s9, s3, 7
    s_add_u32 s8, s8, s9
    s_add_u32 s8, s8, {ZF}""")
    for tau in range(3):
        o=16+4*tau
        for th in range(2):
            d=ACC+(th*3+tau)*4
            a.I(f"""v_cvt_pk_bf16_f32 v{o+2*th}, v{d}, v{d+1}
            v_cvt_pk_bf16_f32 v{o+2*th+1}, v{d+2}, v{d+3}""")
        a.I(f"buffer_store_dwordx4 v[{o}:{o+3}], v7, s[20:23], s8 offen sc1")
        if tau<2: a.I(f"s_add_u32 s8, s8, {16*4096}")
    a.I(f"""s_barrier
    s_add_u32 s3, s3, {ND}
    s_cmp_lt_u32 s3, 64
    s_cbranch_scc1 {P}D_loop
    s_lshl_b32 s6, s44, 2
    s_add_u32 s6, s6, {FLAGS+DFLAG}""")
    post2(a,6,8)
    a.L(P+"D_n")
    rt(a,5,8)
    a.I(f"""s_cmp_eq_u32 s95, 1
    s_cbranch_scc1 {P}D_e""")
    next_layer(a)
    a.I(f"""s_mov_b32 s3, s40
    s_branch {P}D_loop""")
    a.L(P+"D_e")
    a.I(f"""s_add_u32 s44, s44, {3*(NFIN+NE)}
    s_mov_b32 s42, {NE+ND}
    s_branch {P}E_go""")

def role_e(a, P):
    a.L(P+"Efin")
    a.I(f"""s_cmp_ge_u32 s4, {3*NFIN}
    s_cbranch_scc1 {P}end
    s_load_dwordx2 s[16:17], s[0:1], {KA['ws']}
    s_waitcnt vmcnt(0) lgkmcnt(0)
    s_barrier""")
    srd(a,84,16,WS_SIZE)
    a.I(f"""s_add_u32 s20, s84, {LOFF}
    s_addc_u32 s21, s85, 0
    s_mov_b32 s22, {WS_SIZE-LOFF}
    s_mov_b32 s95, 1
    s_mov_b32 s44, s4
    s_mov_b32 s42, 64
    s_branch {P}E_go""")
    a.L(P+"E")
    a.I(f"""s_sub_u32 s44, s44, {3*ND}
    s_mov_b32 s42, {NE}""")
    a.L(P+"E_go")
    lane(a,0)
    sdiv(a,3,44,3)
    a.I(f"""s_mul_i32 s43, s3, 3
    s_sub_u32 s43, s44, s43              ; cg
    s_mov_b32 s40, s3
    v_lshlrev_b32 v6, 4, v0
    v_lshrrev_b32 v2, 3, v0
    v_lshlrev_b32 v2, 13, v2
    v_and_b32 v3, 7, v0
    v_lshl_add_u32 v2, v3, 4, v2
    v_and_b32 v3, 3, v0
    v_lshrrev_b32 v4, 4, v0
    v_bfe_u32 v5, v0, 2, 2
    v_lshl_add_u32 v5, v4, 3, v5
    v_lshlrev_b32 v5, 6, v5
    v_lshl_add_u32 v5, v3, 3, v5
    v_and_b32 v7, 15, v0
    v_mul_u32_u24 v7, 1152, v7
    v_mul_u32_u24 v8, 24, v4
    v_add_u32 v7, v7, v8""")
    wait_dbg(a,DB_TAB,NOTH,8)
    a.I(f"""s_lshl_b32 s7, s43, 2
    s_add_u32 s7, s7, s5
    s_mul_i32 s10, s7, {54*1024}
    s_add_u32 s10, s10, {FINV}""")
    load_54(a,6,84,10)
    a.L(P+"E_layer")
    a.I(f"""s_load_dwordx2 s[18:19], s[0:1], {KA['out']}
    s_add_u32 s16, s84, {LOFF+XIN}
    s_addc_u32 s17, s85, 0
    s_waitcnt lgkmcnt(0)
    s_cmp_eq_u32 s95, 0
    s_cselect_b32 s18, s16, s18
    s_cselect_b32 s19, s17, s19""")
    srd(a,80,18,XBYTES)
    rt(a,9,8)
    a.I(f"s_mov_b32 s6, {FLAGS+FFLAG}")
    wait_flags(a,6,73,8,6,sleep=1,sh=5)
    rt(a,10,8)
    def dma(seg):
        a.I(f"""s_mul_i32 s6, s5, {9*16*4096}
        s_lshl_b32 s9, {seg}, 7
        s_add_u32 s6, s6, s9
        s_add_u32 s6, s6, {ZO}
        s_mul_i32 s9, s5, 9216
        s_add_u32 s9, s9, s14
        s_xor_b32 s14, s14, 36864""")
        for j in range(9):
            a.I(f"""s_mov_b32 m0, s9
            buffer_load_dwordx4 v2, s[20:23], s6 offen sc1 lds""")
            if j<8: a.I(f"s_add_u32 s6, s6, {16*4096}\ns_add_u32 s9, s9, 1024")
    a.I("s_mov_b32 s14, 0\ns_mov_b32 s39, 0\nv_mov_b32 v12, v5")
    dma("s3")
    a.L(P+"E_loop")
    a.I(f"""s_mul_i32 s10, s3, {32*1152}
    s_mul_i32 s11, s7, 96
    s_add_u32 s10, s10, s11
    s_add_u32 s11, s10, {16*1152}
    s_add_u32 s12, s10, {XA}
    s_add_u32 s13, s11, {XA}""")
    for th in range(2):
        a.I(f"""buffer_load_dwordx4 v[{48+6*th}:{51+6*th}], v7, s[20:23], s{12+th} offen sc1
        buffer_load_dwordx2 v[{52+6*th}:{53+6*th}], v7, s[20:23], s{12+th} offen offset:16 sc1""")
    a.I(f"""s_add_u32 s15, s3, s42
    s_cmp_lt_u32 s15, 64
    s_cbranch_scc1 {P}E_pf
    s_waitcnt vmcnt(4)
    s_branch {P}E_c""")
    a.L(P+"E_pf")
    dma("s15")
    a.I("s_waitcnt vmcnt(13)")
    a.L(P+"E_c")
    a.I("s_barrier")
    ACC=64; FR=16
    def rd(ks):
        for th in range(2):
            r=FR+((ks%4)*2+th)*4
            for rho in range(2):
                a.I(f"ds_read_b64_tr_b16 v[{r+2*rho}:{r+2*rho+1}], v12 offset:{ks*2048+rho*256+th*32}")
    for ks in range(3): rd(ks)
    for ks in range(18):
        if ks+3<18: rd(ks+3)
        a.I(f"s_waitcnt lgkmcnt({min(3,17-ks)*4})")
        for th in range(2):
            for tau in range(3):
                d=ACC+(th*3+tau)*4; r=FR+((ks%4)*2+th)*4; w=(ks*3+tau)*4
                c="0" if ks==0 else f"v[{d}:{d+3}]"
                a.I(f"v_mfma_f32_16x16x32_bf16 v[{d}:{d+3}], a[{w}:{w+3}], v[{r}:{r+3}], {c}")
    a.I(f"""s_waitcnt vmcnt(0)
    v_cmp_u_f32 vcc, v{ACC}, v{ACC+12}
    s_cbranch_vccz {P}E_ok
    s_cmp_eq_u32 s39, 1
    s_cbranch_scc1 {P}E_ok
    s_mov_b32 s39, 1
    s_mov_b32 s6, {FLAGS+FFLAG}""")
    wait_flags(a,6,73,8,6,sh=5,minv=2)
    a.I("s_mov_b32 s14, 0\nv_mov_b32 v12, v5")
    dma("s3")
    a.I(f"s_branch {P}E_loop")
    a.L(P+"E_ok")
    for th in range(2):
        for p in range(6):
            x=48+6*th+p; d=ACC+th*12+2*p
            a.I(f"""v_lshlrev_b32 v10, 16, v{x}
            v_and_b32 v11, 0xffff0000, v{x}
            v_pk_add_f32 v[10:11], v[10:11], v[{d}:{d+1}]
            v_cvt_pk_bf16_f32 v{x}, v10, v11""")
    def stores(f):
        for th in range(2):
            a.I(f"""buffer_store_dwordx4 v[{48+6*th}:{51+6*th}], v7, s[80:83], s{10+th} offen {f}
            buffer_store_dwordx2 v[{52+6*th}:{53+6*th}], v7, s[80:83], s{10+th} offen offset:16 {f}""")
    a.I(f"""v_xor_b32 v12, 36864, v12
    s_cmp_eq_u32 s95, 0
    s_cbranch_scc1 {P}E_s0""")
    stores("")
    a.I(f"s_barrier\ns_branch {P}E_n")
    a.L(P+"E_s0")
    stores("sc1")
    a.I(f"""s_lshl_b32 s6, s3, 4
    s_lshl_b32 s9, s43, 2
    s_add_u32 s6, s6, s9
    s_add_u32 s6, s6, {LOFF+FLAGS+EFLAG}""")
    post2(a,6,10)
    a.L(P+"E_n")
    if RT:
        a.I(f"s_cmp_lg_u32 s3, s40\ns_cbranch_scc1 {P}E_n2"); rt(a,11,8); a.L(P+"E_n2")
    rt(a,12,8)
    a.I(f"""s_add_u32 s3, s3, s42
    s_cmp_lt_u32 s3, 64
    s_cbranch_scc1 {P}E_loop
    s_cmp_eq_u32 s95, 1
    s_cbranch_scc1 {P}end""")
    next_layer(a)
    a.I(f"""s_add_u32 s3, s40, {NFIN}
    s_mov_b32 s42, {NE+ND}
    s_branch {P}E_layer""")

def block_l5(a, P):
    name=P+"L5"; E=name+"_end"
    ACC=64; PRE=128; PIM=144; PNG=160; TW=176; W=0; T=40
    C32=0; S32=8; NS32=16; C64=24; S64=56
    a.L(name)
    lane(a,0)
    a.I(f"""s_lshl_b32 s2, s40, 2
    s_add_u32 s2, s2, s5
    s_waitcnt vmcnt(0) lgkmcnt(0)
    s_barrier
    s_cmp_ge_u32 s40, 73
    s_cbranch_scc1 {E}2
    s_mov_b32 s3, s2
    s_min_u32 s2, s2, 288
    s_lshl_b32 s10, s5, 13
    v_lshlrev_b32 v32, 4, v0
    v_lshrrev_b32 v33, 5, v0
    v_bfe_u32 v34, v0, 2, 2
    v_lshl_add_u32 v33, v33, 2, v34
    v_lshlrev_b32 v33, 8, v33
    v_and_b32 v34, 1, v0
    v_lshl_add_u32 v33, v34, 7, v33
    v_bfe_u32 v34, v0, 4, 1
    v_lshl_add_u32 v33, v34, 4, v33
    v_bfe_u32 v34, v0, 1, 1
    v_lshl_add_u32 v33, v34, 3, v33
    s_mov_b32 s14, -1
    s_cmp_eq_u32 s2, 0
    s_cselect_b32 s6, 1, 0
    s_cselect_b32 s14, 0x0f0f0f0f, s14
    s_cmp_eq_u32 s2, 288
    s_cselect_b32 s6, 1, s6
    s_cselect_b32 s14, 0xf0f0f0f0, s14
    s_cselect_b32 s12, 0, s2
    s_cselect_b32 s13, 64, 0
    s_mov_b32 s15, s14
    s_lshl_b32 s12, s12, 13
    s_add_u32 s11, s10, s13
    v_add_u32 v33, s11, v33
    v_and_b32 v35, 31, v0
    v_lshlrev_b32 v35, 8, v35
    v_lshrrev_b32 v34, 5, v0
    v_lshl_add_u32 v35, v34, 7, v35
    v_and_b32 v34, 7, v0
    v_lshl_add_u32 v35, v34, 4, v35
    v_xor_b32 v35, s13, v35
    v_add_u32 v35, s10, v35
    v_lshrrev_b32 v34, 4, v0
    v_lshlrev_b32 v34, 4, v34
    v_xor_b32 v36, v32, v34
    v_add_u32 v36, s10, v36
    v_xor_b32 v37, 64, v36""")
    wait_dbg(a,DB_TAB2,NOTH,38)
    a.I(f"s_mov_b32 s8, {CST}")
    for f in range(22):
        a.I(f"buffer_load_dwordx4 a[{4*f}:{4*f+3}], v32, s[84:87], s8 offen offset:{(f&3)*1024} sc1")
        if f&3==3: a.I("s_add_u32 s8, s8, 4096")
    a.I(f"s_mov_b32 s8, {TW1}")
    for u in range(16):
        a.I(f"buffer_load_dwordx4 v[{TW+4*u}:{TW+4*u+3}], v32, s[84:87], s8 offen offset:{(u&3)*1024} sc1")
        if u&3==3: a.I("s_add_u32 s8, s8, 4096")
    for u in range(16):
        a.I(f"buffer_load_dwordx4 a[{96+4*u}:{99+4*u}], v32, s[84:87], s8 offen offset:{(u&3)*1024} sc1")
        if u&3==3: a.I("s_add_u32 s8, s8, 4096")
    a.I(f"""s_lshl_b32 s8, s2, 13
    s_add_u32 s8, s8, {WFI}""")
    for q in range(8):
        a.I(f"buffer_load_dwordx4 v[{W+4*q}:{W+4*q+3}], v32, s[84:87], s8 offen offset:{(q&3)*1024} sc1")
        if q==3: a.I("s_add_u32 s8, s8, 4096")
    rt(a,6,38)
    a.I(f"s_mov_b32 s7, {FLAGS+DFLAG}")
    wait_flags(a,7,3*ND,38,32,sleep=1)
    rt(a,7,38)
    a.I(f"""s_waitcnt vmcnt(0)
    s_cmp_ge_u32 s3, 289
    s_cbranch_scc1 {E}2
    s_mov_b32 s11, 0""")
    a.L(name+"_ld")
    a.I(f"""s_add_u32 s7, s12, {ZF}
    s_mov_b32 m0, s10
    s_nop 0""")
    for j in range(4): a.I(f"buffer_load_dwordx4 v32, s[20:23], s7 offen offset:{1024*j} sc1 lds")
    a.I(f"""s_add_u32 s7, s7, 4096
    s_add_u32 m0, s10, 4096
    s_nop 0""")
    for j in range(4): a.I(f"buffer_load_dwordx4 v32, s[20:23], s7 offen offset:{1024*j} sc1 lds")
    a.I("s_waitcnt vmcnt(0)")
    XA_=128
    for pl in range(2):
        for th in range(2):
            for kp in range(2):
                r=XA_+((pl*2+th)*2+kp)*4
                for rho in range(2):
                    a.I(f"ds_read_b64_tr_b16 v[{r+2*rho}:{r+2*rho+1}], v33 offset:{pl*64+kp*4096+rho*2048+th*32}")
    a.I(f"""s_waitcnt lgkmcnt(0)
    s_cmp_eq_u32 s6, 0
    s_cbranch_scc1 {name}_c""")
    for i in range(16): a.I(f"v_mov_b32 v{XA_+16+i}, 0")
    a.I("s_nop 1")
    a.L(name+"_c")
    def mm(d, A, B, first):
        c="0" if first else f"v[{d}:{d+15}]"
        a.I(f"v_mfma_f32_32x32x16_bf16 v[{d}:{d+15}], {A}, {B}, {c}")
    RE=lambda t: ACC+16*t
    IM=lambda t: ACC+32+16*t
    xa=lambda pl,th,kp: vr(XA_+((pl*2+th)*2+kp)*4,4)
    for th in range(2):
        for kp in range(2):
            mm(RE(th), xa(0,th,kp), ar(C32+4*kp,4), kp==0)
            mm(IM(th), xa(1,th,kp), ar(C32+4*kp,4), kp==0)
        for kp in range(2):
            mm(RE(th), xa(1,th,kp), ar(S32+4*kp,4), False)
            mm(IM(th), xa(0,th,kp), ar(NS32+4*kp,4), False)
    def cmul(re, im, c, s, sign, i, outs):
        t=T+4*(i&1)
        n1="" if sign>0 else " neg_lo:[1,0,0] neg_hi:[1,0,0]"
        n2=" neg_lo:[1,0,0] neg_hi:[1,0,0]" if sign>0 else ""
        a.I(f"""v_pk_mul_f32 v[{t}:{t+1}], v[{re}:{re+1}], v[{c}:{c+1}]
        v_pk_mul_f32 v[{t+2}:{t+3}], v[{im}:{im+1}], v[{c}:{c+1}]
        v_pk_fma_f32 v[{t}:{t+1}], v[{im}:{im+1}], v[{s}:{s+1}], v[{t}:{t+1}]{n1}
        v_pk_fma_f32 v[{t+2}:{t+3}], v[{re}:{re+1}], v[{s}:{s+1}], v[{t+2}:{t+3}]{n2}""")
        for dst,which,neg in outs:
            b=t+2*which; m="-" if neg else ""
            a.I(f"v_cvt_pk_bf16_f32 v{dst}, {m}v{b}, {m}v{b+1}")
    for th in range(2):
        for p in range(8):
            u=8*th+p
            cmul(RE(th)+2*p, IM(th)+2*p, TW+4*u, TW+4*u+2, +1, u, [(PRE+u,0,False),(PIM+u,1,False),(PNG+u,0,True)])
    for ph in range(2):
        for ks in range(4):
            mm(RE(ph), ar(C64+(ph*4+ks)*4,4), vr(PRE+4*ks,4), ks==0)
            mm(IM(ph), ar(C64+(ph*4+ks)*4,4), vr(PIM+4*ks,4), ks==0)
        if ph==0:
            a.I(f"""v_cmp_u_f32 vcc, v{RE(0)}, v{RE(0)}
            s_cbranch_vccz {name}_ok
            s_cmp_eq_u32 s11, 1
            s_cbranch_scc1 {name}_ok
            s_mov_b32 s11, 1
            s_mov_b32 s7, {FLAGS+DFLAG}""")
            wait_flags(a,7,3*ND,38,32,minv=2,wg=False)
            a.I(f"s_branch {name}_ld")
            a.L(name+"_ok")
        for ks in range(4):
            mm(RE(ph), ar(S64+(ph*4+ks)*4,4), vr(PIM+4*ks,4), False)
            for i in range(4): a.I(f"v_accvgpr_read_b32 v{TW+(ph*4+ks)*8+i}, a{96+(ph*4+ks)*8+i}")
            mm(IM(ph), ar(S64+(ph*4+ks)*4,4), vr(PNG+4*ks,4), False)
            for i in range(4,8): a.I(f"v_accvgpr_read_b32 v{TW+(ph*4+ks)*8+i}, a{96+(ph*4+ks)*8+i}")
    for ph in range(2):
        for p in range(8):
            u=8*ph+p; w=W+2*u; q=48+4*(u&1)
            a.I(f"""v_lshlrev_b32 v{q}, 16, v{w}
            v_lshlrev_b32 v{q+1}, 16, v{w+1}
            v_and_b32 v{q+2}, 0xffff0000, v{w}
            v_and_b32 v{q+3}, 0xffff0000, v{w+1}""")
            cmul(RE(ph)+2*p, IM(ph)+2*p, q, q+2, -1, u, [(PRE+u,0,False),(PIM+u,1,False),(PNG+u,1,True)])
    for th in range(2):
        for ks in range(4):
            mm(RE(th), vr(PRE+4*ks,4), ar(C64+(th*4+ks)*4,4), ks==0)
            mm(IM(th), vr(PIM+4*ks,4), ar(C64+(th*4+ks)*4,4), ks==0)
        for ks in range(4):
            mm(RE(th), vr(PNG+4*ks,4), ar(S64+(th*4+ks)*4,4), False)
            mm(IM(th), vr(PRE+4*ks,4), ar(S64+(th*4+ks)*4,4), False)
    a.I("s_waitcnt vmcnt(0)")
    for th in range(2):
        for p in range(8):
            u=8*th+p
            cmul(RE(th)+2*p, IM(th)+2*p, TW+4*u, TW+4*u+2, -1, u, [(PRE+u,0,False),(PIM+u,1,False)])
    for th in range(2):
        for rho in range(2):
            mm(RE(th), vr(PRE+8*th+4*rho,4), ar(C32+4*rho,4), rho==0)
            mm(IM(th), vr(PIM+8*th+4*rho,4), ar(C32+4*rho,4), rho==0)
        for rho in range(2):
            mm(RE(th), vr(PIM+8*th+4*rho,4), ar(NS32+4*rho,4), False)
            mm(IM(th), vr(PRE+8*th+4*rho,4), ar(S32+4*rho,4), False)
    a.I(f"s_add_u32 s12, s12, {ZO}")
    for k in range(8):
        for i in range(4): a.I(f"v_cvt_pk_bf16_f32 v{4*k+i}, v{ACC+8*k+2*i}, v{ACC+8*k+2*i+1}")
        a.I(f"v_xor_b32 v38, {16*k}, v35\nds_write_b128 v38, v[{4*k}:{4*k+3}]")
    for k in range(8): a.I(f"ds_read_b128 v[{4*k}:{4*k+3}], v{36+(k&1)} offset:{1024*k}")
    a.I("s_mov_b64 exec, s[14:15]")
    for k in range(8):
        a.I(f"s_waitcnt lgkmcnt({7-k})\nbuffer_store_dwordx4 v[{4*k}:{4*k+3}], v32, s[20:23], s12 offen offset:{1024*(k&3)} sc1")
        if k==3: a.I("s_add_u32 s12, s12, 4096")
    a.I("s_mov_b64 exec, -1")
    a.L(E+"2")
    a.I(f"""s_lshl_b32 s7, s40, 5
    s_add_u32 s7, s7, {FLAGS+FFLAG}""")
    post2(a,7,38)
    a.L(E)
    rt(a,8,38)
    a.I(f"""s_cmp_eq_u32 s95, 1
    s_cbranch_scc1 {P}end""")
    next_layer(a)
    a.I(f"""s_cmp_eq_u32 s41, 0
    s_cbranch_scc1 {P}C
    s_branch {P}L5""")
```

```python
import os
from asmb import *
LOFF=0x6000000
KV=0x0
KVM=KV+0x100000+4096
OBUF=0x4000000; XA=0x5000000; ZF=0x5300000; ZO=0x5600000; FLAGS=0x5900000; XIN=0x5C00000
OFLAG=0x40000; XFLAG=0x80000; EFLAG=0x82000; DFLAG=0x82800; FFLAG=0x83000; FLAGB=0x84000
SH=0xC000000
FIMG=SH; FINV=SH+0x100000; WFI=SH+0x200000
TW1=SH+0x500000; TW2=TW1+0x4000; CST=TW1+0x8000
PART=SH+0x600000; MEMB=SH+0x700000; WOC=SH+0x800000
DBGW=0xF000000
WS_SIZE=0x10000000
XBYTES=2048*576*2
KA=dict(x=0,mem0=8,Wq=16,Wk=24,Wv=32,Wo=40,seg=48,bx=56,wr=64,wi=72,out=80,dbg=88,ws=96)

def kernel_begin(a, name):
    a.raw(f".text\n.globl {name}\n.p2align 8\n.type {name},@function\n{name}:")

def kernel_desc(name, vgpr, sgpr=96, accum=None):
    if accum is None: accum=(vgpr+3)//4*4
    return f""".section .rodata,"a"
.p2align 6
.amdhsa_kernel {name}
  .amdhsa_next_free_vgpr {vgpr}
  .amdhsa_next_free_sgpr {sgpr}
  .amdhsa_accum_offset {accum}
  .amdhsa_group_segment_fixed_size 0
  .amdhsa_kernarg_size 104
  .amdhsa_user_sgpr_count 2
  .amdhsa_user_sgpr_kernarg_segment_ptr 1
  .amdhsa_system_sgpr_workgroup_id_x 1
.end_amdhsa_kernel"""

def srd(a, d, ptr, size):
    a.I(f"""s_mov_b32 s{d}, s{ptr}
    s_and_b32 s{d+1}, s{ptr+1}, 0xffff
    s_mov_b32 s{d+2}, {size}
    s_mov_b32 s{d+3}, 0x00020000""")

def sdiv(a, q, x, d, tmp=None, maxx=1<<16):
    M=-(-(1<<32)//d)
    assert maxx*d <= (1<<32)
    a.I(f"s_mul_hi_u32 s{q}, s{x}, {M}")

DB_OVF=8; DB_INIT=10; DB_TAB=11; DB_TAB2=12; DB_L4=16; DB_L5=32
NB=4; NG=4; ND=3; NE=4; NOTH=48
def spin_tail(a, loop, out, sleep=0):
    import os
    if sleep: a.I(f"s_sleep {min(127,sleep*int(os.environ.get('SLM',1)))}")
    a.I(f"""s_sub_u32 s94, s94, 1
    s_cbranch_scc0 {loop}
    s_mov_b32 s94, 0""")
    if out: a.I(f"s_branch {out}")
def wait_dbg(a, word, target, v, sleep=4, layer=False):
    l=a.lab("wd")
    if layer: a.I(f"s_lshl_b32 s9, s95, 2\ns_add_u32 s9, s9, {4*word}\nv_mov_b32 v{v}, s9")
    else: a.I(f"v_mov_b32 v{v}, {4*word}")
    a.L(l)
    a.I(f"""global_load_dword v{v+1}, v{v}, s[28:29] sc1
    s_waitcnt vmcnt(0)
    v_readfirstlane_b32 s9, v{v+1}
    s_cmp_ge_u32 s9, {target}
    s_cbranch_scc1 {l}d""")
    spin_tail(a,l,None,sleep)
    a.L(l+"d")
def add_dbg(a, word, v, layer=False):
    if layer: a.I(f"s_lshl_b32 s9, s95, 2\ns_add_u32 s9, s9, {4*word}\nv_mov_b32 v{v}, s9")
    else: a.I(f"v_mov_b32 v{v}, {4*word}")
    a.I(f"""v_mov_b32 v{v+1}, 1
    s_mov_b64 exec, 1
    global_atomic_add v{v}, v{v+1}, s[28:29]
    s_mov_b64 exec, -1""")
def wait_flags(a, soff, n, v, vl16, sleep=4, sh=2, pw=1, minv=1, wg=True):
    l=a.lab("wf")
    import os
    sleep=int(os.environ.get("FSL",2))
    if wg: a.I(f"s_cmp_lg_u32 s5, {pw}\ns_cbranch_scc1 {l}d")
    if sh<4: a.I(f"v_lshrrev_b32 v{v}, {4-sh}, v{vl16}")
    else: a.I(f"v_lshlrev_b32 v{v}, {sh-4}, v{vl16}")
    if n>64: a.I(f"v_add_u32 v{v+2}, {64<<sh}, v{v}\nv_min_u32 v{v+2}, {(n-1)<<sh}, v{v+2}")
    else: a.I(f"v_min_u32 v{v}, {(n-1)<<sh}, v{v}")
    a.L(l)
    a.I(f"buffer_load_dword v{v+1}, v{v}, s[20:23], s{soff} offen sc1")
    if n>64: a.I(f"buffer_load_dword v{v+3}, v{v+2}, s[20:23], s{soff} offen sc1")
    a.I("s_waitcnt vmcnt(0)")
    if n>64: a.I(f"v_min_u32 v{v+1}, v{v+1}, v{v+3}")
    a.I(f"""v_cmp_gt_u32 vcc, {minv}, v{v+1}
    s_cbranch_vccz {l}d""")
    spin_tail(a,l,None,sleep)
    a.L(l+"d")
    if wg: a.I("s_barrier")
HINTS=int(os.environ.get("HINTS",1))
def post2(a, soff, v, multi=True):
    l=a.lab("p2")
    if HINTS:
        if multi: a.I(f"s_barrier\ns_cmp_lg_u32 s5, 0\ns_cbranch_scc1 {l}a")
        post_flag(a,soff,v,1)
        a.L(l+"a")
    a.I("s_waitcnt vmcnt(0)")
    if multi: a.I(f"s_barrier\ns_cmp_lg_u32 s5, 0\ns_cbranch_scc1 {l}b")
    post_flag(a,soff,v,2)
    a.L(l+"b")
def post_flag(a, soff, v, val=1):
    a.I(f"""v_mov_b32 v{v}, {val}
    s_mov_b64 exec, 1
    buffer_store_dword v{v}, off, s[20:23], s{soff} sc1
    s_mov_b64 exec, -1""")
def next_layer(a):
    a.I(f"""s_add_u32 s95, s95, 1
    s_add_u32 s20, s20, {LOFF}
    s_addc_u32 s21, s21, 0
    s_mov_b32 s22, {WS_SIZE-LOFF}
    s_add_u32 s24, s20, {XIN}
    s_addc_u32 s25, s21, 0""")
def lane(a, v):
    a.I(f"v_mbcnt_lo_u32_b32 v{v}, -1, 0\nv_mbcnt_hi_u32_b32 v{v}, -1, v{v}")

NC3=int(os.environ.get('NC3',2))
S3=int(os.environ.get('S3',52))
RT=bool(os.environ.get("RT"))
def rt(a, slot, v, lay="s95"):
    if not RT: return
    a.I(f"""s_memrealtime s[98:99]
    s_memtime s[100:101]
    s_lshl_b32 s8, s4, 7
    s_lshl_b32 s9, {lay}, 6
    s_add_u32 s8, s8, s9
    s_add_u32 s8, s8, {DBGW+0x10000+4*slot}
    s_waitcnt lgkmcnt(0)
    v_mov_b32 v{v}, s98
    s_mov_b64 exec, 1
    buffer_store_dword v{v}, off, s[84:87], s8
    s_add_u32 s8, s8, 0x8000
    s_nop 0
    v_mov_b32 v{v}, s100
    buffer_store_dword v{v}, off, s[84:87], s8
    s_mov_b64 exec, -1""")
```

```python
from common import *
from bstage import ln_addr, ln_load, ln_compute, XF_TH, XF_SIZE, XF_KS
import struct
from rawload import *
def f2u(x): return struct.unpack('<I',struct.pack('<f',x))[0]
SCL=f2u(128**-0.5*1.4426950408889634)
LDS_LA=163840
BUDGET=400000
import os
BST=os.environ.get('BST','sc1')
BRB=os.environ.get('BRB','')

class LQ:
    def __init__(self,a): self.a=a; self.q=[]; self.t=[]; self.done=0; self.now=0
    def op(self,text,tag=None):
        self.a.I(text); self.q.append(tag); self.t.append(self.now)
    def idx(self,*tags): return max(max(i for i,t in enumerate(self.q) if t==tag) for tag in tags)
    def needs(self,*tags): return self.idx(*tags)>=self.done
    def wait(self,*tags,age=None):
        idx=self.idx(*tags)
        if idx<self.done: return
        if age is not None:
            while idx+1<len(self.q) and self.now-self.t[idx+1]>=age: idx+=1
        n=len(self.q)-1-idx
        assert n<=15, n
        self.a.I(f"s_waitcnt lgkmcnt({n})"); self.done=idx+1
    def all(self):
        self.a.I("s_waitcnt lgkmcnt(0)"); self.done=len(self.q)

def softmax(a, S1, S2, Sm, T, sC, fill=None):
    f=fill or (lambda k: None)
    a.I(f"""v_max3_f32 v{T}, v{S1}, v{S1+1}, v{S1+2}
    v_pk_add_f32 v[{Sm}:{Sm+1}], v[{Sm}:{Sm+1}], v[{Sm+2}:{Sm+3}]
    v_max3_f32 v{T}, v{T}, v{S1+3}, v{Sm}
    v_max3_f32 v{T+1}, v{S2}, v{S2+1}, v{S2+2}
    v_max3_f32 v{T}, v{T}, v{Sm+1}, v{S2+3}
    v_max_f32 v{T}, v{T}, v{T+1}
    v_mov_b32 v{T+1}, v{T}""")
    a.I(f"v_mov_b32 v{Sm+2}, 0\nv_mov_b32 v{Sm+3}, 0")
    f(0)
    a.I(f"""v_permlane16_swap_b32 v{T}, v{T+1}
    v_max_f32 v{T}, v{T}, v{T+1}
    v_mov_b32 v{T+1}, v{T}""")
    f(1)
    a.I(f"""v_permlane32_swap_b32 v{T}, v{T+1}
    v_max_f32 v{T}, v{T}, v{T+1}
    v_mul_f32 v{T}, s{sC}, v{T}""")
    regs=[S1,S1+1,S1+2,S1+3,S2,S2+1,S2+2,S2+3,Sm,Sm+1]
    for r in regs: a.I(f"v_fma_f32 v{r}, v{r}, s{sC}, -v{T}")
    for r in regs: a.I(f"v_exp_f32 v{r}, v{r}")
    a.I(f"""v_cvt_pk_bf16_f32 v{S1}, v{S1}, v{S1+1}
    v_cvt_pk_bf16_f32 v{S1+1}, v{S1+2}, v{S1+3}
    v_cvt_pk_bf16_f32 v{S1+2}, v{S2}, v{S2+1}
    v_cvt_pk_bf16_f32 v{S1+3}, v{S2+2}, v{S2+3}
    v_cvt_pk_bf16_f32 v{Sm}, v{Sm}, v{Sm+1}
    v_mov_b32 v{Sm+1}, 0""")

def pv(a, Px, Pm, VF, VM, ONES, O0, O1, SUM, OUT):
    a.I(f"""v_mfma_f32_16x16x32_bf16 v[{SUM}:{SUM+3}], v[{ONES}:{ONES+3}], v[{Px}:{Px+3}], 0
    v_mfma_f32_16x16x32_bf16 v[{SUM}:{SUM+3}], v[{ONES}:{ONES+3}], v[{Pm}:{Pm+3}], v[{SUM}:{SUM+3}]
    v_mfma_f32_16x16x32_bf16 v[{O0}:{O0+3}], v[{VF}:{VF+3}], v[{Px}:{Px+3}], 0
    v_mfma_f32_16x16x32_bf16 v[{O1}:{O1+3}], v[{VF+4}:{VF+7}], v[{Px}:{Px+3}], 0
    v_mfma_f32_16x16x32_bf16 v[{O0}:{O0+3}], v[{VM}:{VM+3}], v[{Pm}:{Pm+3}], v[{O0}:{O0+3}]
    v_mfma_f32_16x16x32_bf16 v[{O1}:{O1+3}], v[{VM+2}:{VM+5}], v[{Pm}:{Pm+3}], v[{O1}:{O1+3}]
    v_rcp_f32 v{SUM}, v{SUM}
    v_rcp_f32 v{SUM+1}, v{SUM+1}
    v_pk_mul_f32 v[{O0}:{O0+1}], v[{O0}:{O0+1}], v[{SUM}:{SUM+1}]
    v_pk_mul_f32 v[{O0+2}:{O0+3}], v[{O0+2}:{O0+3}], v[{SUM}:{SUM+1}]
    v_pk_mul_f32 v[{O1}:{O1+1}], v[{O1}:{O1+1}], v[{SUM}:{SUM+1}]
    v_pk_mul_f32 v[{O1+2}:{O1+3}], v[{O1+2}:{O1+3}], v[{SUM}:{SUM+1}]
    v_cvt_pk_bf16_f32 v{OUT}, v{O0}, v{O0+1}
    v_cvt_pk_bf16_f32 v{OUT+1}, v{O0+2}, v{O0+3}
    v_cvt_pk_bf16_f32 v{OUT+2}, v{O1}, v{O1+1}
    v_cvt_pk_bf16_f32 v{OUT+3}, v{O1+2}, v{O1+3}""")

def stamp(a, P, i, on):
    if on: a.I(f"""s_memtime s[66:67]
    s_waitcnt lgkmcnt(0)
    s_sub_u32 s68, s66, s69
    s_add_u32 s{70+i}, s{70+i}, s68
    s_mov_b32 s69, s66""")

def role_b(a, P):
    flg=FLAGS
    L16=0; GO=1; LO=2; DEL=3; IDX=4
    QS=XF_SIZE+64-(XF_SIZE%64); QS=43008
    BTK=40960
    def wreg(ti,ks):
        f=ks*6+ti
        return ar(4*f,4) if f<64 else vr(80+4*(f-64),4)
    a.L(P+"B")
    a.I(f"""s_sub_u32 s8, s4, 32""")
    sdiv(a,6,8,NB)
    a.I(f"""s_mul_i32 s7, s6, {NB}
    s_sub_u32 s7, s8, s7
    v_mov_b32 v10, s5""")
    ln_addr(a,"v10",0,GO,LO,12)
    a.I(f"""v_and_b32 v10, 15, v0
    v_lshrrev_b32 v11, 2, v10
    v_lshlrev_b32 v11, 3, v11
    v_and_b32 v12, 3, v10
    v_add_u32 v11, v11, v12
    v_lshrrev_b32 v12, 4, v0
    v_lshlrev_b32 v12, 3, v12
    v_sub_u32 v{DEL}, v11, v12
    v_mov_b32 v{IDX}, 0x4444
    v_mov_b32 v11, 0xeeee
    v_and_b32 v12, 2, v0
    v_cmp_eq_u32 vcc, 2, v12
    v_cndmask_b32 v{IDX}, v{IDX}, v11, vcc
    v_lshlrev_b32 v{L16}, 4, v0""")
    def wt(ti,ks):
        f=ks*6+ti
        return ('a',4*f) if f<64 else ('v',80+4*(f-64))
    a.I(f"""v_lshrrev_b32 v20, 6, v{L16}          ; a
    v_bfe_u32 v21, v{L16}, 4, 2            ; piece
    v_lshlrev_b32 v8, 13, v20
    v_lshl_add_u32 v8, v21, 4, v8
    v_and_b32 v22, 3, v20
    v_lshrrev_b32 v23, 8, v{L16}
    v_lshl_add_u32 v22, v23, 3, v22
    v_lshlrev_b32 v22, 6, v22
    v_lshl_add_u32 v22, v21, 4, v22
    s_lshl_b32 s9, s5, 12
    v_add_u32 v9, s9, v22
    v_add_u32 v10, s9, v{L16}
    s_lshl_b32 s30, s6, 8
    s_lshl_b32 s9, s5, 6
    s_add_u32 s30, s30, s9""")
    chunks=[]
    for k in range(9):
        for mat in range(3):
            g=[wt(2*mat+t,2*k+hb) for t in range(2) for hb in range(2)]
            chunks.append(dict(srd=SQ+4*mat, voff=[8]*4, soff=[(30,(64*k+16*i)*8192) for i in range(4)], grp=g,
                rd=[((g[2*t+hb][0],g[2*t+hb][1]+2*rho),9,hb*2048+rho*256+t*8) for t in range(2) for hb in range(2) for rho in range(2)]))
    rawload(a,chunks,10,flags="")
    a.I("s_barrier")
    wait_dbg(a,DB_INIT,NOTH,8)
    a.L(P+"B_layer")
    rt(a,1,8)
    a.I(f"""s_mov_b32 s10, s7            ; s_q
    s_mov_b32 s11, -1                    ; s_a
    s_mov_b32 s12, {QS}
    s_mov_b32 s13, {QS+24576}
    s_mov_b32 s14, {SCL}
    s_waitcnt vmcnt(0)""")
    a.L(P+"B_loop")
    a.I(f"""s_cmp_ge_u32 s10, 64
    s_cbranch_scc1 {P}B_attn""")
    X=8; T=44
    a.I(f"""s_xor_b32 s41, s95, 1
    s_lshl_b32 s40, s10, 4
    s_add_u32 s40, s40, {FLAGS+EFLAG}
    s_cmp_eq_u32 s95, 0
    s_cbranch_scc1 {P}B_x""")
    wait_flags(a,40,3,8,L16)
    a.L(P+"B_x")
    if RT:
        a.I(f"s_cmp_lg_u32 s10, s7\ns_cbranch_scc1 {P}B_x2"); rt(a,2,8); a.L(P+"B_x2")
    a.I(f"s_mul_i32 s15, s10, {32*1152}")
    ln_load(a,X,GO,24,"s15","sc1")
    a.I(f"""s_lshl_b32 s16, s6, 21
    s_lshl_b32 s17, s10, 12
    s_add_u32 s17, s17, s16
    s_lshl_b32 s18, s5, 10
    s_add_u32 s17, s17, s18
    s_add_u32 s17, s17, {KVM}
    v_mov_b32 v44, -1
    v_mov_b32 v45, -1
    v_mov_b32 v46, -1
    v_mov_b32 v47, -1
    buffer_store_dwordx4 v[44:47], v{L16}, s[20:23], s17 offen sc1
    s_lshl_b32 s17, s10, 5
    s_add_u32 s17, s17, s6
    s_lshl_b32 s17, s17, 13
    s_lshl_b32 s19, s5, 11
    s_add_u32 s17, s17, s19
    s_add_u32 s17, s17, {OBUF}
    buffer_store_dwordx4 v[44:47], v{L16}, s[20:23], s17 offen sc1
    buffer_store_dwordx4 v[44:47], v{L16}, s[20:23], s17 offen offset:1024 sc1
    s_waitcnt vmcnt(3)""")
    ln_compute(a,X,T,LO,36,37,lambda: (wait_flags(a,40,3,8,L16,minv=2,wg=False), ln_load(a,X,GO,24,"s15","sc1")),41)
    a.I("s_waitcnt lgkmcnt(0)\ns_barrier")
    ACC=32; FR=8
    def rd(ks):
        for th in range(2):
            r=FR+((ks%3)*2+th)*4
            a.I(f"ds_read_b128 v[{r}:{r+3}], v7 offset:{th*XF_TH+ks*XF_KS}")
    acc=lambda ti,th: ACC+(ti*2+th)*4
    def gemm(tis):
        rd(0); rd(1)
        for ks in range(18):
            if ks+2<18: rd(ks+2)
            a.I(f"s_waitcnt lgkmcnt({min(2,17-ks)*2})")
            for ti in tis:
                for th in range(2):
                    d=acc(ti,th); r=vr(FR+((ks%3)*2+th)*4,4)
                    c="0" if ks==0 else vr(d,4)
                    if ti<4: a.I(f"v_mfma_f32_16x16x32_bf16 {vr(d,4)}, {wreg(ti,ks)}, {r}, {c}")
                    else:    a.I(f"v_mfma_f32_16x16x32_bf16 {vr(d,4)}, {r}, {wreg(ti,ks)}, {c}")
    a.I(f"""s_lshl_b32 s17, s10, 14
    s_add_u32 s17, s17, s16
    s_add_u32 s17, s17, {KV}
    s_add_u32 s18, s18, s17              ; + w*1024  (K)
    s_lshl_b32 s19, s5, 11
    s_add_u32 s19, s19, s17
    s_add_u32 s19, s19, 8192             ; V + w*2048
    s_lshl_b32 s38, s5, 10
    s_add_u32 s38, s38, s12
    v_add_u32 v5, s38, v{L16}
    s_lshl_b32 s38, s5, 11
    s_add_u32 s38, s38, s12
    v_add_u32 v6, s38, v{L16}
    s_add_u32 s39, s18, 4096
    v_lshrrev_b32 v7, 8, v{L16}
    v_lshl_add_u32 v7, v7, 4, v{L16}""")
    gemm((2,3,4,5))
    def qk(m,ob):
        for th in range(2):
            o=ob+th*4; d0=acc(2*m,th); d1=acc(2*m+1,th)
            a.I(f"""v_cvt_pk_bf16_f32 v{o}, v{d0}, v{d0+1}
            v_cvt_pk_bf16_f32 v{o+1}, v{d1}, v{d1+1}
            v_cvt_pk_bf16_f32 v{o+2}, v{d0+2}, v{d0+3}
            v_cvt_pk_bf16_f32 v{o+3}, v{d1+2}, v{d1+3}""")
            if m==1: a.I(f"buffer_store_dwordx4 v[{o}:{o+3}], v{L16}, s[20:23], s{18 if th==0 else 39} offen sc1")
            a.I(f"ds_write_b128 v5, v[{o}:{o+3}] offset:{m*8192+th*4096}")
    qk(1,32)
    for tau in range(2):
        o=40+tau*4; d0=acc(4+tau,0); d1=acc(4+tau,1)
        a.I(f"""v_cvt_pk_bf16_f32 v{o}, v{d0}, v{d0+1}
        v_cvt_pk_bf16_f32 v{o+1}, v{d0+2}, v{d0+3}
        v_cvt_pk_bf16_f32 v{o+2}, v{d1}, v{d1+1}
        v_cvt_pk_bf16_f32 v{o+3}, v{d1+2}, v{d1+3}
        buffer_store_dwordx4 v[{o}:{o+3}], v{L16}, s[20:23], s19 offen offset:{tau*1024} sc1
        ds_write_b128 v6, v[{o}:{o+3}] offset:{16384+tau*1024}""")
    a.I("s_waitcnt lgkmcnt(0)")
    gemm((0,1))
    a.I(f"""s_waitcnt vmcnt(0)
    s_barrier
    s_cmp_lg_u32 s5, 0
    s_cbranch_scc1 {P}B_q
    s_lshl_b32 s17, s6, 6
    s_add_u32 s17, s17, s10
    s_lshl_b32 s17, s17, 7
    s_add_u32 s17, s17, {flg}""")
    post_flag(a,17,8)
    a.L(P+"B_q")
    a.I("s_nop 3")
    qk(0,8)
    a.I("s_waitcnt lgkmcnt(0)\ns_barrier")
    a.L(P+"B_attn")
    if RT:
        a.I(f"s_cmp_lg_u32 s10, s7\ns_cbranch_scc1 {P}B_a2"); rt(a,3,8); a.L(P+"B_a2")
    a.I(f"""s_cmp_lt_i32 s11, 0
    s_cbranch_scc1 {P}B_next
    s_lshl_b32 s16, s11, 5
    s_add_u32 s16, s16, s6
    s_lshl_b32 s17, s6, 21
    s_lshl_b32 s18, s11, 12
    s_add_u32 s17, s17, s18
    s_add_u32 s17, s17, {KVM}
    s_lshl_b32 s18, s5, 10
    s_add_u32 s18, s18, s17
    v_add_u32 v6, s13, v{L16}
    s_lshl_b32 s38, s5, 11
    v_add_u32 v7, s38, v6""")
    KM=8; VM=16; VF=20; QF=28; KF=44; S1=60; S2=64; Sm=68; ON=72; T=78; O0=44; O1=48
    a.I(f"""ds_read_b128 v[{VF}:{VF+3}], v7 offset:16384
    ds_read_b128 v[{VF+4}:{VF+7}], v7 offset:17408""")
    for i in range(4): a.I(f"v_mov_b32 v{ON+i}, 0x3f803f80")
    a.I(f"""s_lshl_b32 s38, s5, 9
    v_lshrrev_b32 v5, 1, v{L16}
    v_add_u32 v5, s38, v5""")
    a.L(P+"B_poll")
    a.I(f"""buffer_load_dwordx4 v[{KM}:{KM+3}], v{L16}, s[20:23], s18 offen sc1
    s_waitcnt vmcnt(0)
    v_max3_u32 v{T}, v{KM}, v{KM+1}, v{KM+2}
    v_max_u32 v{T}, v{T}, v{KM+3}
    v_cmp_eq_u32 vcc, -1, v{T}
    s_cbranch_vccz {P}B_go""")
    spin_tail(a,P+"B_poll",None,sleep=2)
    a.L(P+"B_go")
    rt(a,4,77)
    a.I(f"""ds_write_b64 v5, v[{KM}:{KM+1}] offset:{BTK}
    v_mov_b64 v[{VM}:{VM+1}], v[{KM+2}:{KM+3}]
    v_and_b32 v{T}, 0x200, v{L16}
    v_bfe_u32 v{T+1}, v{L16}, 8, 1
    v_lshl_add_u32 v{T}, v{T+1}, 6, v{T}
    v_bfe_u32 v{T+1}, v{L16}, 6, 2
    v_lshl_add_u32 v{T}, v{T+1}, 3, v{T}
    v_bfe_u32 v{T+1}, v{L16}, 4, 2
    v_lshl_add_u32 v{T}, v{T+1}, 7, v{T}
    s_waitcnt lgkmcnt(0)
    s_barrier""")
    for sg_ in range(2):
        for rho in range(2):
            a.I(f"ds_read_b64_tr_b16 v[{KM+4*sg_+2*rho}:{KM+4*sg_+2*rho+1}], v{T} offset:{BTK+sg_*1024+rho*32}")
    a.I(f"""s_lshl_b32 s17, s16, 13
    s_lshl_b32 s18, s5, 11
    s_add_u32 s17, s17, s18
    s_add_u32 s17, s17, {OBUF}
    v_mov_b32 v76, 0xff800000
    v_mov_b32 v{VM+2}, v{VM+1}
    v_mov_b32 v{VM+3}, 0""")
    for tq in range(2):
        for ks in range(4): a.I(f"ds_read_b128 v[{QF+4*ks}:{QF+4*ks+3}], v6 offset:{tq*4096+ks*1024}")
        for i in range(4): a.I(f"v_mov_b32 v{Sm+i}, 0")
        for tk in range(2):
            S=(S1,S2)[tk]
            for ks in range(4): a.I(f"ds_read_b128 v[{KF+4*ks}:{KF+4*ks+3}], v6 offset:{8192+tk*4096+ks*1024}")
            a.I("s_waitcnt lgkmcnt(0)")
            for ks in range(4):
                c="0" if ks==0 else vr(S,4)
                a.I(f"v_mfma_f32_16x16x32_bf16 {vr(S,4)}, {vr(KF+4*ks,4)}, {vr(QF+4*ks,4)}, {c}")
            a.I("s_nop 3")
        for sg_ in range(2):
            a.I(f"v_smfmac_f32_16x16x64_bf16 {vr(Sm,4)}, {vr(KM+4*sg_,4)}, {vr(QF+8*sg_,8)}, v{IDX}")
        for tk in range(2):
            S=(S1,S2)[tk]
            for r in range(4):
                a.I(f"""v_cmp_le_i32 vcc, {r+4*(tk-tq)}, v{DEL}
                v_cndmask_b32 v{S+r}, v76, v{S+r}, vcc""")
        softmax(a,S1,S2,Sm,T,14)
        pv(a,S1,Sm,VF,VM,ON,O0,O1,S2,52+4*tq)
        a.I(f"buffer_store_dwordx4 v[{52+4*tq}:{55+4*tq}], v{L16}, s[20:23], s17 offen offset:{tq*1024} sc1")
        if tq==0: a.I("s_nop 1")
    a.I(f"""s_lshl_b32 s17, s16, 7
    s_add_u32 s17, s17, {flg+OFLAG}""")
    post2(a,17,8)
    a.L(P+"B_next")
    rt(a,5,8)
    a.I(f"""s_mov_b32 s11, s10
    s_add_u32 s10, s10, {NB}
    s_mov_b32 s38, s12
    s_mov_b32 s12, s13
    s_mov_b32 s13, s38
    s_cmp_lt_u32 s11, 64
    s_cbranch_scc1 {P}B_loop
    s_cmp_eq_u32 s95, 1
    s_cbranch_scc1 {P}Efin""")
    next_layer(a)
    a.I(f"s_branch {P}B_layer")

def role_c(a, P):
    flg=FLAGS+OFLAG; xdst=XA
    L16=0
    def wreg(kl,tau):
        f=kl*3+tau
        return ar(4*f,4) if f<64 else vr(128+4*(f-64),4)
    a.L(P+"C")
    lane(a,0)
    a.I(f"""s_and_b32 s8, s4, 31
    s_cmp_ge_u32 s4, 224
    s_cselect_b32 s9, 8, 0
    s_sub_u32 s8, s8, s9
    s_mov_b32 s39, s8
    s_sub_u32 s9, s4, 160
    s_lshr_b32 s9, s9, 5
    s_cmp_eq_u32 s9, 2
    s_cselect_b32 s6, {S3+2}, s9
    s_mul_i32 s40, s9, 24
    s_add_u32 s40, s40, s8
    s_cmp_ge_u32 s8, 12
    s_cselect_b32 s9, 1, 0
    s_mov_b32 s15, s9                    ; theta
    s_mul_i32 s9, s9, 12
    s_sub_u32 s7, s8, s9                 ; cb
    v_and_b32 v1, 7, v0
    v_lshlrev_b32 v1, 2, v1
    v_and_b32 v10, 15, v0
    v_lshrrev_b32 v11, 2, v10
    v_lshlrev_b32 v11, 3, v11
    v_and_b32 v12, 3, v10
    v_add_u32 v11, v11, v12
    v_mul_u32_u24 v2, 1152, v11
    v_lshrrev_b32 v12, 4, v0
    v_mul_u32_u24 v12, 24, v12
    v_add_u32 v2, v2, v12
    v_lshlrev_b32 v{L16}, 4, v0
    s_mul_i32 s9, s5, 3072
    v_add_u32 v3, s9, v{L16}
    s_mul_i32 s30, s5, {1024*1152}
    s_mul_i32 s9, s7, 96
    s_add_u32 s30, s30, s9
    s_lshl_b32 s9, s5, 12
    v_add_u32 v9, s9, v{L16}
    v_bfe_u32 v20, v{L16}, 6, 2
    v_lshrrev_b32 v21, 8, v{L16}
    v_lshl_add_u32 v20, v21, 3, v20
    v_mul_u32_u24 v20, 96, v20
    v_bfe_u32 v21, v{L16}, 4, 2
    v_mul_u32_u24 v21, 24, v21
    v_add3_u32 v8, v20, v21, s9
    v_lshrrev_b32 v20, 4, v{L16}""")
    for i in range(3):
        a.I(f"""v_add_u32 v21, {64*i}, v20
        v_mul_u32_u24 v22, 171, v21
        v_lshrrev_b32 v22, 10, v22
        v_mul_u32_u24 v23, 6, v22
        v_sub_u32 v23, v21, v23
        v_mul_u32_u24 v22, 1152, v22
        v_lshl_add_u32 v{5+i}, v23, 4, v22""")
    def wt(kl,tau):
        f=kl*3+tau
        return ('a',4*f) if f<64 else ('v',128+4*(f-64))
    chunks=[]
    for kl in range(32):
        g=[wt(kl,t) for t in range(3)]
        chunks.append(dict(srd=SQ+12, voff=[5,6,7], soff=[(30,32*kl*1152)]*3, grp=g,
            rd=[((g[t][0],g[t][1]+2*rho),8,rho*384+t*8) for t in range(3) for rho in range(2)]))
    if os.environ.get("CDEL"): wait_dbg(a,DB_TAB,NOTH,10,sleep=16)
    rawload(a,chunks,9,flags="")
    a.I("s_barrier")
    wait_dbg(a,DB_TAB,NOTH,8)
    rt(a,1,14)
    a.L(P+"C_loop")
    a.I(f"""s_lshl_b32 s10, s6, 5
    s_lshl_b32 s11, s5, 3
    s_add_u32 s10, s10, s11              ; s*32+8w
    s_lshl_b32 s11, s6, 12
    s_add_u32 s11, s11, {flg}
    s_lshl_b32 s12, s10, 13
    s_add_u32 s12, s12, {OBUF}
    s_lshl_b32 s14, s15, 10
    s_add_u32 s12, s12, s14
    s_mul_i32 s13, s6, {32*1152}
    s_mul_i32 s14, s7, 96
    s_add_u32 s13, s13, s14
    s_mul_i32 s14, s15, {4*1152}
    s_add_u32 s13, s13, s14              ; x offset
    """)
    wait_flags(a,11,32,4,L16,sh=7)
    rt(a,4,14)
    a.I("s_mov_b32 s38, 0\ns_mov_b32 s37, s12")
    a.L(P+"C_go")
    ACC=16; FB=28; NR=25
    def ld(f):
        r=FB+4*(f%NR)
        a.I(f"buffer_load_dwordx4 v[{r}:{r+3}], v{L16}, s[20:23], s12 offen offset:{(f&1)*2048} sc1")
        if f&1==1: a.I("s_add_u32 s12, s12, 4096")
    for f in range(NR): ld(f)
    for kl in range(32):
        issued=min(32,NR+kl)+(2 if kl>7 else 0)
        a.I(f"s_waitcnt vmcnt({issued-kl-1})")
        r=FB+4*(kl%NR)
        for tau in range(3):
            d=ACC+tau*4
            c="0" if kl==0 else vr(d,4)
            a.I(f"v_mfma_f32_16x16x32_bf16 {vr(d,4)}, {wreg(kl,tau)}, {vr(r,4)}, {c}")
        if NR+kl<32: ld(NR+kl)
        if kl==7:
            a.I("""buffer_load_dwordx4 v[8:11], v2, s[24:27], s13 offen sc1
            buffer_load_dwordx2 v[12:13], v2, s[24:27], s13 offen offset:16 sc1""")
    a.I(f"""v_cmp_u_f32 vcc, v{ACC}, v{ACC}
    s_cbranch_vccz {P}C_ok
    s_cmp_eq_u32 s38, 1
    s_cbranch_scc1 {P}C_ok
    s_mov_b32 s38, 1
    s_mov_b32 s12, s37""")
    wait_flags(a,11,32,4,L16,sh=7,minv=2,wg=False)
    a.I(f"s_branch {P}C_go")
    a.L(P+"C_ok")
    a.I("s_nop 3")
    for i in range(3): a.I(f"ds_write_b128 v3, {vr(ACC+4*i,4)} offset:{1024*i}")
    a.I(f"""s_waitcnt vmcnt(0) lgkmcnt(0)
    s_barrier
    s_cmp_lg_u32 s5, 0
    s_cbranch_scc1 {P}C_next""")
    for w in range(1,4):
        for tau in range(3):
            a.I(f"ds_read_b128 {vr(ACC+(w*3+tau)*4,4)}, v{L16} offset:{w*3072+tau*1024}")
    a.I("s_waitcnt lgkmcnt(0)\ns_barrier")
    for p in range(6):
        x=8+p; d=ACC+2*p
        a.I(f"""v_pk_add_f32 v[{d}:{d+1}], v[{d}:{d+1}], v[{d+12}:{d+13}]
        v_pk_add_f32 v[{d+24}:{d+25}], v[{d+24}:{d+25}], v[{d+36}:{d+37}]
        v_lshlrev_b32 v14, 16, v{x}
        v_and_b32 v15, 0xffff0000, v{x}
        v_pk_add_f32 v[{d}:{d+1}], v[{d}:{d+1}], v[{d+24}:{d+25}]
        v_pk_add_f32 v[14:15], v[14:15], v[{d}:{d+1}]
        v_cvt_pk_bf16_f32 v{x}, v14, v15""")
    a.I(f"""s_add_u32 s13, s13, {xdst}
    buffer_store_dwordx4 v[8:11], v2, s[20:23], s13 offen sc1
    buffer_store_dwordx2 v[12:13], v2, s[20:23], s13 offen offset:16 sc1
    s_lshl_b32 s11, s6, 7
    s_lshl_b32 s12, s39, 2
    s_add_u32 s11, s11, s12
    s_add_u32 s11, s11, {FLAGS+XFLAG}""")
    post2(a,11,14,multi=False)
    rt(a,5,14)
    a.I(f"s_branch {P}C_nf")
    a.L(P+"C_next")
    a.I("s_barrier")
    a.L(P+"C_nf")
    a.I(f"""s_cmp_ge_u32 s6, {S3}
    s_addc_u32 s6, s6, 2
    s_cmp_lt_u32 s6, 64
    s_cbranch_scc1 {P}C_loop
    s_mov_b32 s41, 0
    s_branch {P}L5""")
```

```python
from common import *
N5=640; N4=1296; N6=56
B5=0; B4=B5+N5; B6=B4+N4; NT=B6+N6

def others(a, P):
    a.L(P+"O")
    a.I(f"""s_lshl_b32 s45, s44, 2
    s_add_u32 s45, s45, s5               ; ow 0..191
    v_lshrrev_b32 v1, 4, v0
    v_and_b32 v2, 15, v0
    v_lshlrev_b32 v3, 4, v0
    v_mov_b32 v4, 0
    v_mov_b32 v5, 0
    v_mov_b32 v6, 0
    v_mov_b32 v7, 0
    v_mov_b32 v8, -1
    v_mov_b32 v9, -1
    v_mov_b32 v10, -1
    v_mov_b32 v11, -1""")
    def fill(base,n,reg):
        l=a.lab("fl")
        a.I("s_mov_b32 s3, s45")
        a.L(l)
        a.I(f"""s_cmp_ge_u32 s3, {n}
        s_cbranch_scc1 {l}d
        s_lshl_b32 s6, s3, 10
        s_add_u32 s6, s6, {base}
        buffer_store_dwordx4 v[{reg}:{reg+3}], v3, s[20:23], s6 offen sc1
        s_add_u32 s3, s3, 192
        s_branch {l}""")
        a.L(l+"d")
    fill(FLAGS,FLAGB//1024,4); fill(PART,288,8); fill(MEMB,36,8); fill(MEMB+0x10000,2,4); fill(LOFF+FLAGS,FLAGB//1024,4)
    a.I(f"""s_cmp_lg_u32 s45, 100
    s_cbranch_scc1 {P}O_nm
    s_load_dwordx2 s[8:9], s[0:1], {KA['mem0']}
    v_lshrrev_b32 v12, 2, v2
    v_lshlrev_b32 v12, 1, v12
    v_and_b32 v13, 1, v0
    v_add_u32 v12, v12, v13
    v_mul_u32_u24 v17, 1152, v12
    v_bfe_u32 v12, v0, 1, 1
    v_lshl_add_u32 v18, v12, 6, v17
    v_lshl_add_u32 v18, v1, 3, v18
    v_lshl_add_u32 v17, v1, 5, v17
    v_lshl_add_u32 v17, v12, 2, v17
    s_mov_b32 s30, 0x05040100
    s_mov_b32 s31, 0x07060302
    s_waitcnt lgkmcnt(0)""")
    srd(a,80,8,9216)
    for k in range(8):
        a.I(f"""buffer_load_dwordx2 v[{24+4*k}:{25+4*k}], v18, s[80:83], 0 offen offset:{128*k}
        buffer_load_dwordx2 v[{26+4*k}:{27+4*k}], v18, s[80:83], 0 offen offset:{128*k+32}""")
    for j in range(4): a.I(f"buffer_load_dword v{56+j}, v17, s[80:83], 0 offen offset:{1024+8*j}")
    a.I(f"s_mov_b32 s9, {MEMB+4*9216}\ns_waitcnt vmcnt(0)")
    for k in range(8):
        b=24+4*k
        a.I(f"""v_perm_b32 v60, v{b+2}, v{b}, s30
        v_perm_b32 v61, v{b+2}, v{b}, s31
        v_perm_b32 v62, v{b+3}, v{b+1}, s30
        v_perm_b32 v63, v{b+3}, v{b+1}, s31
        buffer_store_dwordx4 v[60:63], v3, s[20:23], s9 offen sc1
        s_add_u32 s9, s9, 1024""")
    a.I(f"buffer_store_dwordx4 v[56:59], v3, s[20:23], s9 offen sc1")
    a.L(P+"O_nm")
    a.I(f"""s_load_dwordx4 s[12:15], s[0:1], {KA['wr']}
    s_waitcnt vmcnt(0) lgkmcnt(0)
    s_barrier
    s_cmp_lg_u32 s5, 0
    s_cbranch_scc1 {P}O_t""")
    add_dbg(a,DB_INIT,12)
    a.L(P+"O_t")
    rt(a,1,12)
    srd(a,56,12,2048*578)
    srd(a,80,14,2048*578)
    fill(XA,2304,8); fill(ZF,2304,8)
    a.I(f"s_sub_u32 s46, s45, 192")
    a.L("P_end")
    a.I(f"""s_mov_b64 exec, -1
    s_add_u32 s46, s46, 192
    s_mov_b32 s3, s46
    s_cmp_lt_u32 s3, {B4}
    s_cbranch_scc1 P_T5
    s_cmp_lt_u32 s3, {B6}
    s_cbranch_scc1 P_T4
    s_cmp_lt_u32 s3, {NT}
    s_cbranch_scc1 P_T6
    s_waitcnt vmcnt(0)
    s_barrier
    s_cmp_lg_u32 s5, 0
    s_cbranch_scc1 {P}O_c""")
    add_dbg(a,DB_TAB,12)
    a.L(P+"O_c")
    a.I("v_lshlrev_b32 v3, 4, v0\nv_mov_b32 v8, -1\nv_mov_b32 v9, -1\nv_mov_b32 v10, -1\nv_mov_b32 v11, -1")
    for b in (ZO,LOFF+XIN,LOFF+XA,LOFF+ZF,LOFF+ZO): fill(b,2304,8)
    a.I(f"""s_waitcnt vmcnt(0)
    s_barrier
    s_cmp_lg_u32 s5, 0
    s_cbranch_scc1 {P}O_d""")
    add_dbg(a,DB_TAB2,12)
    a.L(P+"O_d")
    rt(a,2,12)
    a.I(f"""s_cmp_lt_u32 s44, {3*ND}
    s_cbranch_scc1 {P}D
    s_cmp_lt_u32 s44, {3*ND+3*NE}
    s_cbranch_scc1 {P}E
    s_cmp_ge_u32 s44, {24 if NC3 else 99}
    s_cbranch_scc1 {P}C
    s_add_u32 s40, s44, {(72 if NC3 else 48)-3*ND-3*NE}
    s_mov_b32 s41, 1
    s_branch {P}L5""")
    a.L("P_T4")
    a.I(f"""s_sub_u32 s3, s3, {B4}
    s_cmp_ge_u32 s3, 648
    s_cselect_b32 s38, 1, 0          ; inv?
    s_cselect_b32 s39, 648, 0
    s_sub_u32 s3, s3, s39            ; f""")
    sdiv(a,32,3,18)
    a.I(f"""s_mul_i32 s33, s32, 18
    s_sub_u32 s33, s3, s33           ; ks
    s_lshl_b32 s34, s33, 5
    v_lshl_add_u32 v3, v1, 3, s34
    s_mov_b32 s40, {-(-(1<<32)//576)}
    s_mov_b32 s41, 0x3ae38e39        ; 1/576
    s_cmp_eq_u32 s38, 1
    s_cbranch_scc1 P_T4i
    s_lshl_b32 s34, s32, 4
    v_add_u32 v4, s34, v2            ; c (fixed)""")
    def elem(dst, d, c, wgt):
        a.I(f"""v_cmp_eq_u32 vcc, 1, v{c}
        v_lshrrev_b32 v30, 1, v{c}
        v_and_b32 v31, 1, v{c}
        v_mul_u32_u24 v31, 144, v31
        v_mov_b32 v32, 288
        v_cndmask_b32 v30, v30, v32, vcc
        v_cndmask_b32 v31, v31, 0, vcc
        v_mad_u32_u24 v30, v30, v{d}, v31
        v_mul_hi_u32 v31, v30, s40
        v_mul_u32_u24 v31, 576, v31
        v_sub_u32 v30, v30, v31
        v_cvt_f32_u32 v30, v30
        v_mul_f32 v30, s41, v30
        v_cos_f32 v{dst}, v30""")
        if wgt:
            a.I(f"""v_cmp_gt_u32 vcc, 2, v{c}
            v_add_f32 v31, v{dst}, v{dst}
            v_cndmask_b32 v{dst}, v31, v{dst}, vcc""")
    for t in range(8):
        a.I(f"v_add_u32 v5, {t}, v3")
        elem(8+t,5,4,False)
    a.I(f"s_mov_b32 s35, {FIMG}\ns_branch P_T4s")
    a.L("P_T4i")
    sdiv(a,36,32,3)
    a.I(f"""s_mul_i32 s37, s36, 3
    s_sub_u32 s37, s32, s37          ; tau
    s_mul_i32 s36, s36, 48
    s_lshl_b32 s37, s37, 2
    s_add_u32 s36, s36, s37
    v_lshrrev_b32 v4, 2, v2
    v_mul_u32_u24 v4, 12, v4
    v_and_b32 v5, 3, v2
    v_add3_u32 v4, v4, v5, s36       ; d (fixed)
    v_mov_b32 v34, 288""")
    for t in range(8):
        a.I(f"v_add_u32 v5, {t}, v3")
        elem(8+t,4,5,True)
    a.I(f"s_mov_b32 s35, {FINV}")
    a.L("P_T4s")
    a.I("s_nop 1")
    for p in range(4):
        a.I(f"v_cvt_pk_bf16_f32 v{20+p}, v{8+2*p}, v{9+2*p}")
    a.I("""s_lshl_b32 s3, s3, 10
    s_add_u32 s35, s35, s3
    v_lshlrev_b32 v4, 4, v0
    buffer_store_dwordx4 v[20:23], v4, s[20:23], s35 offen sc1
    s_branch P_end""")
    a.L("P_T5")
    a.I(f"""s_lshr_b32 s32, s3, 7        ; kg
    s_lshr_b32 s33, s3, 6
    s_and_b32 s33, s33, 1          ; hf
    s_lshr_b32 s34, s3, 3
    s_and_b32 s34, s34, 7          ; q
    s_and_b32 s35, s3, 7
    s_lshl_b32 s36, s32, 6
    v_add_u32 v3, s36, v0          ; kd
    v_lshlrev_b32 v4, 1, v3
    s_lshl_b32 s36, s33, 5
    s_lshl_b32 s37, s34, 2
    s_add_u32 s36, s36, s37
    s_lshl_b32 s36, s36, 5         ; 32*(32hf+4q)
    s_lshl_b32 s37, s35, 2
    s_add_u32 s36, s36, s37        ; ks0
    s_mul_i32 s36, s36, 578""")
    for i in range(4):
        for k in range(4):
            a.I(f"""buffer_load_ushort v{8+4*k+i}, v4, s[56:59], s36 offen offset:{578*k}
            buffer_load_ushort v{24+4*k+i}, v4, s[80:83], s36 offen offset:{578*k}""")
        if i<3: a.I(f"s_add_u32 s36, s36, {32*578}")
    a.I(f"""v_lshlrev_b32 v5, 13, v3
    s_lshl_b32 s36, s34, 10
    s_lshl_b32 s37, s33, 9
    s_add_u32 s36, s36, s37
    s_lshl_b32 s37, s35, 6
    s_add_u32 s36, s36, s37
    s_add_u32 s36, s36, {WFI}
    v_cmp_gt_u32 vcc, 289, v3
    s_and_saveexec_b64 s[48:49], vcc
    s_waitcnt vmcnt(0)""")
    for r in range(16):
        a.I(f"v_lshl_or_b32 v{8+r}, v{24+r}, 16, v{8+r}")
    for k in range(4):
        a.I(f"buffer_store_dwordx4 v[{8+4*k}:{11+4*k}], v5, s[20:23], s36 offen offset:{16*k} sc1")
    a.I("s_branch P_end")
    a.L("P_T6")
    a.I(f"""s_sub_u32 s3, s3, {B6}
    v_and_b32 v3, 31, v0           ; l&31
    v_lshrrev_b32 v4, 5, v0        ; hf
    v_bfe_u32 v5, v3, 2, 1
    v_lshlrev_b32 v5, 5, v5
    v_lshrrev_b32 v6, 3, v3
    v_lshl_add_u32 v5, v6, 2, v5
    v_and_b32 v6, 3, v3
    v_add_u32 v5, v5, v6
    s_mov_b32 s41, 0x3a000000      ; 1/2048
    v_lshlrev_b32 v7, 4, v0
    s_cmp_ge_u32 s3, 54
    s_cbranch_scc1 P_end
    s_cmp_ge_u32 s3, 32
    s_cbranch_scc1 P_T6c
    s_cmp_ge_u32 s3, 16
    s_cbranch_scc1 P_T6b""")
    def cs(dst, ang, off):
        a.I(f"""v_add_u32 v30, {off}, v{ang}
        v_and_b32 v30, 0x7ff, v30
        v_cvt_f32_u32 v30, v30
        v_mul_f32 v30, s41, v30
        v_cos_f32 v{dst}, v30""")
    a.I("""s_lshl_b32 s32, s3, 1
    v_lshl_add_u32 v8, v4, 5, s32
    v_mul_u32_u24 v9, v8, v3
    v_add_u32 v10, v9, v3""")
    cs(12,9,0); cs(13,10,0); cs(14,9,1536); cs(15,10,1536)
    a.I(f"""s_lshl_b32 s3, s3, 10
    s_add_u32 s3, s3, {TW1}
    s_nop 0
    buffer_store_dwordx4 v[12:15], v7, s[20:23], s3 offen sc1
    s_branch P_end""")
    a.L("P_T6b")
    import struct
    sc=struct.unpack('<I',struct.pack('<f',1.0/(2048*576)))[0]
    a.I(f"""s_sub_u32 s3, s3, 16
    s_lshr_b32 s32, s3, 3
    s_lshl_b32 s32, s32, 4
    v_add_u32 v8, s32, v5          ; s2
    s_and_b32 s33, s3, 1
    s_lshl_b32 s33, s33, 1         ; r&3
    s_bfe_u32 s34, s3, 0x20001     ; (u>>1)&3 = r>>2
    s_lshl_b32 s34, s34, 3
    s_add_u32 s33, s33, s34
    v_lshl_add_u32 v11, v4, 2, s33 ; k1
    v_mul_u32_u24 v9, v8, v11
    v_add_u32 v10, v9, v8""")
    cs(12,9,0); cs(13,10,0); cs(14,9,1536); cs(15,10,1536)
    a.I(f"""s_mov_b32 s35, {sc:#x}
    s_nop 0
    v_mul_f32 v12, s35, v12
    v_mul_f32 v13, s35, v13
    v_mul_f32 v14, s35, v14
    v_mul_f32 v15, s35, v15
    s_lshl_b32 s3, s3, 10
    s_add_u32 s3, s3, {TW2}
    buffer_store_dwordx4 v[12:15], v7, s[20:23], s3 offen sc1
    s_branch P_end""")
    a.L("P_T6c")
    a.I(f"""s_sub_u32 s3, s3, 32
    s_cmp_ge_u32 s3, 6
    s_cbranch_scc1 P_T6d
    s_lshr_b32 s32, s3, 1
    s_mov_b32 s36, 0
    s_cmp_eq_u32 s32, 1
    s_cselect_b32 s36, 1536, s36
    s_cmp_eq_u32 s32, 2
    s_cselect_b32 s36, 512, s36
    s_and_b32 s33, s3, 1
    s_lshl_b32 s33, s33, 4
    v_lshl_add_u32 v8, v4, 2, s33     ; 16k+4hf
    v_lshlrev_b32 v9, 6, v3           ; a*64""")
    for t in range(8):
        a.I(f"""v_add_u32 v10, {(t&3)+8*(t>>2)}, v8
        v_mul_u32_u24 v10, v10, v9""")
        cs(12+t,10,"s36")
    a.I("s_branch P_T6s")
    a.L("P_T6d")
    a.I(f"""s_sub_u32 s32, s3, 6
    s_cmp_ge_u32 s32, 8
    s_cselect_b32 s36, 1536, 0
    s_bfe_u32 s33, s32, 0x10002       ; phi
    s_lshl_b32 s33, s33, 4
    v_add_u32 v9, s33, v5             ; a
    v_lshlrev_b32 v9, 5, v9           ; a*32
    s_and_b32 s34, s32, 3
    s_lshl_b32 s34, s34, 3
    v_lshl_add_u32 v8, v4, 5, s34     ; 32hf+8ks""")
    for t in range(8):
        a.I(f"""v_add_u32 v10, {t}, v8
        v_mul_u32_u24 v10, v10, v9""")
        cs(12+t,10,"s36")
    a.L("P_T6s")
    a.I("s_nop 1")
    for p in range(4):
        a.I(f"v_cvt_pk_bf16_f32 v{20+p}, v{12+2*p}, v{13+2*p}")
    a.I(f"""s_lshl_b32 s3, s3, 10
    s_add_u32 s3, s3, {CST}
    buffer_store_dwordx4 v[20:23], v7, s[20:23], s3 offen sc1""")
    a.I("s_branch P_end")
```
